```python
import torch

def _softmax(x, axis=-1):
    return torch.softmax(x, dim=axis)
def _gelu(x):
    return torch.nn.functional.gelu(x, approximate="tanh")
def _silu(x):
    return torch.nn.functional.silu(x)
def _sigmoid(x):
    return torch.sigmoid(x)
def _layernorm(x, axis=-1, eps=1e-5):
    m = x.mean(dim=axis, keepdim=True)
    v = x.var(dim=axis, keepdim=True, unbiased=False)
    return (x - m) / torch.sqrt(v + eps)
def _scatter_add(tgt, idx, src, axis=0):
    return tgt.clone().index_add_(axis, idx, src)
def _segment_sum(src, seg, n):
    out = torch.zeros((n,) + src.shape[1:], dtype=src.dtype)
    return out.index_add_(0, seg, src)
def _pad(x, pw):
    flat = tuple(v for pair in reversed(pw) for v in pair)
    return torch.nn.functional.pad(x, flat)

kernel_name = 'sequential_preLN__linear_attn_block__swiglu_ffn__prompt'

def setup_inputs():

    _w = (lambda a: (lambda t: t.to(torch.bfloat16) if t.is_floating_point() else t)(torch.as_tensor(a)))
    def _A_setup():
        B, S, D = 1, 2048, 576
        return {
            "x": _w((lambda *s: torch.randn(*s, dtype=torch.bfloat16) * 0.05)(B, S, D)),
            "wqkv": _w((lambda *s: torch.randn(*s, dtype=torch.bfloat16) * 0.05)(D, 3 * D)),
            "wo": _w((lambda *s: torch.randn(*s, dtype=torch.bfloat16) * 0.05)(D, D)),
        }
    _A_in = _A_setup()

    def _B_setup():
        B, S, D, F = 1, 2048, 576, 4608
        return {
            "x": _w((lambda *s: torch.randn(*s, dtype=torch.bfloat16) * 0.05)(B, S, D)),
            "w_gate": _w((lambda *s: torch.randn(*s, dtype=torch.bfloat16) * 0.05)(D, F)),
            "w_up": _w((lambda *s: torch.randn(*s, dtype=torch.bfloat16) * 0.05)(D, F)),
            "w_down": _w((lambda *s: torch.randn(*s, dtype=torch.bfloat16) * 0.05)(F, D)),
        }
    _B_in = _B_setup()

    return {
        "A_x": _A_in["x"],
        "A_wqkv": _A_in["wqkv"],
        "A_wo": _A_in["wo"],
        "B_x": _B_in["x"],
        "B_w_gate": _B_in["w_gate"],
        "B_w_up": _B_in["w_up"],
        "B_w_down": _B_in["w_down"],
    }

def reference(A_x, A_wqkv, A_wo, B_x, B_w_gate, B_w_up, B_w_down):
    def _A_ref(x, wqkv, wo):
        B, S, D = x.shape
        H = 32; Dh = D // H
        qkv = (lambda x, *d: x.permute(*d))((x @ wqkv).reshape(B, S, 3, H, Dh), 2, 0, 3, 1, 4)
        q, k, v = qkv[0], qkv[1], qkv[2]
        phi = lambda t: torch.where(t > 0, t + 1, torch.exp(t)) + 1e-6
        pq, pk = phi(q), phi(k)
        kv = torch.einsum("bhsd,bhse->bhde", pk, v)
        z = torch.einsum("bhsd->bhd", pk)
        num = torch.einsum("bhqd,bhde->bhqe", pq, kv)
        den = torch.einsum("bhqd,bhd->bhq", pq, z)[..., None] + 1e-6
        o = num / den
        return (lambda x, *d: x.permute(*d))(o, 0, 2, 1, 3).reshape(B, S, D) @ wo

    def _B_ref(x, w_gate, w_up, w_down):
        g = _silu(x @ w_gate)
        u = x @ w_up
        return (g * u) @ w_down

    x = A_x
    h = x + _A_ref(_layernorm(x, axis=-1), A_wqkv, A_wo)
    h2 = h + _B_ref(_layernorm(h, axis=-1), B_w_gate, B_w_up, B_w_down)
    return h2
```

```python
import re

TRANS = ("v_exp_f32", "v_log_f32", "v_rcp_f32", "v_rsq_f32", "v_sqrt_f32", "v_sin_f32", "v_cos_f32",
         "v_rcp_iflag_f32")

_REG_RE = re.compile(r"^(-?)(abs\()?([vas])(\d+)\)?$")
_RANGE_RE = re.compile(r"^(-?)(abs\()?([vas])\[(\d+):(\d+)\]\)?$")


def regs_of(op):
    op = op.strip()
    if op in ("vcc",):
        return [("s", "vcc")]
    if op in ("exec",):
        return [("s", "exec")]
    if op == "m0":
        return [("s", "m0")]
    if op in ("vcc_lo", "vcc_hi"):
        return [("s", "vcc")]
    m = _REG_RE.match(op)
    if m:
        return [(m.group(3), int(m.group(4)))]
    m = _RANGE_RE.match(op)
    if m:
        return [(m.group(3), i) for i in range(int(m.group(4)), int(m.group(5)) + 1)]
    return []


def split_ops(s):
    out, depth, cur = [], 0, ""
    for ch in s:
        if ch in "[(":
            depth += 1
        if ch in "])":
            depth -= 1
        if ch == "," and depth == 0:
            out.append(cur.strip())
            cur = ""
        else:
            cur += ch
    if cur.strip():
        out.append(cur.strip())
    return out


class Ins:
    __slots__ = ("text", "mn", "ops", "mods", "cls", "wr", "rd", "passes", "srcc", "srcab", "label", "target",
                 "store_data", "nstates")

    def __init__(self, text):
        self.text = text
        t = text.split(";")[0].strip()
        self.label = None
        self.target = None
        self.wr, self.rd = [], []
        self.passes = 0
        self.srcc, self.srcab, self.store_data = [], [], []
        self.nstates = 1
        if t.endswith(":"):
            self.label = t[:-1]
            self.cls = "label"
            self.mn = ""
            self.nstates = 0
            return
        if t == "" or t.startswith("."):
            self.cls = "none"
            self.mn = ""
            self.nstates = 0
            return
        parts = t.split(None, 1)
        mn = parts[0]
        rest = parts[1] if len(parts) > 1 else ""
        ops_all = split_ops(rest)
        ops, mods = [], []
        for i, o in enumerate(ops_all):
            toks = o.split()
            if not toks:
                continue
            ops.append(toks[0])
            mods += toks[1:]
        self.mn, self.ops, self.mods = mn, ops, mods
        base = mn.replace("_e32", "").replace("_e64", "")
        R = lambda k: [r for o in ops[k] for r in regs_of(o)] if isinstance(k, slice) else regs_of(ops[k])
        for md in mods:
            if md.startswith("offset:"):
                v = int(md.split(":")[1], 0)
                if mn.startswith("buffer_"):
                    assert 0 <= v < 4096, text
                elif mn.startswith("ds_"):
                    assert 0 <= v < 65536, text
                elif mn.startswith("global_"):
                    assert -4096 <= v < 4096, text
        if mn == "s_nop":
            self.cls = "nop"
            self.nstates = int(ops[0], 0) + 1
        elif mn.startswith("v_mfma"):
            self.cls = "mfma"
            self.passes = 8 if "32x32" in mn else 4
            self.wr = R(0)
            self.srcab = R(1) + R(2)
            self.srcc = R(3)
            self.rd = self.srcab + self.srcc
        elif mn.startswith("v_"):
            self.cls = "trans" if base in TRANS else "valu"
            if base.startswith("v_cmp"):
                self.wr = R(0)
                self.rd = R(slice(1, None))
                if base.startswith("v_cmpx"):
                    self.wr += [("s", "exec")]
            elif base.startswith("v_permlane") and "swap" in base:
                self.wr = R(0) + R(1)
                self.rd = R(0) + R(1)
            elif base in ("v_add_co_u32", "v_sub_co_u32", "v_subrev_co_u32"):
                self.wr = R(0) + R(1)
                self.rd = R(slice(2, None))
            elif base in ("v_addc_co_u32", "v_subb_co_u32"):
                self.wr = R(0) + R(1)
                self.rd = R(slice(2, None))
            elif base in ("v_fmac_f32", "v_dot2c_f32_bf16", "v_pk_fmac_f16", "v_writelane_b32"):
                self.wr = R(0)
                self.rd = R(slice(0, None))
            elif base == "v_nop":
                pass
            else:
                self.wr = R(0)
                self.rd = R(slice(1, None))
                if base == "v_cndmask_b32" and len(ops) == 3:
                    self.rd += [("s", "vcc")]
        elif mn.startswith("buffer_") or mn.startswith("global_"):
            isb = mn.startswith("buffer_")
            if "lds" in mods or "_lds_" in mn:
                self.cls = "dma"
                self.rd = R(slice(0, None)) + [("s", "m0")]
            elif "_load" in mn:
                self.cls = "vload"
                self.wr = R(0)
                self.rd = R(slice(1, None))
            elif "_inv" in mn or "wbl2" in mn:
                self.cls = "vmisc"
            else:
                self.cls = "vstore"
                self.rd = R(slice(0, None))
                data = R(0) if isb else R(1)
                if ("atomic" in mn) and ("sc0" in mods):
                    self.wr = R(0)
                    if not isb:
                        data = R(2)
                if "x3" in mn or "x4" in mn:
                    self.store_data = data
        elif mn.startswith("ds_"):
            if "read" in mn or "permute" in mn or "swizzle" in mn or "_rtn" in mn:
                self.cls = "dsread"
                self.wr = R(0)
                self.rd = R(slice(1, None))
            else:
                self.cls = "dswrite"
                self.rd = R(slice(0, None))
        elif mn.startswith("s_"):
            if mn.startswith("s_cbranch") or mn == "s_branch":
                self.cls = "branch"
                self.target = ops[0]
            elif mn.startswith("s_load") or mn.startswith("s_buffer_load") or mn.startswith("s_memtime") \
                    or mn.startswith("s_memrealtime"):
                self.cls = "smem"
                self.wr = R(0)
                self.rd = R(slice(1, None))
            elif mn.startswith("s_atomic"):
                self.cls = "smem"
                self.wr = R(0)
                self.rd = R(slice(0, None))
            elif mn in ("s_waitcnt", "s_barrier", "s_endpgm", "s_setprio", "s_sleep"):
                self.cls = "misc"
            elif mn.startswith("s_cmp") or mn.startswith("s_bitcmp"):
                self.cls = "salu"
                self.rd = R(slice(0, None))
            else:
                self.cls = "salu"
                self.wr = R(0)
                self.rd = R(slice(1, None))
                if "saveexec" in mn:
                    self.wr += [("s", "exec")]
                if mn in ("s_addk_i32", "s_mulk_i32"):
                    self.rd += R(0)
        else:
            raise ValueError("unknown instruction: " + text)


def _need(state, ins):
    t_need = -10 ** 9
    isvalu = ins.cls in ("valu", "trans")
    base = ins.mn.replace("_e32", "").replace("_e64", "")

    def req(t, dist):
        nonlocal t_need
        t_need = max(t_need, t + dist + 1)

    for r in ins.rd:
        for (t, kind, extra) in state.get(r, ()):
            if kind == "valu_w" or kind == "trans_w":
                if r[0] in "va":
                    if ins.cls == "mfma":
                        req(t, 2)
                    if base in ("v_readfirstlane_b32", "v_readlane_b32"):
                        req(t, 1)
                    if base.startswith("v_permlane") or "dpp" in " ".join(getattr(ins, "mods", [])) or \
                            any(m.startswith("row_") or m.startswith("quad_perm") or m.startswith("wave_") for m in getattr(ins, "mods", [])):
                        req(t, 2)
                    if kind == "trans_w" and ins.cls == "valu":
                        req(t, 1)
                    if kind == "trans_w" and ins.cls in ("mfma",):
                        req(t, 2)
                else:
                    if isvalu:
                        req(t, 2)
                        if base in ("v_readlane_b32", "v_writelane_b32"):
                            req(t, 4)
                    if ins.cls in ("vload", "vstore", "dma"):
                        req(t, 5)
                    if ins.cls in ("salu", "branch", "smem"):
                        req(t, 1)
            elif kind == "mfma_w":
                p, dset = extra
                if ins.cls == "mfma":
                    if r in ins.srcab:
                        req(t, 8 if p == 4 else 12)
                    if r in ins.srcc:
                        if tuple(ins.srcc) == dset and ins.passes == p:
                            pass
                        else:
                            req(t, 6 if p == 4 else 10)
                else:
                    req(t, 8 if p == 4 else 12)
            elif kind == "salu_w":
                if r == ("s", "m0") and ins.cls == "dma":
                    req(t, 1)
            elif kind == "dot_w":
                same = (ins.mn == extra)
                srcc = regs_of(ins.ops[3]) if same and len(ins.ops) > 3 else []
                ab = (regs_of(ins.ops[1]) + regs_of(ins.ops[2])) if same else []
                if not same or r in ab:
                    req(t, 3)
    for r in ins.wr:
        for (t, kind, extra) in state.get(r, ()):
            if kind == "mfma_w":
                p, dset = extra
                if ins.cls == "mfma":
                    if not (tuple(ins.wr) == dset and ins.passes == p):
                        req(t, 6 if p == 4 else 10)
                else:
                    req(t, 8 if p == 4 else 12)
            elif kind == "mfma_c":
                if isvalu:
                    req(t, 3 if extra == 4 else 7)
            elif kind == "store_d":
                req(t, 2 if isvalu else 1)
            elif kind == "dot_w":
                if ins.mn != extra:
                    req(t, 3)
    return t_need


def _update(state, ins, t):
    def add(r, kind, extra=None, clear=True):
        lst = state.setdefault(r, [])
        lst.append((t, kind, extra))
        if len(lst) > 6:
            del lst[0]

    if ins.cls in ("valu", "trans"):
        for r in ins.wr:
            add(r, "trans_w" if ins.cls == "trans" else "valu_w")
            if ins.mn.startswith("v_dot"):
                add(r, "dot_w", ins.mn)
    elif ins.cls == "mfma":
        for r in ins.wr:
            add(r, "mfma_w", (ins.passes, tuple(ins.wr)))
        for r in ins.srcc:
            add(r, "mfma_c", ins.passes)
    elif ins.cls == "salu":
        for r in ins.wr:
            add(r, "salu_w")
    if ins.store_data:
        for r in ins.store_data:
            add(r, "store_d")


def hazard_pass(lines):
    ins = [Ins(l) for l in lines]
    label_pos = {x.label: i for i, x in enumerate(ins) if x.label}
    out = []
    state = {}
    t = 0
    snaps = {}
    nins = 0

    def copy_state(s):
        return {k: list(v) for k, v in s.items()}

    for idx, x in enumerate(ins):
        if x.cls == "label":
            for (s2, tb) in snaps.get(x.label, ()):
                shift = t - (tb + 1)
                for k, v in s2.items():
                    lst = state.setdefault(k, [])
                    for (tt, kind, extra) in v:
                        e = (tt + shift, kind, extra)
                        if e not in lst:
                            lst.append(e)
            out.append(x.text)
            continue
        if x.cls == "none":
            out.append(x.text)
            continue
        need = _need(state, x)
        if x.cls == "branch" and x.target in label_pos and label_pos[x.target] < idx:
            s2 = copy_state(state)
            tt = max(t, need) + 1
            extra_pad = 0
            cnt = 0
            for y in ins[label_pos[x.target]:]:
                if y.cls in ("label", "none"):
                    continue
                if y.cls == "branch":
                    break
                ny = _need(s2, y)
                if ny > tt:
                    extra_pad = max(extra_pad, ny - tt)
                _update(s2, y, tt)
                tt += y.nstates
                cnt += 1
                if cnt > 24:
                    break
            need = max(need, t + extra_pad)
        if need > t:
            pad = need - t
            while pad > 0:
                k = min(pad, 16)
                out.append("    s_nop %d" % (k - 1))
                pad -= k
                t += k
                nins += 1
        if x.cls == "branch" and x.target in label_pos and label_pos[x.target] > idx:
            snaps.setdefault(x.target, []).append((copy_state(state), t))
        _update(state, x, t)
        out.append(x.text)
        t += x.nstates
    return out, nins


class Counter:
    def __init__(self, name, maxv):
        self.name, self.maxv = name, maxv
        self.ops = []

    def issue(self, tag):
        self.ops.append(tag)

    def need(self, tags):
        if isinstance(tags, str) or not isinstance(tags, (list, tuple, set)):
            tags = [tags]
        last = -1
        for i, tg in enumerate(self.ops):
            if tg in tags:
                last = i
        if last < 0:
            return None
        n = len(self.ops) - 1 - last
        return n

    def retire_upto(self, n):
        if n < len(self.ops):
            self.ops = self.ops[len(self.ops) - n:] if n > 0 else []


class K:
    def __init__(self, name):
        self.name = name
        self.lines = []
        self.vm = Counter("vmcnt", 63)
        self.lg = Counter("lgkmcnt", 15)
        self.nlabel = 0

    def __call__(self, s, *a):
        if a:
            s = s % a
        self.lines.append("    " + s)

    def label(self, l):
        self.lines.append(l + ":")

    def newlabel(self, p="L"):
        self.nlabel += 1
        return "%s_%s_%d" % (self.name, p, self.nlabel)

    def comment(self, s):
        self.lines.append("    ; " + s)

    def vmem(self, tag, s, *a):
        self(s, *a)
        self.vm.issue(tag)

    def lds(self, tag, s, *a):
        self(s, *a)
        self.lg.issue(tag)

    def wait_vm(self, tags):
        n = self.vm.need(tags)
        if n is None:
            return
        n = min(n, 63)
        self("s_waitcnt vmcnt(%d)" % n)
        self.vm.retire_upto(n)

    def wait_lg(self, tags):
        n = self.lg.need(tags)
        if n is None:
            return
        n = min(n, 15)
        self("s_waitcnt lgkmcnt(%d)" % n)
        self.lg.retire_upto(n)

    def wait_vm_all(self):
        self("s_waitcnt vmcnt(0)")
        self.vm.ops = []

    def wait_lg_all(self):
        self("s_waitcnt lgkmcnt(0)")
        self.lg.ops = []

    def srd(self, sreg, base_lo, base_hi, nbytes, off=0):
        if off:
            self("s_add_u32 s%d, s%d, 0x%x", sreg, base_lo, off)
            self("s_addc_u32 s%d, s%d, 0", sreg + 1, base_hi)
        else:
            self("s_mov_b32 s%d, s%d", sreg, base_lo)
            self("s_mov_b32 s%d, s%d", sreg + 1, base_hi)
        self("s_mov_b32 s%d, 0x%x", sreg + 2, nbytes)
        self("s_mov_b32 s%d, 0x20000", sreg + 3)

    def finish(self, nvgpr, nagpr=0, nsgpr=102):
        body, nn = hazard_pass(self.lines)
        acc = (nvgpr + 3) // 4 * 4
        if acc == 0:
            acc = 4
        nfv = acc + nagpr if nagpr else nvgpr
        text = []
        text.append(".globl %s" % self.name)
        text.append(".p2align 8")
        text.append(".type %s,@function" % self.name)
        text.append("%s:" % self.name)
        text += body
        desc = [
            ".amdhsa_kernel %s" % self.name,
            "  .amdhsa_next_free_vgpr %d" % nfv,
            "  .amdhsa_next_free_sgpr %d" % nsgpr,
            "  .amdhsa_accum_offset %d" % acc,
            "  .amdhsa_group_segment_fixed_size 0",
            "  .amdhsa_kernarg_size 80",
            "  .amdhsa_user_sgpr_count 2",
            "  .amdhsa_user_sgpr_kernarg_segment_ptr 1",
            "  .amdhsa_system_sgpr_workgroup_id_x 1",
            "  .amdhsa_float_denorm_mode_32 3",
            ".end_amdhsa_kernel",
        ]
        return "\n".join(text), "\n".join(desc), nn


def vr(lo, n=1):
    return "v%d" % lo if n == 1 else "v[%d:%d]" % (lo, lo + n - 1)


def ar(lo, n=1):
    return "a%d" % lo if n == 1 else "a[%d:%d]" % (lo, lo + n - 1)


def sr(lo, n=1):
    return "s%d" % lo if n == 1 else "s[%d:%d]" % (lo, lo + n - 1)
```

```python
from asmfw import K, vr, ar, sr
import gen as G

OOB = 0x7f000000
PREPD = 138240
CSP = 158976
STB = 161280
LDS_TOTAL = 162304
RSTR = 240
LOG2E = 1.4426950408889634


def gen():
    k = K("k1_kernel")
    k.sbase = 88
    end = G.prologue_exit(k, 256)
    k("s_load_dwordx2 s[4:5], s[0:1], %d", G.KA_WS)
    k("s_load_dwordx4 s[8:11], s[0:1], %d", G.KA_X)
    k("s_load_dwordx2 s[12:13], s[0:1], %d", G.KA_WD)
    k("s_load_dwordx2 s[14:15], s[0:1], %d", G.KA_DBG)
    k("s_lshr_b32 s25, s2, 4")
    k("s_and_b32 s24, s2, 15")
    k("s_lshr_b32 s22, s2, 2")
    k("s_and_b32 s23, s2, 3")
    VTID = 1
    k("v_mov_b32 v%d, v0", VTID)
    k("v_lshrrev_b32 v2, 6, v0")
    k("v_and_b32 v0, 63, v0")
    k("v_readfirstlane_b32 s26, v2")
    VG, VI, VI4, VIM, VL16, VOOB = 2, 3, 4, 5, 6, 7
    k("v_lshrrev_b32 v%d, 4, v0", VG)
    k("v_and_b32 v%d, 15, v0", VI)
    k("v_bfe_u32 v%d, v0, 2, 2", VI4)
    k("v_and_b32 v%d, 3, v0", VIM)
    k("v_lshlrev_b32 v%d, 4, v0", VL16)
    k("v_mov_b32 v%d, 0x%x", VOOB, OOB)
    k("v_cmp_eq_u32 s[30:31], 0, v%d", VG)
    VXO = 8
    k("v_mul_u32_u24 v9, 1152, v%d", VI)
    k("v_lshl_add_u32 v%d, v%d, 4, v9", VXO, VG)
    VWD, VPD = 208, 225
    k("s_mov_b32 s27, 0x%x", (1 << 32) // 18 + 1)
    for i in range(6):
        k("v_add_u32 v9, %d, v0", 64 * i)
        k("v_mul_hi_u32 v10, v9, s27")
        k("v_mul_u32_u24 v11, 18, v10")
        k("v_sub_u32 v11, v9, v11")
        k("v_mul_u32_u24 v12, 1152, v10")
        k("v_lshl_add_u32 v%d, v11, 4, v12", VPD + i)
    k("s_mov_b32 s27, 0x%x", (1 << 32) // 15 + 1)
    k("s_mov_b32 s28, 0x%x", (1 << 32) // 5 + 1)
    for i in range(15):
        k("v_add_u32 v9, %d, v0", 64 * i)
        k("v_mul_hi_u32 v10, v9, s27")
        k("v_mul_u32_u24 v11, 15, v10")
        k("v_sub_u32 v11, v9, v11")
        k("v_mul_hi_u32 v12, v11, s28")
        k("v_mul_u32_u24 v13, 5, v12")
        k("v_sub_u32 v13, v11, v13")
        k("v_mul_u32_u24 v10, 3456, v10")
        k("v_mul_u32_u24 v12, 1152, v12")
        k("v_lshlrev_b32 v13, 4, v13")
        k("v_add3_u32 v%d, v10, v12, v13", VWD + i)
    VTB = 245
    k("v_lshl_add_u32 v11, v%d, 3, v%d", VG, VI4)
    k("v_mul_u32_u24 v11, %d, v11", RSTR)
    k("v_lshl_add_u32 v%d, v%d, 3, v11", VTB, VIM)
    k("v_add_u32 v%d, %d, v%d", VTB + 1, 6 * 32 * RSTR, VTB)
    k("v_add_u32 v%d, %d, v%d", VTB + 2, 12 * 32 * RSTR, VTB)
    k("s_waitcnt lgkmcnt(0)")
    k.srd(64, 8, 9, G.SZ_H)
    k.srd(68, 10, 11, G.D * 3 * G.D * 2)
    k.srd(72, 12, 13, G.F * G.D * 2)
    k.srd(76, 14, 15, 256)
    k.srd(80, 4, 5, G.SZ_KV, G.WS_KV)
    k.srd(84, 4, 5, G.SZ_CS, G.WS_CS)
    G.stamp(k)
    VT = 11
    k("v_mov_b32 v%d, 1", VT)
    k("v_mov_b32 v12, 0")
    k("v_mov_b32 v13, 0")
    k("v_mov_b32 v14, 0")
    k("v_mov_b32 v15, 0")
    k("s_lshl_b32 s29, s24, 2")
    lab = k.newlabel("notk")
    k("s_cmp_lg_u32 s26, 0")
    k("s_cbranch_scc1 %s", lab)
    k("s_mov_b64 exec, 1")
    k("buffer_atomic_add v%d, v12, s[76:79], s29 offen sc0 sc1", VT)
    k("s_mov_b64 exec, -1")
    k("v_lshlrev_b32 v16, 2, v0")
    k("v_cmp_gt_u32 vcc, 36, v0")
    k("v_cndmask_b32 v16, v%d, v16, vcc", VOOB)
    k("s_mul_i32 s32, s2, 144")
    k("buffer_store_dword v12, v16, s[84:87], s32 offen")
    k.label(lab)
    XB = 16
    k("s_lshl_b32 s32, s25, 7")
    k("s_lshl_b32 s33, s26, 5")
    k("s_add_u32 s32, s32, s33")
    k("s_mul_i32 s32, s32, 1152")
    k("s_add_u32 s33, s32, %d", 16 * 1152)
    xr = lambda t, s: XB + (t * 18 + s) * 4
    k("s_mul_i32 s34, s26, %d", 144 * 3456)
    k("s_mul_i32 s35, s24, 72")
    k("s_add_u32 s34, s34, s35")
    k("s_mul_i32 s35, s26, %d", 144 * RSTR)
    xl = [(t, s) for s in range(18) for t in range(2)]
    for i in range(36):
        t, s = xl[i]
        k.vmem("X", "buffer_load_dwordx4 %s, v%d, s[64:67], s%d offen offset:%d", vr(xr(t, s), 4), VXO, 32 + t, s * 64)
        if i < 34:
            if i % 15 == 0:
                k("s_add_u32 s36, s34, %d", (i // 15) * 64 * 3456)
            k("s_add_u32 m0, s35, %d", i * 1024)
            if i == 33:
                k("s_mov_b32 exec_hi, 0xffff")
            k.vmem("W", "buffer_load_dwordx4 v%d, s[68:71], s36 offen lds", VWD + i % 15)
            if i == 33:
                k("s_mov_b64 exec, -1")
    k("s_mul_i32 s36, s22, 72")
    k("s_mul_i32 s37, s26, 18")
    k("s_add_u32 s36, s36, s37")
    k("s_mul_i32 s36, s36, 1152")
    k("s_mul_i32 s37, s23, 288")
    k("s_add_u32 s36, s36, s37")
    k("s_mul_i32 s37, s26, %d", 18 * 288)
    for i in range(6):
        k("s_add_u32 m0, s37, %d", PREPD + i * 1024)
        if i == 5:
            k("s_mov_b64 exec, 15")
        k.vmem("P", "buffer_load_dwordx4 v%d, s[72:75], s36 offen lds", VPD + i)
        if i == 5:
            k("s_mov_b64 exec, -1")
    for j in range(36):
        k("v_accvgpr_write_b32 a%d, 0", j)
    VONE = 232
    for j in range(4):
        k("v_mov_b32 v%d, 0x3f803f80", VONE + j)
    k.wait_vm(["X"])
    lab = k.newlabel("nozero")
    k("s_mov_b32 s40, 1")
    k("s_cmp_lg_u32 s26, 0")
    k("s_cbranch_scc1 %s", lab)
    k("v_readfirstlane_b32 s40, v%d", VT)
    k("s_cmp_lg_u32 s40, 0")
    k("s_cbranch_scc1 %s", lab)
    k("s_mul_i32 s38, s24, 3040")
    k("v_cmp_gt_u32 vcc, %d, v0", (3040 - 2048) // 16)
    k("v_cndmask_b32 v236, v%d, v%d, vcc", VOOB, VL16)
    k("buffer_store_dwordx4 v[12:15], v%d, s[80:83], s38 offen sc0 sc1", VL16)
    k("buffer_store_dwordx4 v[12:15], v%d, s[80:83], s38 offen offset:1024 sc0 sc1", VL16)
    k("buffer_store_dwordx4 v[12:15], v236, s[80:83], s38 offen offset:2048 sc0 sc1")
    k.label(lab)
    VS = 236
    for t in range(2):
        for c2 in range(2):
            k("v_mov_b32 v%d, 0", VS + t * 4 + c2)
            k("v_mov_b32 v%d, 0", VS + t * 4 + 2 + c2)
    for s in range(18):
        for t in range(2):
            for j in range(4):
                r = xr(t, s) + j
                k("v_dot2_f32_bf16 v%d, v%d, v%d, v%d", VS + t * 4 + j % 2, r, VONE, VS + t * 4 + j % 2)
                k("v_dot2_f32_bf16 v%d, v%d, v%d, v%d", VS + t * 4 + 2 + j % 2, r, r, VS + t * 4 + 2 + j % 2)
    for t in range(2):
        k("v_add_f32 v%d, v%d, v%d", VS + t * 4, VS + t * 4, VS + t * 4 + 1)
        k("v_add_f32 v%d, v%d, v%d", VS + t * 4 + 2, VS + t * 4 + 2, VS + t * 4 + 3)
    for xr_ in (16, 32):
        k("v_xor_b32 v244, %d, v0", xr_)
        k("v_lshlrev_b32 v244, 2, v244")
        for t in range(2):
            k("ds_bpermute_b32 v%d, v244, v%d", VS + t * 4 + 1, VS + t * 4)
            k("ds_bpermute_b32 v%d, v244, v%d", VS + t * 4 + 3, VS + t * 4 + 2)
        k("s_waitcnt lgkmcnt(0)")
        for t in range(2):
            k("v_add_f32 v%d, v%d, v%d", VS + t * 4, VS + t * 4, VS + t * 4 + 1)
            k("v_add_f32 v%d, v%d, v%d", VS + t * 4 + 2, VS + t * 4 + 2, VS + t * 4 + 3)
    for t in range(2):
        b = VS + t * 4
        k("v_mul_f32 v%d, 0x%08x, v%d", b, G.f32bits(1.0 / 576), b)
        k("v_mul_f32 v%d, 0x%08x, v%d", b + 2, G.f32bits(1.0 / 576), b + 2)
        k("v_fma_f32 v%d, -v%d, v%d, v%d", b + 2, b, b, b + 2)
        k("v_max_f32 v%d, 0, v%d", b + 2, b + 2)
        k("v_cvt_pk_bf16_f32 v%d, v%d, v%d", b + 3, b, b + 2)
        k("v_lshlrev_b32 v%d, 16, v%d", b, b + 3)
        k("v_and_b32 v%d, 0xffff0000, v%d", b + 2, b + 3)
        k("v_add_f32 v%d, 0x%08x, v%d", b + 2, G.f32bits(1e-5), b + 2)
        k("v_cvt_pk_bf16_f32 v%d, v%d, v%d", b + 3, b + 2, b + 2)
        k("v_lshlrev_b32 v%d, 16, v%d", b + 2, b + 3)
        k("v_sqrt_f32 v%d, v%d", b + 2, b + 2)
        k("v_sub_f32 v%d, 0, v%d", b, b)
        k("v_cvt_pk_bf16_f32 v%d, v%d, v%d", b + 3, b + 2, b + 2)
        k("v_lshlrev_b32 v%d, 16, v%d", b + 2, b + 3)
        k("v_rcp_f32 v%d, v%d", b + 1, b + 2)
    k("s_lshl_b32 s38, s26, 8")
    k("s_add_u32 s38, s38, %d", STB)
    k("v_lshl_add_u32 v244, v%d, 3, s38", VI)
    k("s_mov_b64 exec, s[30:31]")
    for t in range(2):
        k("ds_write_b64 v244, %s offset:%d", vr(VS + t * 4, 2), t * 128)
    k("s_mov_b64 exec, -1")
    k("s_waitcnt vmcnt(0)")
    k.vm.ops = []
    lab = k.newlabel("noflag")
    k("s_cmp_lg_u32 s40, 0")
    k("s_cbranch_scc1 %s", lab)
    k("v_mov_b32 v244, 1")
    k("s_mov_b64 exec, 1")
    k("buffer_store_dword v244, v12, s[76:79], s29 offen offset:64 sc0 sc1")
    k("s_mov_b64 exec, -1")
    k.label(lab)
    k("s_barrier")
    G.stamp(k)
    ACC = 160
    WB, NWB, AH = 36, 24, 7
    k("s_waitcnt lgkmcnt(0)")
    k.lg.ops = []
    frs = [(s, c) for s in range(18) for c in range(9)]

    def rd(n):
        s, c = frs[n]
        b = WB + (n % NWB) * 4
        off = (s % 6) * 32 * RSTR + (c // 3) * 80 + (c % 3) * 32
        k.lds(("W", n), "ds_read_b64_tr_b16 %s, v%d offset:%d", ar(b, 2), VTB + s // 6, off)
        k.lds(("W", n), "ds_read_b64_tr_b16 %s, v%d offset:%d", ar(b + 2, 2), VTB + s // 6, off + 4 * RSTR)
    nr = 0
    for n, (s, c) in enumerate(frs):
        while nr <= min(n + AH, len(frs) - 1):
            rd(nr)
            nr += 1
        k.wait_lg([("W", n)])
        w = ar(WB + (n % NWB) * 4, 4)
        for t in range(2):
            a = vr(ACC + (c * 2 + t) * 4, 4)
            cc = "0" if s == 0 else a
            if c < 3:
                k("v_mfma_f32_16x16x32_bf16 %s, %s, %s, %s", a, w, vr(xr(t, s), 4), cc)
            else:
                k("v_mfma_f32_16x16x32_bf16 %s, %s, %s, %s", a, vr(xr(t, s), 4), w, cc)
        if c == 8:
            lab = k.newlabel("nocs")
            k("s_cmp_lg_u32 s26, %d", s % 4)
            k("s_cbranch_scc1 %s", lab)
            for c2 in range(9):
                w2 = ar(WB + ((n - 8 + c2) % NWB) * 4, 4)
                k("v_mfma_f32_16x16x32_bf16 %s, %s, %s, %s", ar(c2 * 4, 4), vr(VONE, 4), w2, ar(c2 * 4, 4))
            k.label(lab)
    G.stamp(k)
    k("s_mul_i32 s38, s26, 576")
    k("s_add_u32 s38, s38, %d", CSP)
    k("v_lshl_add_u32 v244, v%d, 2, s38", VI)
    k("s_mov_b64 exec, s[30:31]")
    for c in range(9):
        k("ds_write_b32 v244, a%d offset:%d", c * 4, c * 64)
    k("s_mov_b64 exec, -1")
    k("s_waitcnt lgkmcnt(0)")
    k("s_barrier")
    k("v_lshlrev_b32 v244, 4, v%d", VG)
    k("v_add_u32 v244, %d, v244", CSP)
    k("v_lshlrev_b32 v245, 2, v%d", VI)
    k("v_add_u32 v245, %d, v245", CSP)
    CQ = 16
    CK = 64
    RS = 88
    for c in range(3):
        for w in range(4):
            k("ds_read_b128 %s, v244 offset:%d", vr(CQ + (c * 4 + w) * 4, 4), w * 576 + c * 64)
    k("s_waitcnt lgkmcnt(0)")
    for c in range(3, 9):
        for w in range(4):
            k("ds_read_b32 v%d, v245 offset:%d", CK + (c - 3) * 4 + w, w * 576 + c * 64)
        if c % 3 == 2:
            k("s_waitcnt lgkmcnt(0)")
    k("s_lshl_b32 s38, s26, 8")
    k("s_add_u32 s38, s38, %d", STB)
    k("v_lshl_add_u32 v244, v%d, 5, s38", VG)
    for t in range(2):
        k("ds_read_b128 %s, v244 offset:%d", vr(RS + t * 8, 4), t * 128)
        k("ds_read_b128 %s, v244 offset:%d", vr(RS + t * 8 + 4, 4), t * 128 + 16)
    for c in range(3):
        for j in range(4):
            b = CQ + c * 16 + j
            k("v_add_f32 v%d, v%d, v%d", b, b, b + 4)
            k("v_add_f32 v%d, v%d, v%d", b + 8, b + 8, b + 12)
            k("v_add_f32 v%d, v%d, v%d", b, b, b + 8)
    for c in range(6):
        b = CK + c * 4
        k("v_add_f32 v%d, v%d, v%d", b, b, b + 1)
        k("v_add_f32 v%d, v%d, v%d", b + 2, b + 2, b + 3)
        k("v_add_f32 v%d, v%d, v%d", b, b, b + 2)
    k("s_waitcnt lgkmcnt(0)")

    T0 = 104

    def bf16round4(regs):
        k("v_cvt_pk_bf16_f32 v%d, v%d, v%d", T0, regs[0], regs[1])
        k("v_cvt_pk_bf16_f32 v%d, v%d, v%d", T0 + 1, regs[2], regs[3])
        k("v_lshlrev_b32 v%d, 16, v%d", regs[0], T0)
        k("v_and_b32 v%d, 0xffff0000, v%d", regs[1], T0)
        k("v_lshlrev_b32 v%d, 16, v%d", regs[2], T0 + 1)
        k("v_and_b32 v%d, 0xffff0000, v%d", regs[3], T0 + 1)

    def phi4(regs):
        for j, r in enumerate(regs):
            k("v_min_f32 v%d, 0, v%d", T0 + 4 + j, r)
        for j, r in enumerate(regs):
            k("v_mul_f32 v%d, 0x%08x, v%d", T0 + 4 + j, G.f32bits(LOG2E), T0 + 4 + j)
        for j, r in enumerate(regs):
            k("v_exp_f32 v%d, v%d", T0 + 4 + j, T0 + 4 + j)
        for j, r in enumerate(regs):
            k("v_cmp_lt_f32 s[%d:%d], 0, v%d", 44 + 2 * j, 45 + 2 * j, r)
        for j, r in enumerate(regs):
            k("v_add_f32 v%d, 1.0, v%d", r, r)
        for j, r in enumerate(regs):
            k("v_cndmask_b32 v%d, v%d, v%d, s[%d:%d]", r, T0 + 4 + j, r, 44 + 2 * j, 45 + 2 * j)
        for j, r in enumerate(regs):
            k("v_add_f32 v%d, 0x%08x, v%d", r, G.f32bits(1e-6), r)

    k.srd(64, 4, 5, G.SZ_PQA, G.WS_PQA)
    k.srd(68, 4, 5, G.SZ_PQB, G.WS_PQB)
    k("s_lshl_b32 s38, s25, 3")
    k("s_lshl_b32 s39, s26, 1")
    k("s_add_u32 s38, s38, s39")
    k("s_lshl_b32 s38, s38, 4")
    k("s_add_u32 s38, s38, s24")
    k("s_lshl_b32 s39, s38, 7")
    k("s_lshl_b32 s38, s38, 10")
    k("s_add_u32 s41, s38, 16384")
    k("s_add_u32 s42, s39, 2048")
    k("v_lshlrev_b32 v244, 3, v%d", VI)
    k("v_cndmask_b32 v244, v%d, v244, s[30:31]", VOOB)
    PK = 120
    for t in range(2):
        for c in range(3):
            regs = [ACC + (c * 2 + t) * 4 + j for j in range(4)]
            for j, r in enumerate(regs):
                k("v_fma_f32 v%d, v%d, v%d, v%d", r, CQ + c * 16 + j, VS + 4 * t, r)
            for r in regs:
                k("v_mul_f32 v%d, v%d, v%d", r, r, VS + 4 * t + 1)
            bf16round4(regs)
            phi4(regs)
            k("v_cvt_pk_bf16_f32 v%d, v%d, v%d", PK + t * 6 + c * 2, regs[0], regs[1])
            k("v_cvt_pk_bf16_f32 v%d, v%d, v%d", PK + t * 6 + c * 2 + 1, regs[2], regs[3])
        k("buffer_store_dwordx4 %s, v%d, s[64:67], s%d offen", vr(PK + t * 6, 4), VL16, (38, 41)[t])
        k("buffer_store_dwordx2 %s, v244, s[68:71], s%d offen", vr(PK + t * 6 + 4, 2), (39, 42)[t])
    k("v_cmp_eq_u32 s[52:53], 4, v%d", VI)
    for c in range(3, 9):
        for t in range(2):
            regs = [ACC + (c * 2 + t) * 4 + j for j in range(4)]
            for j, r in enumerate(regs):
                k("v_fma_f32 v%d, v%d, v%d, v%d", r, CK + (c - 3) * 4, RS + t * 8 + 2 * j, r)
            for j, r in enumerate(regs):
                k("v_mul_f32 v%d, v%d, v%d", r, r, RS + t * 8 + 2 * j + 1)
            if c < 6:
                bf16round4(regs)
                phi4(regs)
            if c == 8:
                for r in regs:
                    k("v_cndmask_b32 v%d, v%d, 1.0, s[52:53]", r, r)
            d = PK + 12 + (c - 3) * 4 + t * 2
            k("v_cvt_pk_bf16_f32 v%d, v%d, v%d", d, regs[0], regs[1])
            k("v_cvt_pk_bf16_f32 v%d, v%d, v%d", d + 1, regs[2], regs[3])
    for a in range(3):
        for b in range(3):
            k("v_mfma_f32_16x16x32_bf16 %s, %s, %s, 0", vr(ACC + (a * 3 + b) * 4, 4), vr(PK + 12 + a * 4, 4),
              vr(PK + 24 + b * 4, 4))
    k("s_mul_i32 s38, s26, 9216")
    k("v_mul_u32_u24 v244, 192, v%d", VI)
    k("v_lshl_add_u32 v244, v%d, 4, v244", VG)
    k("v_add_u32 v244, s38, v244")
    for a in range(3):
        for b in range(3):
            k("ds_write_b128 v244, %s offset:%d", vr(ACC + (a * 3 + b) * 4, 4), b * 3072 + a * 64)
    k("s_waitcnt lgkmcnt(0)")
    k("s_barrier")
    G.stamp(k)
    poll = k.newlabel("poll")
    pd = k.newlabel("polldone")
    k.label(poll)
    k("buffer_load_dword v244, v12, s[76:79], s29 offen offset:64 sc0 sc1")
    k("s_waitcnt vmcnt(0)")
    k("v_readfirstlane_b32 s38, v244")
    k("s_cmp_eq_u32 s38, 1")
    k("s_cbranch_scc1 %s", pd)
    k("s_sleep 2")
    k("s_branch %s", poll)
    k.label(pd)
    k("s_mov_b32 s38, 0x%x", (1 << 32) // 20 + 1)
    k("s_mul_i32 s39, s24, 3040")
    for r in range(3):
        b = 16 + r * 12
        k("v_add_u32 v%d, %d, v%d", b, 256 * r, VTID)
        k("v_cmp_le_u32 vcc, 380, v%d", b)
        k("v_cndmask_b32 v%d, 0, 1, vcc", b + 1)
        k("v_mul_u32_u24 v%d, 380, v%d", b + 2, b + 1)
        k("v_sub_u32 v%d, v%d, v%d", b + 2, b, b + 2)
        k("v_mul_hi_u32 v%d, v%d, s38", b + 3, b + 2)
        k("v_mul_u32_u24 v%d, 20, v%d", b + 4, b + 3)
        k("v_sub_u32 v%d, v%d, v%d", b + 4, b + 2, b + 4)
        k("v_lshlrev_b32 v%d, 1, v%d", b + 5, b + 1)
        k("v_sub_u32 v%d, v%d, v%d", b + 4, b + 4, b + 5)
        k("v_mul_u32_u24 v%d, 18, v%d", b + 5, b + 1)
        k("v_add_u32 v%d, v%d, v%d", b + 6, b + 5, b + 3)
        k("v_cmp_gt_u32 vcc, 18, v%d", b + 3)
        k("v_cndmask_b32 v%d, 36, v%d, vcc", b + 6, b + 6)
        k("v_cmp_gt_u32 s[44:45], 18, v%d", b + 4)
        k("v_cmp_gt_u32 vcc, 760, v%d", b)
        k("s_and_b64 s[44:45], s[44:45], vcc")
        k("v_add_u32 v%d, v%d, v%d", b + 5, b + 5, b + 4)
        k("v_mul_u32_u24 v%d, 48, v%d", b + 6, b + 6)
        k("v_add_lshl_u32 v%d, v%d, v%d, 2", b + 6, b + 6, b + 5)
        k("v_cndmask_b32 v%d, 0, v%d, s[44:45]", b + 6, b + 6)
        k("v_lshlrev_b32 v%d, 2, v%d", b + 7, b)
        k("v_cndmask_b32 v%d, v%d, v%d, s[44:45]", b + 7, VOOB, b + 7)
        for w in range(4):
            k("ds_read_b32 v%d, v%d offset:%d", b + 8 + w, b + 6, w * 9216)
    k("s_waitcnt lgkmcnt(0)")
    for r in range(3):
        b = 16 + r * 12
        k("v_add_f32 v%d, v%d, v%d", b + 8, b + 8, b + 9)
        k("v_add_f32 v%d, v%d, v%d", b + 10, b + 10, b + 11)
        k("v_add_f32 v%d, v%d, v%d", b + 8, b + 8, b + 10)
        k("buffer_atomic_add_f32 v%d, v%d, s[80:83], s39 offen", b + 8, b + 7)
    k.srd(64, 4, 5, G.SZ_WDF, G.WS_WDF)
    k("s_lshl_b32 s38, s26, 2")
    k("v_add_u32 v60, s38, v%d", VG)
    k("v_mul_u32_u24 v61, 288, v%d", VI4)
    k("v_lshl_add_u32 v61, v%d, 3, v61", VIM)
    k("v_add_u32 v61, %d, v61", PREPD)
    k("s_mov_b32 s38, 0x%x", (1 << 32) // 9 + 1)
    k("s_mul_i32 s39, s22, 72")
    k("s_lshl_b32 s41, s23, 1")
    for it in range(11):
        b = 64 + it * 8
        k("v_add_u32 v62, %d, v60", it * 16)
        k("v_min_u32 v63, 161, v62")
        k("v_mul_hi_u32 v%d, v63, s38", b + 2)
        k("v_mul_u32_u24 v%d, 9, v%d", b + 3, b + 2)
        k("v_sub_u32 v%d, v63, v%d", b + 3, b + 3)
        k("v_mul_u32_u24 v%d, 1152, v%d", b + 4, b + 2)
        k("v_lshl_add_u32 v%d, v%d, 5, v%d", b + 4, b + 3, b + 4)
        k("v_add_u32 v%d, v%d, v61", b + 4, b + 4)
        k("ds_read_b64_tr_b16 %s, v%d", vr(b, 2), b + 4)
        k("v_lshl_add_u32 v%d, v%d, 2, s39", b + 2, b + 2)
        k("v_lshl_add_u32 v%d, v%d, 4, v%d", b + 3, b + 3, VI)
        k("v_cmp_le_u32 vcc, 72, v%d", b + 3)
        k("v_cndmask_b32 v%d, 0, 1, vcc", b + 5)
        k("v_mul_u32_u24 v%d, 72, v%d", b + 6, b + 5)
        k("v_sub_u32 v%d, v%d, v%d", b + 3, b + 3, b + 6)
        k("v_add_u32 v%d, s41, v%d", b + 5, b + 5)
        k("v_mul_u32_u24 v%d, 144, v%d", b + 5, b + 5)
        k("v_lshrrev_b32 v%d, 5, v%d", b + 6, b + 2)
        k("v_add_u32 v%d, v%d, v%d", b + 5, b + 5, b + 6)
        k("v_mul_u32_u24 v%d, 4608, v%d", b + 5, b + 5)
        k("v_bfe_u32 v%d, v%d, 4, 1", b + 6, b + 2)
        k("v_bfe_u32 v%d, v%d, 2, 1", b + 7, b + 2)
        k("v_lshl_add_u32 v%d, v%d, 1, v%d", b + 6, b + 6, b + 7)
        k("v_bfe_u32 v%d, v%d, 3, 1", b + 7, b + 2)
        k("v_lshl_add_u32 v%d, v%d, 3, v%d", b + 5, b + 7, b + 5)
        k("v_and_b32 v%d, 15, v%d", b + 7, b + 3)
        k("v_lshrrev_b32 v%d, 4, v%d", b + 2, b + 3)
        k("v_lshl_add_u32 v63, v%d, 4, v%d", b + 6, b + 7)
        k("v_lshl_add_u32 v%d, v%d, 3, v%d", b + 7, b + 6, b + 7)
        k("v_cmp_gt_u32 vcc, 4, v%d", b + 2)
        k("v_cndmask_b32 v%d, v%d, v63, vcc", b + 7, b + 7)
        k("v_lshlrev_b32 v%d, 4, v%d", b + 7, b + 7)
        k("v_lshl_add_u32 v%d, v%d, 10, v%d", b + 7, b + 2, b + 7)
        k("v_add_u32 v%d, v%d, v%d", b + 5, b + 5, b + 7)
        if it == 10:
            k("v_cmp_gt_u32 vcc, 162, v62")
            k("v_cndmask_b32 v%d, v%d, v%d, vcc", b + 5, VOOB, b + 5)
    for it in range(11):
        b = 64 + it * 8
        k("s_waitcnt lgkmcnt(%d)", 10 - it)
        k("buffer_store_dwordx2 %s, v%d, s[64:67], 0 offen", vr(b, 2), b + 5)
    if G.STAMP:
        k("s_waitcnt vmcnt(0)")
        G.stamp(k)
        G.stamp_dump(k, 4, 5, 26)
    k.label(end)
    k("s_endpgm")
    return k.finish(248, 132, 102), "k1_kernel grid=(256,1,1) block=(256,1,1) lds=%d" % LDS_TOTAL
```

```python
from asmfw import K, vr, ar, sr
import gen as G

OOB = 0x7f000000
WOW = 20736
PREP = 84992
CSL = 128000
LDS_TOTAL = 129024


def gen():
    k = K("k2_kernel")
    end = G.prologue_exit(k, 256)
    k("s_load_dwordx2 s[4:5], s[0:1], %d", G.KA_WS)
    k("s_load_dwordx2 s[6:7], s[0:1], %d", G.KA_X)
    k("s_load_dwordx2 s[8:9], s[0:1], %d", G.KA_WO)
    k("s_load_dwordx4 s[12:15], s[0:1], %d", G.KA_WG)
    k("s_lshr_b32 s25, s2, 3")
    k("s_and_b32 s24, s2, 7")
    k("s_bfe_u32 s22, s2, 0x10002")
    k("s_and_b32 s23, s2, 3")
    k("v_mov_b32 v255, v0")
    k("v_lshrrev_b32 v1, 6, v0")
    k("v_and_b32 v0, 63, v0")
    k("v_readfirstlane_b32 s26, v1")
    VG, VI, VI4, VIM, VL16, VOOB = 1, 2, 3, 4, 5, 6
    k("v_lshrrev_b32 v%d, 4, v0", VG)
    k("v_and_b32 v%d, 15, v0", VI)
    k("v_bfe_u32 v%d, v0, 2, 2", VI4)
    k("v_and_b32 v%d, 3, v0", VIM)
    k("v_lshlrev_b32 v%d, 4, v0", VL16)
    k("v_mov_b32 v%d, 0x%x", VOOB, OOB)
    k("v_lshlrev_b32 v7, 2, v255")
    k("v_add_u32 v7, %d, v7", CSL)
    k("v_mov_b32 v8, 0")
    k("v_cmp_gt_u32 vcc, 144, v255")
    k("s_and_saveexec_b64 s[28:29], vcc")
    k("ds_write_b32 v7, v8")
    k("s_mov_b64 exec, s[28:29]")
    VK0, VK1 = 8, 9
    VM2 = 10
    k("v_mul_u32_u24 v16, 80, v%d", VI)
    k("v_lshl_add_u32 v%d, v%d, 4, v16", VK0, VG)
    k("v_add_u32 v16, 64, v16")
    k("v_cmp_eq_u32 s[30:31], 0, v%d", VG)
    k("v_cndmask_b32 v%d, v%d, v16, s[30:31]", VK1, VOOB)
    k("v_add_u32 v16, 16, v%d", VIM)
    k("v_min_u32 v16, 18, v16")
    k("v_mul_u32_u24 v16, 80, v16")
    k("v_lshl_add_u32 v17, v%d, 4, v16", VG)
    k("v_add_u32 v18, 64, v16")
    k("v_cndmask_b32 v18, v%d, v18, s[30:31]", VOOB)
    k("v_add_u32 v19, 1520, v17")
    k("v_add_u32 v20, 1520, v18")
    k("v_cmp_gt_u32 s[32:33], 2, v%d", VIM)
    k("v_cmp_eq_u32 s[34:35], 2, v%d", VIM)
    k("v_cmp_eq_u32 s[36:37], 3, v%d", VIM)
    for par in range(2):
        k("v_cmp_eq_u32 s[38:39], %d, v%d", 2 * par, VI4)
        k("v_cmp_eq_u32 s[40:41], %d, v%d", 2 * par + 1, VI4)
        k("s_and_b64 s[38:39], s[38:39], s[32:33]")
        k("s_and_b64 s[40:41], s[40:41], s[32:33]")
        k("s_or_b64 s[38:39], s[38:39], s[34:35]")
        k("s_or_b64 s[40:41], s[40:41], s[36:37]")
        b = VM2 + 3 * par
        k("v_cndmask_b32 v%d, v%d, v17, s[38:39]", b, VOOB)
        k("v_cndmask_b32 v21, v%d, v19, s[40:41]", VOOB)
        k("v_cndmask_b32 v%d, v21, v18, s[38:39]", b + 1)
        k("v_cndmask_b32 v%d, v%d, v20, s[40:41]", b + 2, VOOB)
    VPB = 16
    k("v_lshlrev_b32 v17, 3, v%d", VI)
    k("v_cndmask_b32 v%d, v%d, v17, s[30:31]", VPB, VOOB)
    k("v_and_b32 v17, 1, v%d", VG)
    k("v_cmp_eq_u32 s[42:43], 1, v17")
    VWD = 17
    k("s_mov_b32 s27, 0x%x", (1 << 32) // 9 + 1)
    for i in range(9):
        k("v_add_u32 v40, %d, v0", 64 * i)
        k("v_mul_hi_u32 v41, v40, s27")
        k("v_mul_u32_u24 v42, 9, v41")
        k("v_sub_u32 v42, v40, v42")
        k("v_mul_u32_u24 v41, 1152, v41")
        k("v_lshl_add_u32 v%d, v42, 4, v41", VWD + i)
    VPD = 26
    k("s_mov_b32 s27, 0x%x", (1 << 32) // 18 + 1)
    for i in range(9):
        k("v_add_u32 v40, %d, v0", 64 * i)
        k("v_mul_hi_u32 v41, v40, s27")
        k("v_mul_u32_u24 v42, 18, v41")
        k("v_sub_u32 v42, v40, v42")
        k("v_mul_u32_u24 v41, 9216, v41")
        k("v_lshl_add_u32 v%d, v42, 4, v41", VPD + i)
    VTB, VTB2 = 35, 36
    k("s_mul_i32 s27, s26, %d", WOW)
    k("v_lshl_add_u32 v40, v%d, 2, v%d", VG, VI4)
    k("v_mul_u32_u24 v40, 144, v40")
    k("v_lshl_add_u32 v40, v%d, 3, v40", VIM)
    k("v_add_u32 v%d, s27, v40", VTB)
    k("v_mul_u32_u24 v40, 18, v%d", VG)
    k("v_and_b32 v41, 1, v%d", VI4)
    k("v_lshrrev_b32 v42, 1, v%d", VI4)
    k("v_mul_u32_u24 v42, 72, v42")
    k("v_add3_u32 v40, v40, v41, v42")
    k("v_add_u32 v40, 16, v40")
    k("v_mul_u32_u24 v40, 144, v40")
    k("v_lshl_add_u32 v40, v%d, 3, v40", VIM)
    k("v_add_u32 v%d, s27, v40", VTB2)
    VXO, VXH = 37, 38
    k("v_mul_u32_u24 v40, 1152, v%d", VI)
    k("v_lshl_add_u32 v%d, v%d, 3, v40", VXO, VG)
    k("v_cmp_gt_u32 s[44:45], 32, v0")
    k("v_cndmask_b32 v%d, v%d, v%d, s[44:45]", VXH, VOOB, VXO)
    k("s_waitcnt lgkmcnt(0)")
    k.srd(64, 4, 5, G.SZ_KV, G.WS_KV)
    k.srd(68, 4, 5, G.SZ_PQA, G.WS_PQA)
    k.srd(72, 4, 5, G.SZ_PQB, G.WS_PQB)
    k.srd(76, 8, 9, G.D * G.D * 2)
    k.srd(80, 6, 7, G.SZ_H)
    k("s_cmp_eq_u32 s22, 0")
    k("s_cselect_b32 s84, s12, s14")
    k("s_cselect_b32 s85, s13, s15")
    k("s_mov_b32 s86, 0x%x", G.D * G.F * 2)
    k("s_mov_b32 s87, 0x20000")
    KVR = 48
    k("s_mul_i32 s28, s26, %d", 8 * 1520)
    for q in range(4):
        k("s_add_u32 s29, s28, %d", (2 * q) * 1520)
        k("s_add_u32 s46, s28, %d", (2 * q + 1) * 1520)
        b = KVR + q * 28
        m2 = VM2 + 3 * (q % 2)
        for n, (vo, so) in enumerate([(VK0, 29), (VK1, 29), (VK0, 46), (VK1, 46), (m2, 29), (m2 + 1, 29), (m2 + 2, 29)]):
            k.vmem(("KV", q), "buffer_load_dwordx4 %s, v%d, s[64:67], s%d offen", vr(b + 4 * n, 4), vo, so)
    k("v_mov_b32 v47, v255")
    PQ = 160
    k("s_lshl_b32 s28, s25, 6")
    k("s_lshl_b32 s29, s26, 2")
    k("s_add_u32 s28, s28, s29")
    k("s_lshl_b32 s29, s28, 10")
    k("s_lshl_b32 s28, s28, 7")
    for q in range(4):
        for t in range(4):
            b = PQ + (q * 4 + t) * 6
            k("s_add_u32 s46, s29, %d", (t * 16 + q) * 1024)
            k.vmem(("PQ", q), "buffer_load_dwordx4 %s, v%d, s[68:71], s46 offen", vr(b, 4), VL16)
            k("s_add_u32 s47, s28, %d", (t * 16 + q) * 128)
            k.vmem(("PQ", q), "buffer_load_dwordx2 %s, v%d, s[72:75], s47 offen", vr(b + 4, 2), VPB)
    k("s_mul_i32 s28, s26, %d", 144 * 1152)
    k("s_mul_i32 s29, s24, 144")
    k("s_add_u32 s28, s28, s29")
    for i in range(21):
        if i % 9 == 0:
            k("s_add_u32 s46, s28, %d", (i // 9) * 64 * 1152)
        k("s_add_u32 m0, s27, %d", i * 1024)
        k.vmem("WO", "buffer_load_dwordx4 v%d, s[76:79], s46 offen lds", VWD + i % 9)
    k("s_mul_i32 s28, s23, 144")
    k("s_mul_i32 s29, s26, 36")
    k("s_add_u32 s28, s28, s29")
    k("s_mul_i32 s28, s28, 9216")
    k("s_mul_i32 s29, s25, 288")
    k("s_add_u32 s28, s28, s29")
    k("s_mul_i32 s29, s26, %d", 36 * 288)
    for i in range(11):
        if i % 9 == 0:
            k("s_add_u32 s46, s28, %d", (i // 9) * 32 * 9216)
        k("s_add_u32 m0, s29, %d", PREP + i * 1024)
        k.vmem("PR", "buffer_load_dwordx4 v%d, s[84:87], s46 offen lds", VPD + i % 9)
    k("s_lshl_b32 s28, s25, 6")
    k("s_lshl_b32 s29, s26, 4")
    k("s_add_u32 s28, s28, s29")
    k("s_mul_i32 s28, s28, 1152")
    k("s_mul_i32 s29, s24, 144")
    k("s_add_u32 s48, s28, s29")
    VX = 18
    for mu in range(5):
        k.vmem("X", "buffer_load_dwordx2 %s, v%d, s[80:83], s48 offen offset:%d", vr(VX + 2 * mu, 2),
               VXO if mu < 4 else VXH, mu * 32)
    for q in range(4):
        b = KVR + q * 28
        k.wait_vm([("KV", q)])
        cv = lambda d, s: k("v_cvt_pk_bf16_f32 v%d, v%d, v%d", d, s, s + 1)
        cv(b + 0, b + 0); cv(b + 1, b + 2); cv(b + 2, b + 4); cv(b + 3, b + 6)
        cv(b + 6, b + 8); cv(b + 7, b + 10)
        k("v_mov_b32 v%d, 0", b + 4)
        k("v_mov_b32 v%d, 0", b + 5)
        cv(b + 8, b + 12); cv(b + 9, b + 14)
        cv(b + 12, b + 16); cv(b + 13, b + 18); cv(b + 14, b + 20); cv(b + 15, b + 22)
        cv(b + 16, b + 24); cv(b + 17, b + 26)
    DT = 28
    def dregs(n):
        r0 = KVR + (2 * n) * 28 + 20
        r1 = KVR + (2 * n + 1) * 28 + 20
        return r0, r0 + 4, r1
    LF = 40
    def lreg(t, j):
        return KVR + t * 28 + (10, 11, 18, 19)[j]
    it = 0
    for q in range(4):
        b = KVR + q * 28
        k.wait_vm([("PQ", q)])
        for t in range(4):
            p = PQ + (q * 4 + t) * 6
            d0, d1, d2 = dregs(it % 2)
            it += 1
            k("v_mfma_f32_16x16x32_bf16 %s, %s, %s, 0", vr(d2, 4), vr(b + 12, 4), vr(p, 4))
            k("v_mfma_f32_16x16x32_bf16 %s, %s, %s, 0", vr(d1, 4), vr(b + 4, 4), vr(p, 4))
            k("v_mfma_f32_16x16x32_bf16 %s, %s, %s, 0", vr(d0, 4), vr(b, 4), vr(p, 4))
            k("v_mfma_f32_16x16x16_bf16 %s, %s, %s, %s", vr(d2, 4), vr(b + 16, 2), vr(p + 4, 2), vr(d2, 4))
            k("v_mfma_f32_16x16x16_bf16 %s, %s, %s, %s", vr(d1, 4), vr(b + 8, 2), vr(p + 4, 2), vr(d1, 4))
            k("v_add_f32 v28, 0x%08x, v%d", G.f32bits(1e-6), d2 + 2)
            k("v_add_f32 v29, 0x%08x, v%d", G.f32bits(1e-6), d2 + 3)
            k("v_rcp_f32 v28, v28")
            k("v_rcp_f32 v29, v29")
            k("s_nop 0")
            k("v_cndmask_b32 v30, v28, v29, s[42:43]")
            for j in range(4):
                k("v_mul_f32 v%d, v%d, v28", d0 + j, d0 + j)
            for j in range(4):
                k("v_mul_f32 v%d, v%d, v29", d1 + j, d1 + j)
            l0, l1 = lreg(t, 2 * (q // 2)), lreg(t, 2 * (q // 2) + 1)
            if q % 2 == 0:
                k("v_mul_f32 v%d, v%d, v30", l0, d2)
                k("v_mul_f32 v%d, v%d, v30", l1, d2 + 1)
            else:
                k("v_fmac_f32 v%d, v%d, v30", l0, d2)
                k("v_fmac_f32 v%d, v%d, v30", l1, d2 + 1)
            k("v_cvt_pk_bf16_f32 v%d, v%d, v%d", p, d0, d0 + 1)
            k("v_cvt_pk_bf16_f32 v%d, v%d, v%d", p + 1, d0 + 2, d0 + 3)
            k("v_cvt_pk_bf16_f32 v%d, v%d, v%d", p + 2, d1, d1 + 1)
            k("v_cvt_pk_bf16_f32 v%d, v%d, v%d", p + 3, d1 + 2, d1 + 3)
    for t in range(4):
        p = PQ + t * 6 + 4
        k("v_cvt_pk_bf16_f32 v%d, v%d, v%d", p, lreg(t, 0), lreg(t, 1))
        k("v_cvt_pk_bf16_f32 v%d, v%d, v%d", p + 1, lreg(t, 2), lreg(t, 3))
    k.wait_vm(["WO"])
    WB = 48
    fr = []
    for mu in range(5):
        for kap in range(5):
            fr.append((mu, kap))
    NB = 6
    def rd(n):
        mu, kap = fr[n]
        b = WB + n * 4
        if kap < 4:
            k.lds(("W", n), "ds_read_b64_tr_b16 %s, v%d offset:%d", vr(b, 2), VTB, kap * 5184 + mu * 32)
            k.lds(("W", n), "ds_read_b64_tr_b16 %s, v%d offset:%d", vr(b + 2, 2), VTB, kap * 5184 + mu * 32 + 2592)
        else:
            k.lds(("W", n), "ds_read_b64_tr_b16 %s, v%d offset:%d", vr(b, 2), VTB2, mu * 32)
    nr = 0
    for n, (mu, kap) in enumerate(fr):
        while nr <= min(n + NB, len(fr) - 1):
            rd(nr)
            nr += 1
        k.wait_lg([("W", n)])
        b = WB + n * 4
        for t in range(4):
            a = ar((mu * 4 + t) * 4, 4)
            if kap < 4:
                k("v_mfma_f32_16x16x32_bf16 %s, %s, %s, %s", a, vr(b, 4), vr(PQ + (kap * 4 + t) * 6, 4), "0" if kap == 0 else a)
            else:
                k("v_mfma_f32_16x16x16_bf16 %s, %s, %s, %s", a, vr(b, 2), vr(PQ + t * 6 + 4, 2), a)
    for t in range(4):
        lab = k.newlabel("skipw")
        k("s_cmp_eq_u32 s26, %d", t)
        k("s_cbranch_scc1 %s", lab)
        k("s_sub_u32 s28, %d, s26", t + 3)
        k("s_and_b32 s28, s28, 3")
        k("s_mul_i32 s28, s28, 5120")
        k("s_add_u32 s28, s28, s27")
        k("v_add_u32 v28, s28, v%d", VL16)
        for mu in range(5):
            k("ds_write_b128 v28, %s offset:%d", ar((mu * 4 + t) * 4, 4), mu * 1024)
        k.label(lab)
    VS = 48
    done = k.newlabel("own_done")
    for t in range(4):
        lab = k.newlabel("own")
        k("s_cmp_lg_u32 s26, %d", t)
        k("s_cbranch_scc1 %s", lab)
        for mu in range(5):
            for j in range(4):
                k("v_accvgpr_read_b32 v%d, a%d", VS + mu * 4 + j, (mu * 4 + t) * 4 + j)
        k("s_branch %s", done)
        k.label(lab)
    k.label(done)
    k.wait_vm(["PR", "X"])
    k("s_waitcnt lgkmcnt(0)")
    k.lg.ops = []
    k("s_barrier")
    VR = 80
    for d in range(1, 4):
        k("s_add_u32 s28, s26, %d", d)
        k("s_and_b32 s28, s28, 3")
        k("s_mul_i32 s28, s28, %d", WOW)
        k("v_add_u32 v%d, s28, v%d", 28 + d, VL16)
        for mu in range(5):
            k("ds_read_b128 %s, v%d offset:%d", vr(VR + ((d - 1) * 5 + mu) * 4, 4), 28 + d, (3 - d) * 5120 + mu * 1024)
    for d in range(3):
        k("s_waitcnt lgkmcnt(%d)", 10 - 5 * d)
        for j in range(20):
            k("v_add_f32 v%d, v%d, v%d", VS + j, VS + j, VR + d * 20 + j)
    k.srd(64, 4, 5, G.SZ_H, G.WS_H)
    k.srd(68, 4, 5, G.SZ_H, G.WS_HF)
    k.srd(72, 4, 5, G.SZ_STAT, G.WS_STAT)
    k("s_mul_i32 s28, s24, 72")
    k("v_lshl_add_u32 v28, v%d, 2, s28", VG)
    k("v_lshrrev_b32 v29, 4, v28")
    k("v_bfe_u32 v30, v28, 3, 1")
    k("v_bfe_u32 v31, v28, 2, 1")
    k("v_lshlrev_b32 v29, 6, v29")
    k("v_lshl_add_u32 v29, v30, 5, v29")
    k("s_and_b32 s28, s26, 1")
    k("s_lshl_b32 s28, s28, 4")
    k("v_add3_u32 v29, v29, v%d, s28", VI)
    k("v_lshlrev_b32 v29, 4, v29")
    k("v_lshl_add_u32 v32, v31, 3, v29")
    k("v_cndmask_b32 v33, v%d, v32, s[44:45]", VOOB)
    k("s_lshl_b32 s28, s25, 1")
    k("s_lshr_b32 s29, s26, 1")
    k("s_add_u32 s28, s28, s29")
    k("s_mul_i32 s49, s28, 36864")
    k("s_add_u32 s50, s49, 4096")
    k("v_mov_b32 v34, 0")
    k("v_mov_b32 v39, 0")
    for mu in range(5):
        b = VS + mu * 4
        k("v_cvt_pk_bf16_f32 v40, v%d, v%d", b, b + 1)
        k("v_cvt_pk_bf16_f32 v41, v%d, v%d", b + 2, b + 3)
        k("v_lshlrev_b32 v%d, 16, v40", b)
        k("v_and_b32 v%d, 0xffff0000, v40", b + 1)
        k("v_lshlrev_b32 v%d, 16, v41", b + 2)
        k("v_and_b32 v%d, 0xffff0000, v41", b + 3)
        x = VX + mu * 2
        k("v_lshlrev_b32 v40, 16, v%d", x)
        k("v_and_b32 v41, 0xffff0000, v%d", x)
        k("v_lshlrev_b32 v42, 16, v%d", x + 1)
        k("v_and_b32 v43, 0xffff0000, v%d", x + 1)
        for j in range(4):
            k("v_add_f32 v%d, v%d, v%d", b + j, b + j, 40 + j)
        k("v_cvt_pk_bf16_f32 v%d, v%d, v%d", x, b, b + 1)
        k("v_cvt_pk_bf16_f32 v%d, v%d, v%d", x + 1, b + 2, b + 3)
        k("buffer_store_dwordx2 %s, v%d, s[64:67], s48 offen offset:%d", vr(x, 2), VXO if mu < 4 else VXH, mu * 32)
        k("buffer_store_dwordx2 %s, v%d, s[68:71], s%d offen offset:%d", vr(x, 2), 32 if mu < 4 else 33,
          49 if mu < 4 else 50, (mu % 4) * 1024)
        if mu == 4:
            k("v_cndmask_b32 v40, 0, v%d, s[44:45]", x)
            k("v_cndmask_b32 v41, 0, v%d, s[44:45]", x + 1)
            src = (40, 41)
        else:
            src = (x, x + 1)
        k("v_mov_b32 v42, 0x3f803f80")
        for sreg in src:
            k("v_dot2_f32_bf16 v34, v%d, v42, v34", sreg)
            k("v_dot2_f32_bf16 v39, v%d, v%d, v39", sreg, sreg)
    for xr in (16, 32):
        k("v_xor_b32 v40, %d, v0", xr)
        k("v_lshlrev_b32 v40, 2, v40")
        k("ds_bpermute_b32 v41, v40, v34")
        k("ds_bpermute_b32 v42, v40, v39")
        k("s_waitcnt lgkmcnt(0)")
        k("v_add_f32 v34, v34, v41")
        k("v_add_f32 v39, v39, v42")
    k("v_mov_b32 v35, v39")
    k("s_lshl_b32 s28, s24, 14")
    k("s_lshl_b32 s29, s25, 9")
    k("s_add_u32 s28, s28, s29")
    k("s_lshl_b32 s29, s26, 7")
    k("s_add_u32 s28, s28, s29")
    k("buffer_store_dwordx2 v[34:35], v%d, s[72:75], s28 offen", VPB)
    k.srd(64, 4, 5, G.SZ_WF, G.WS_WF)
    k.srd(68, 4, 5, G.SZ_CS, G.WS_CS)
    k("v_lshrrev_b32 v40, 1, v%d", VG)
    k("v_and_b32 v41, 1, v%d", VG)
    k("s_lshl_b32 s28, s26, 1")
    k("v_add_u32 v40, s28, v40")
    k("v_lshl_add_u32 v42, v41, 3, v%d", VI4)
    k("v_mul_u32_u24 v42, 288, v42")
    k("v_lshl_add_u32 v42, v%d, 3, v42", VIM)
    k("v_add_u32 v42, %d, v42", PREP)
    k("s_lshl_b32 s28, s22, 4")
    k("v_lshl_add_u32 v43, v41, 5, v%d", VI)
    k("v_add_u32 v43, s28, v43")
    k("v_lshlrev_b32 v43, 4, v43")
    k("s_mul_i32 s28, s25, 324")
    k("s_mul_i32 s29, s23, 9")
    k("s_add_u32 s28, s28, s29")
    k("s_lshl_b32 s51, s28, 10")
    k("v_lshlrev_b32 v44, 2, v%d", VI)
    k("v_add_u32 v44, %d, v44", CSL)
    k("v_mov_b32 v45, 0x3f803f80")
    k("s_mov_b32 s52, 0x%x", (1 << 32) // 9 + 1)
    PB = 48
    for it in range(11):
        b = PB + it * 8
        k("v_add_u32 v46, %d, v40", it * 8)
        k("v_min_u32 v%d, 80, v46", b + 4)
        k("v_mul_hi_u32 v%d, v%d, s52", b + 5, b + 4)
        k("v_mul_u32_u24 v%d, 9, v%d", b + 6, b + 5)
        k("v_sub_u32 v%d, v%d, v%d", b + 6, b + 4, b + 6)
        k("v_mul_u32_u24 v%d, %d, v%d", b + 4, 16 * 288, b + 5)
        k("v_lshl_add_u32 v%d, v%d, 5, v%d", b + 4, b + 6, b + 4)
        k("v_add_u32 v%d, v%d, v42", b + 4, b + 4)
        k("ds_read_b64_tr_b16 %s, v%d", vr(b, 2), b + 4)
        k("ds_read_b64_tr_b16 %s, v%d offset:1152", vr(b + 2, 2), b + 4)
        k("v_mul_u32_u24 v%d, 36, v%d", b + 7, b + 6)
        k("v_add_u32 v%d, v%d, v%d", b + 7, b + 7, b + 5)
        k("v_lshl_add_u32 v%d, v%d, 10, v43", b + 7, b + 7)
        k("v_lshl_add_u32 v%d, v%d, 6, v44", b + 6, b + 6)
        if it == 10:
            k("v_cmp_gt_u32 vcc, 81, v46")
            k("v_cndmask_b32 v%d, v%d, v%d, vcc", b + 7, VOOB, b + 7)
    for it in range(11):
        b = PB + it * 8
        k("s_waitcnt lgkmcnt(%d)", min(15, 2 * (10 - it) + it))
        k("buffer_store_dwordx4 %s, v%d, s[64:67], s51 offen", vr(b, 4), b + 7)
        k("v_dot2_f32_bf16 v%d, v%d, v45, 0", b + 5, b)
        k("v_dot2_f32_bf16 v%d, v%d, v45, v%d", b + 5, b + 1, b + 5)
        k("v_dot2_f32_bf16 v%d, v%d, v45, v%d", b + 5, b + 2, b + 5)
        k("v_dot2_f32_bf16 v%d, v%d, v45, v%d", b + 5, b + 3, b + 5)
        if it == 10:
            k("v_cndmask_b32 v%d, 0, v%d, vcc", b + 5, b + 5)
        k("ds_add_f32 v%d, v%d", b + 6, b + 5)
    k("s_waitcnt lgkmcnt(0)")
    k("s_barrier")
    k("v_cmp_gt_u32 vcc, 144, v47")
    k("s_and_saveexec_b64 s[28:29], vcc")
    k("s_cbranch_execz %s", end)
    k("v_lshlrev_b32 v40, 2, v47")
    k("v_add_u32 v40, %d, v40", CSL)
    k("ds_read_b32 v41, v40")
    k("v_lshrrev_b32 v42, 4, v47")
    k("v_and_b32 v43, 15, v47")
    k("s_lshl_b32 s30, s22, 4")
    k("v_add_u32 v43, s30, v43")
    k("v_lshrrev_b32 v44, 3, v43")
    k("v_bfe_u32 v45, v43, 2, 1")
    k("v_and_b32 v43, 3, v43")
    k("v_lshl_add_u32 v43, v44, 2, v43")
    k("v_lshl_add_u32 v43, v45, 4, v43")
    k("v_lshl_add_u32 v43, v42, 5, v43")
    k("v_lshlrev_b32 v43, 2, v43")
    k("s_mul_i32 s30, s25, %d", 9 * 128)
    k("s_waitcnt lgkmcnt(0)")
    k("buffer_atomic_add_f32 v41, v43, s[68:71], s30 offen")
    k.label(end)
    k("s_endpgm")
    return k.finish(256, 80, 102), "k2_kernel grid=(256,1,1) block=(256,1,1) lds=%d" % LDS_TOTAL
```

```python
from asmfw import K, vr, ar, sr
import gen as G

SLOT = 36864
CSOFF = 4 * SLOT


def gen():
    k = K("k3_kernel")
    end = G.prologue_exit(k, 256, 1, (238, 239), 6)
    k("s_load_dwordx2 s[4:5], s[0:1], %d", G.KA_WS)
    k("s_and_b32 s20, s2, 7")
    k("s_lshr_b32 s21, s2, 3")
    k("s_and_b32 s21, s21, 3")
    k("s_lshl_b32 s21, s21, 3")
    k("s_add_u32 s24, s20, s21")
    k("s_lshr_b32 s25, s2, 5")
    k("v_lshrrev_b32 v1, 6, v0")
    k("v_and_b32 v0, 63, v0")
    k("v_readfirstlane_b32 s26, v1")
    VL16, VST, VNM, VC1, VRS2, VCSA, VSB = 1, 2, 4, 6, 8, 10, 11
    VSTAT = 15
    k("v_lshlrev_b32 v%d, 4, v0", VL16)
    for sl in range(4):
        k("v_add_u32 v%d, %d, v%d", VSB + sl, sl * SLOT, VL16)
    k("v_bfe_u32 v16, v0, 4, 1")
    k("v_lshrrev_b32 v17, 5, v0")
    k("v_and_b32 v18, 15, v0")
    k("v_mul_u32_u24 v16, 147456, v16")
    k("v_lshl_add_u32 v16, v17, 8, v16")
    k("v_lshl_add_u32 v%d, v18, 4, v16", VST)
    k("v_lshlrev_b32 v16, 6, v17")
    k("v_add_u32 v%d, %d, v16", VCSA, CSOFF)
    k("v_and_b32 v16, 31, v0")
    k("v_lshlrev_b32 v%d, 3, v16", VSTAT)
    k("s_waitcnt lgkmcnt(0)")
    k.srd(8, 4, 5, G.SZ_H, G.WS_HF)
    k.srd(12, 4, 5, G.SZ_WF, G.WS_WF)
    k.srd(16, 4, 5, G.SZ_ACT, G.WS_ACT)
    k.srd(40, 4, 5, G.SZ_STAT, G.WS_STAT)
    k.srd(44, 4, 5, G.SZ_CS, G.WS_CS)
    G.stamp(k)
    G.stamp(k, True)
    k("s_lshl_b32 s28, s25, 3")
    k("s_lshl_b32 s29, s26, 1")
    k("s_add_u32 s28, s28, s29")
    k("s_mul_i32 s30, s28, 36864")
    k("s_mul_i32 s31, s24, %d", 9 * SLOT)
    k("s_lshl_b32 s29, s26, 10")
    k("s_add_u32 s31, s31, s29")
    k("s_mov_b32 s32, s29")
    k("s_lshl_b32 s28, s25, 4")
    k("s_lshl_b32 s33, s26, 2")
    k("s_add_u32 s28, s28, s33")
    k("s_mul_i32 s33, s28, 147456")
    k("s_mul_i32 s28, s24, 4608")
    k("s_add_u32 s33, s33, s28")
    k("s_lshl_b32 s34, s25, 11")
    k("s_lshl_b32 s28, s26, 9")
    k("s_add_u32 s34, s34, s28")
    k("s_mul_i32 s35, s24, 1152")
    k("s_add_u32 s35, s35, s32")

    VAO = 16
    ACC = 48
    VW = 176
    NWB = 8
    VCS = 208
    VT = 224

    def afrag(t, s):
        if s < 32:
            return ar((s * 2 + t) * 4, 4)
        return vr(VAO + ((s - 32) * 2 + t) * 4, 4)

    GP = 3
    steps = [(c, s) for s in range(36) for c in range(GP)] + [(c, s) for c in range(GP, 9) for s in range(36)]
    NS = len(steps)
    tstep = {cs: i for i, cs in enumerate(steps)}
    AH = 5
    bars = sorted(set([0] + [12 * g + 6 for g in range(9)] + [108 + 36 * i + o for i in range(6) for o in (6, 24)]))
    bars = [b for b in bars if b < NS - AH]

    def last_read_step(c, g):
        return max(tstep[(c, s)] for s in range(4 * g, 4 * g + 4))

    ops = []
    sreg_rr = [0]

    def mk_dma(c, g):
        def f():
            sreg = 48 + sreg_rr[0] % 4
            sreg_rr[0] += 1
            k("s_add_u32 s%d, s31, %d", sreg, c * SLOT + g * 4096)
            k("s_add_u32 m0, s32, %d", (c % 4) * SLOT + g * 4096)
            k.vmem(("D", c, g), "buffer_load_dwordx4 v%d, s[12:15], s%d offen lds", VL16, sreg)
        if c >= 4:
            lr = last_read_step(c - 4, g)
            eb = min(b for b in bars if b > lr)
        else:
            eb = -1
        return (f, eb)

    def mk_a(t, s):
        def f():
            sreg = 48 + sreg_rr[0] % 4
            sreg_rr[0] += 1
            k("s_add_u32 s%d, s30, %d", sreg, t * 36864 + s * 1024)
            k.vmem(("A", s), "buffer_load_dwordx4 %s, v%d, s[8:11], s%d offen", afrag(t, s), VL16, sreg)
        return (f, -1)

    def mk_stat(t, p):
        def f():
            sreg = 48 + sreg_rr[0] % 4
            sreg_rr[0] += 1
            k("s_add_u32 s%d, s34, %d", sreg, p * 16384 + t * 256)
            k.vmem("S", "buffer_load_dwordx2 %s, v%d, s[40:43], s%d offen", vr(ACC + 96 + (t * 8 + p) * 2, 2), VSTAT, sreg)
        return (f, -1)

    def mk_cs():
        def f():
            lab = k.newlabel("nocs")
            k("s_cmp_ge_u32 s26, 2")
            k("s_cbranch_scc1 %s", lab)
            k("s_add_u32 m0, s32, %d", CSOFF)
            k("buffer_load_dwordx4 v%d, s[44:47], s35 offen lds", VL16)
            k.label(lab)
            k.vm.issue("CS")
        return (f, -1)

    for g in range(9):
        for s in range(4 * g, 4 * g + 4):
            ops.append(mk_a(0, s))
            ops.append(mk_a(1, s))
            if s % 4 < GP:
                ops.append(mk_dma(s % 4, g))
        if g == 3:
            for t in range(2):
                for p in range(8):
                    ops.append(mk_stat(t, p))
    for c in range(GP, 9):
        for g in range(9):
            ops.append(mk_dma(c, g))

    lab = k.newlabel("nocs")
    k("s_cmp_ge_u32 s26, 2")
    k("s_cbranch_scc1 %s", lab)
    k("s_add_u32 m0, s32, %d", CSOFF)
    k("buffer_load_dwordx4 v%d, s[44:47], s35 offen lds", VL16)
    k.label(lab)

    side = []

    def S(cost, fmt, *a):
        side.append((cost, lambda: k(fmt, *a)))

    def stats_block():
        base = ACC + 96
        side.append((4, lambda: k.wait_vm(["S"])))
        for t in range(2):
            b = base + t * 16
            for p in range(1, 8):
                S(4, "v_add_f32 v%d, v%d, v%d", b, b, b + 2 * p)
                S(4, "v_add_f32 v%d, v%d, v%d", b + 1, b + 1, b + 2 * p + 1)
            S(4, "v_mul_f32 v%d, 0x%08x, v%d", b, G.f32bits(1.0 / 576), b)
            S(4, "v_mul_f32 v%d, 0x%08x, v%d", b + 1, G.f32bits(1.0 / 576), b + 1)
            S(4, "v_fma_f32 v%d, -v%d, v%d, v%d", b + 1, b, b, b + 1)
            S(4, "v_max_f32 v%d, 0, v%d", b + 1, b + 1)
            S(4, "v_cvt_pk_bf16_f32 v%d, v%d, v%d", b + 2, b, b + 1)
            S(4, "v_lshlrev_b32 v%d, 16, v%d", b, b + 2)
            S(4, "v_and_b32 v%d, 0xffff0000, v%d", b + 1, b + 2)
            S(4, "v_add_f32 v%d, 0x%08x, v%d", b + 1, G.f32bits(1e-5), b + 1)
            S(4, "v_cvt_pk_bf16_f32 v%d, v%d, v%d", b + 2, b + 1, b + 1)
            S(4, "v_lshlrev_b32 v%d, 16, v%d", b + 1, b + 2)
            S(8, "v_sqrt_f32 v%d, v%d", b + 1, b + 1)
            S(4, "v_sub_f32 v%d, 0, v%d", VNM + t, b)
            S(4, "v_cvt_pk_bf16_f32 v%d, v%d, v%d", b + 2, b + 1, b + 1)
            S(4, "v_lshlrev_b32 v%d, 16, v%d", b + 1, b + 2)
            S(8, "v_rcp_f32 v%d, v%d", b + 1, b + 1)
            S(4, "s_nop 0")
            S(4, "v_mul_f32 v%d, 0x%08x, v%d", VC1 + t, G.f32bits(-1.4426950408889634), b + 1)
            S(4, "v_mul_f32 v%d, v%d, v%d", VRS2 + t, b + 1, b + 1)

    def epilogue(c):
        a0 = ACC + (c % 4) * 32
        for q in range(4):
            side.append((4, lambda q=q: k.lds(("C", c), "ds_read_b128 %s, v%d offset:%d", vr(VCS + 4 * q, 4), VCSA,
                                              c * 128 + q * 16)))
        side.append((4, lambda: k.wait_lg([("C", c)])))
        for t in range(2):
            a = a0 + 16 * t
            for h in range(2):
                rs = range(4 * h, 4 * h + 4)
                for r in rs:
                    S(4, "v_fma_f32 v%d, v%d, v%d, v%d", a + r, VCS + r, VNM + t, a + r)
                for r in rs:
                    S(4, "v_mul_f32 v%d, v%d, v%d", VT + r, a + r, VC1 + t)
                for r in rs:
                    S(4, "v_fma_f32 v%d, v%d, v%d, v%d", a + 8 + r, VCS + 8 + r, VNM + t, a + 8 + r)
                for r in rs:
                    S(8, "v_exp_f32 v%d, v%d", VT + r, VT + r)
                for r in rs:
                    S(4, "v_mul_f32 v%d, v%d, v%d", a + r, a + r, a + 8 + r)
                for r in rs:
                    S(4, "v_add_f32 v%d, 1.0, v%d", VT + r, VT + r)
                for r in rs:
                    S(8, "v_rcp_f32 v%d, v%d", VT + r, VT + r)
                for r in rs:
                    S(4, "v_mul_f32 v%d, v%d, v%d", a + r, a + r, VRS2 + t)
                for r in rs:
                    S(4, "v_mul_f32 v%d, v%d, v%d", a + r, a + r, VT + r)
            o = VT + 8 + 4 * t
            for q in range(4):
                S(4, "v_cvt_pk_bf16_f32 v%d, v%d, v%d", o + q, a + 2 * q, a + 2 * q + 1)

            def st(t=t, o=o):
                k("s_add_u32 s%d, s33, %d", 52 + t, 2 * t * 147456 + c * 512)
                k.vmem(("O", c), "buffer_store_dwordx4 %s, v%d, s[16:19], s%d offen" + G.STMOD, vr(o, 4), VST, 52 + t)
            side.append((8, st))

    issued = set()
    oi = 0

    def do_op():
        nonlocal oi
        ops[oi][0]()
        issued.add(k.vm.ops[-1])
        oi += 1

    def nstores_pending():
        return sum(1 for (cst, f) in side if getattr(f, "__name__", "") == "st")

    PRO = 36
    while oi < PRO:
        do_op()
    nread = 0
    visible = set()
    cur_bar = -1
    ep_done = 0
    stats_added = False
    for T, (c, s) in enumerate(steps):
        if T in bars:
            nb = min([b for b in bars if b > T] + [NS])
            need = set()
            for T2 in range(nread, min(nb + AH, NS)):
                c2, s2 = steps[T2]
                if (c2, s2 // 4) not in visible:
                    need.add((c2, s2 // 4))
            guard = 0
            for u in sorted(need):
                while ("D",) + u not in issued:
                    assert ops[oi][1] <= cur_bar, ("WAR", u, ops[oi][1], T)
                    do_op()
                    guard += 1
            if guard:
                print("k3: forced %d early loads at step %d" % (guard, T))
            k.wait_vm([("D",) + u for u in need])
            k("s_barrier")
            visible |= need
            cur_bar = T
            if T in (0, 102, 114, 222):
                G.stamp(k)
        while nread <= min(T + AH, NS - 1) and (steps[nread][0], steps[nread][1] // 4) in visible:
            c2, s2 = steps[nread]
            k.lds(("W", nread), "ds_read_b128 %s, v%d offset:%d", vr(VW + (nread % NWB) * 4, 4), VSB + c2 % 4, s2 * 1024)
            nread += 1
        assert nread > T
        if T < 108 and c == 0:
            assert ("A", s) in issued
            k.wait_vm([("A", s)])
        k.wait_lg([("W", T)])
        if T == 60 and not stats_added:
            stats_block()
            stats_added = True
        if T >= 110:
            while ep_done < 9 and tstep[(ep_done, 35)] + 2 <= T and (len(side) < 40):
                epilogue(ep_done)
                ep_done += 1
        if s == 0 and c >= 3:
            if c == 3:
                while side:
                    side.pop(0)[1]()
            else:
                assert ep_done > c - 4, (c, ep_done)
                queued_after = ep_done - 1 - (c - 4)
                nf = 0
                while side and (nstores_pending() + 1) // 2 > queued_after:
                    side.pop(0)[1]()
                    nf += 1
                if nf:
                    print("k3: flushed %d side ops before chunk %d" % (nf, c))
        w = vr(VW + (T % NWB) * 4, 4)
        for t in range(2):
            a = ACC + (c % 4) * 32 + 16 * t
            cc = "0" if s == 0 else vr(a, 16)
            k("v_mfma_f32_32x32x16_bf16 %s, %s, %s, %s", vr(a, 16), w, afrag(t, s), cc)
            budget = 20 if t == 0 else 16
            if t == 0 and oi < len(ops) and ops[oi][1] <= cur_bar:
                do_op()
                budget -= 8
            while side and budget >= side[0][0]:
                cst, f = side.pop(0)
                f()
                budget -= cst
    G.stamp(k)
    while ep_done < 9:
        epilogue(ep_done)
        ep_done += 1
    while side:
        side.pop(0)[1]()
    assert oi == len(ops)
    if G.STAMP:
        k("s_waitcnt vmcnt(0)")
        G.stamp(k)
        G.stamp(k, True)
        G.stamp_dump(k, 4, 5, 26)
    k.label(end)
    k("s_endpgm")
    return k.finish(240, 256, 102), "k3_kernel grid=(256,1,1) block=(256,1,1) lds=%d" % (CSOFF + 2048)
```

```python
from asmfw import K, vr, ar, sr
import gen as G


def gen():
    k = K("k4_kernel")
    end = G.prologue_exit(k, 256)
    k("s_load_dwordx2 s[4:5], s[0:1], %d", G.KA_WS)
    k("s_load_dwordx2 s[6:7], s[0:1], %d", G.KA_OUT)
    k("s_and_b32 s20, s2, 7")
    k("s_lshr_b32 s21, s2, 3")
    k("s_and_b32 s24, s21, 7")
    k("s_lshr_b32 s25, s21, 3")
    k("s_lshl_b32 s20, s20, 2")
    k("s_add_u32 s25, s25, s20")
    k("v_lshrrev_b32 v1, 6, v0")
    k("v_and_b32 v0, 63, v0")
    k("v_readfirstlane_b32 s26, v1")
    VL16 = 2
    VHALF = 3
    k("v_lshlrev_b32 v%d, 4, v0", VL16)
    k("v_lshrrev_b32 v4, 4, v0")
    k("v_and_b32 v5, 15, v0")
    k("v_lshl_add_u32 v4, v4, 3, v5")
    k("v_lshlrev_b32 v4, 4, v4")
    k("v_mov_b32 v6, 0x7f000000")
    k("v_cmp_gt_u32 vcc, 8, v5")
    k("v_cndmask_b32 v%d, v6, v4, vcc", VHALF)
    k("s_waitcnt lgkmcnt(0)")
    k.srd(8, 4, 5, G.SZ_ACT, G.WS_ACT)
    k.srd(12, 4, 5, G.SZ_WDF, G.WS_WDF)
    k.srd(44, 4, 5, G.SZ_H, G.WS_H)
    k.srd(48, 6, 7, G.SZ_H)
    G.stamp(k)
    G.stamp(k, True)
    k("s_mul_i32 s28, s25, %d", 4 * 144)
    k("s_mul_i32 s29, s26, 36")
    k("s_add_u32 s30, s28, s29")
    k("s_lshl_b32 s30, s30, 10")
    k("s_mul_i32 s31, s24, 144")
    k("s_add_u32 s31, s31, s29")
    k("s_mul_i32 s31, s31, 4608")

    NSET = 6
    PF = 5
    NK = 36
    VB = 16

    def wreg(ks, mu):
        return VB + (ks % NSET) * 36 + mu * 4

    def areg(ks, t):
        return VB + (ks % NSET) * 36 + 20 + t * 4

    def load_ops(ks):
        if ks >= NK:
            return []
        a, w = [], []
        sa = 32 + (ks % 2) * 4
        for t in range(4):
            def f(t=t):
                k("s_add_u32 s%d, s30, %d", sa + t, (t * 144 + ks) * 1024)
                k.vmem(("L", ks), "buffer_load_dwordx4 %s, v%d, s[8:11], s%d offen", vr(areg(ks, t), 4), VL16, sa + t)
            a.append(f)
        for mu in range(5):
            def f(mu=mu):
                sw = 52 + (ks % 2) * 2 + mu // 4
                if mu % 4 == 0:
                    k("s_add_u32 s%d, s31, %d", sw, ks * 4608 + (mu // 4) * 4096)
                k.vmem(("L", ks), "buffer_load_dwordx4 %s, v%d, s[12:15], s%d offen offset:%d",
                       vr(wreg(ks, mu), 4), VL16 if mu < 4 else VHALF, sw, (mu % 4) * 1024)
            w.append(f)
        return [a[0], w[0], a[1], a[2], a[3]] + w[1:]

    for ks in range(PF):
        for f in load_ops(ks):
            f()
    for ks in range(NK):
        pend = load_ops(ks + PF)
        k.wait_vm([("L", ks)])
        n = 0
        for mu in range(5):
            for t in range(4):
                a = (mu * 4 + t) * 4
                c = "0" if ks == 0 else ar(a, 4)
                k("v_mfma_f32_16x16x32_bf16 %s, %s, %s, %s", ar(a, 4), vr(wreg(ks, mu), 4), vr(areg(ks, t), 4), c)
                n += 1
                if pend and n % 2 == 0:
                    pend.pop(0)()
        for f in pend:
            f()
        if ks in (0, 17):
            G.stamp(k)
        if ks == NK - PF:
            VHO = 5
            k("v_and_b32 v6, 15, v0")
            k("v_lshrrev_b32 v7, 4, v0")
            k("v_mul_u32_u24 v6, 1152, v6")
            k("v_lshl_add_u32 v%d, v7, 3, v6", VHO)
            k("v_mov_b32 v6, 0x7f000000")
            k("v_cmp_gt_u32 vcc, 32, v0")
            k("v_cndmask_b32 v4, v6, v%d, vcc", VHO)
            k("s_lshl_b32 s28, s25, 6")
            k("s_lshl_b32 s29, s26, 4")
            k("s_add_u32 s28, s28, s29")
            k("s_mul_i32 s28, s28, 1152")
            k("s_mul_i32 s29, s24, 144")
            k("s_add_u32 s40, s28, s29")
            VH = 6
            for mu in range(5):
                k.vmem("H", "buffer_load_dwordx2 %s, v%d, s[44:47], s40 offen offset:%d", vr(VH + mu * 2, 2),
                       VHO if mu < 4 else 4, mu * 32)
    G.stamp(k)
    for t in range(4):
        lab = k.newlabel("skipw")
        k("s_cmp_eq_u32 s26, %d", t)
        k("s_cbranch_scc1 %s", lab)
        k("s_sub_u32 s28, s26, %d", t + 1)
        k("s_and_b32 s28, s28, 3")
        k("s_add_u32 s28, s28, %d", t * 3)
        k("s_mul_i32 s28, s28, 5120")
        k("v_add_u32 v1, s28, v%d", VL16)
        for mu in range(5):
            k("ds_write_b128 v1, %s offset:%d", ar((mu * 4 + t) * 4, 4), mu * 1024)
        k.label(lab)
    VS = 40
    done = k.newlabel("own_done")
    for t in range(4):
        lab = k.newlabel("own")
        k("s_cmp_lg_u32 s26, %d", t)
        k("s_cbranch_scc1 %s", lab)
        for mu in range(5):
            for j in range(4):
                k("v_accvgpr_read_b32 v%d, a%d", VS + mu * 4 + j, (mu * 4 + t) * 4 + j)
        k("s_branch %s", done)
        k.label(lab)
    k.label(done)
    k("s_mul_i32 s28, s26, %d", 3 * 5120)
    k("v_add_u32 v1, s28, v%d", VL16)
    k("s_waitcnt lgkmcnt(0)")
    k("s_barrier")
    VR = 80
    for sl in range(3):
        for mu in range(5):
            k("ds_read_b128 %s, v1 offset:%d", vr(VR + (sl * 5 + mu) * 4, 4), sl * 5120 + mu * 1024)
    for sl in range(3):
        k("s_waitcnt lgkmcnt(%d)", 10 - 5 * sl)
        for j in range(20):
            k("v_add_f32 v%d, v%d, v%d", VS + j, VS + j, VR + sl * 20 + j)
    G.stamp(k)
    k("s_waitcnt vmcnt(0)")
    for mu in range(5):
        b = VS + mu * 4
        k("v_cvt_pk_bf16_f32 v60, v%d, v%d", b, b + 1)
        k("v_cvt_pk_bf16_f32 v61, v%d, v%d", b + 2, b + 3)
        k("v_lshlrev_b32 v%d, 16, v60", b)
        k("v_and_b32 v%d, 0xffff0000, v60", b + 1)
        k("v_lshlrev_b32 v%d, 16, v61", b + 2)
        k("v_and_b32 v%d, 0xffff0000, v61", b + 3)
        h = VH + mu * 2
        k("v_lshlrev_b32 v60, 16, v%d", h)
        k("v_and_b32 v61, 0xffff0000, v%d", h)
        k("v_lshlrev_b32 v62, 16, v%d", h + 1)
        k("v_and_b32 v63, 0xffff0000, v%d", h + 1)
        for j in range(4):
            k("v_add_f32 v%d, v%d, v%d", b + j, b + j, 60 + j)
        k("v_cvt_pk_bf16_f32 v%d, v%d, v%d", h, b, b + 1)
        k("v_cvt_pk_bf16_f32 v%d, v%d, v%d", h + 1, b + 2, b + 3)
        k("buffer_store_dwordx2 %s, v%d, s[48:51], s40 offen offset:%d", vr(h, 2), VHO if mu < 4 else 4, mu * 32)
    if G.STAMP:
        k("s_waitcnt vmcnt(0)")
        G.stamp(k)
        G.stamp(k, True)
        G.stamp_dump(k, 4, 5, 26)
    k.label(end)
    k("s_endpgm")
    return k.finish(16 + NSET * 36, 80, 102), "k4_kernel grid=(256,1,1) block=(256,1,1) lds=%d" % (61440)
```

```python
import sys
from asmfw import K, vr, ar, sr

S, D, F = 2048, 576, 4608
WS_KV = 0x000000
WS_CS = 0x010000
WS_STAT = 0x020000
WS_PQA = 0x040000
WS_PQB = 0x240000
WS_H = 0x280000
WS_HF = 0x4C0000
WS_WF = 0x700000
WS_ACT = 0x1200000
WS_PART = 0x2400000
WS_WDF = 0x2400000
WS_XCH = 0x2A00000
WS_FLAG = 0x3000000
SZ_WDF = 4 * 144 * 9216
SZ_XCH = 128 * 4 * 9216
SZ_FLAG = 4096
SZ_KV = 32 * 19 * 20 * 4
SZ_CS = 288 * 32 * 4
SZ_STAT = 8 * 2048 * 2 * 4
SZ_PQA = 128 * 16 * 1024
SZ_PQB = 128 * 16 * 128
SZ_H = S * D * 2
SZ_WF = 288 * 36 * 1024
SZ_ACT = 128 * 144 * 1024
SZ_PART = 4 * S * D * 4

KA_X, KA_WQKV, KA_WO, KA_BX, KA_WG, KA_WU, KA_WD, KA_OUT, KA_DBG, KA_WS = [8 * i for i in range(10)]


import struct


def f32bits(x):
    return struct.unpack("<I", struct.pack("<f", x))[0]


STAMP = False
OPT = set()
WS_DBG = 0x3600000


def stamp(k, real=False):
    if not STAMP:
        return
    n = getattr(k, "nstamp", 0)
    sb = getattr(k, "sbase", 60)
    k("%s s[%d:%d]", "s_memrealtime" if real else "s_memtime", sb + 2 * n, sb + 1 + 2 * n)
    k("s_waitcnt lgkmcnt(0)")
    k.lg.ops = []
    k.nstamp = n + 1


def stamp_dump(k, ws_lo, ws_hi, swave):
    if not STAMP:
        return
    n = k.nstamp
    k.srd(56, ws_lo, ws_hi, 0x100000, WS_DBG)
    k("s_lshl_b32 s55, s2, 4")
    k("s_add_u32 s55, s55, s%d", swave)
    k("s_lshl_b32 s55, s55, 7")
    k("v_mov_b32 v1, 0")
    for i in range(n):
        k("v_mov_b32 v2, s%d", getattr(k, "sbase", 60) + 2 * i)
        k("buffer_store_dword v2, v1, s[56:59], s55 offen offset:%d", 4 * i)


def prologue_exit(k, nwg):
    end = k.name + "_end"
    k("s_cmp_ge_u32 s2, %d", nwg)
    k("s_cbranch_scc1 %s", end)
    return end


def gen_k5():
    k = K("k5_kernel")
    end = prologue_exit(k, 576)
    k("s_load_dwordx2 s[4:5], s[0:1], %d", KA_WS)
    k("s_load_dwordx2 s[6:7], s[0:1], %d", KA_OUT)
    k("s_lshl_b32 s3, s2, 8")
    k("v_add_u32 v1, s3, v0")
    k("v_lshlrev_b32 v2, 5, v1")
    k("v_lshlrev_b32 v3, 4, v1")
    k("s_waitcnt lgkmcnt(0)")
    k.srd(8, 4, 5, SZ_PART, WS_PART)
    k.srd(12, 4, 5, SZ_H, WS_H)
    k.srd(16, 6, 7, SZ_H)
    k("s_mov_b32 s20, %d", S * D * 4)
    k("s_mov_b32 s21, %d", 2 * S * D * 4)
    k("s_mov_b32 s22, %d", 3 * S * D * 4)
    k("buffer_load_dwordx4 v[4:7], v2, s[8:11], 0 offen")
    k("buffer_load_dwordx4 v[8:11], v2, s[8:11], 0 offen offset:16")
    k("buffer_load_dwordx4 v[12:15], v2, s[8:11], s20 offen")
    k("buffer_load_dwordx4 v[16:19], v2, s[8:11], s20 offen offset:16")
    k("buffer_load_dwordx4 v[20:23], v2, s[8:11], s21 offen")
    k("buffer_load_dwordx4 v[24:27], v2, s[8:11], s21 offen offset:16")
    k("buffer_load_dwordx4 v[28:31], v2, s[8:11], s22 offen")
    k("buffer_load_dwordx4 v[32:35], v2, s[8:11], s22 offen offset:16")
    k("buffer_load_dwordx4 v[36:39], v3, s[12:15], 0 offen")
    k("s_waitcnt vmcnt(5)")
    for j in range(8):
        k("v_add_f32 v%d, v%d, v%d", 4 + j, 4 + j, 12 + j)
    k("s_waitcnt vmcnt(1)")
    for j in range(8):
        k("v_add_f32 v%d, v%d, v%d", 20 + j, 20 + j, 28 + j)
    for j in range(8):
        k("v_add_f32 v%d, v%d, v%d", 4 + j, 4 + j, 20 + j)
    for j in range(4):
        k("v_cvt_pk_bf16_f32 v%d, v%d, v%d", 12 + j, 4 + 2 * j, 5 + 2 * j)
    k("s_waitcnt vmcnt(0)")
    for j in range(4):
        k("v_lshlrev_b32 v%d, 16, v%d", 4 + 2 * j, 12 + j)
        k("v_and_b32 v%d, 0xffff0000, v%d", 5 + 2 * j, 12 + j)
        k("v_lshlrev_b32 v%d, 16, v%d", 20 + 2 * j, 36 + j)
        k("v_and_b32 v%d, 0xffff0000, v%d", 21 + 2 * j, 36 + j)
    for j in range(8):
        k("v_add_f32 v%d, v%d, v%d", 4 + j, 4 + j, 20 + j)
    for j in range(4):
        k("v_cvt_pk_bf16_f32 v%d, v%d, v%d", 12 + j, 4 + 2 * j, 5 + 2 * j)
    k("buffer_store_dwordx4 v[12:15], v3, s[16:19], 0 offen")
    k.label(end)
    k("s_endpgm")
    return k.finish(40, 0, 32), "k5_kernel grid=(576,1,1) block=(256,1,1) lds=0"


def gen_k4old():
    k = K("k4_kernel")
    end = prologue_exit(k, 256)
    SLOT = 36864
    k("s_load_dwordx2 s[4:5], s[0:1], %d", KA_WS)
    k("s_load_dwordx2 s[6:7], s[0:1], %d", KA_WD)
    k("s_and_b32 s20, s2, 7")
    k("s_lshr_b32 s21, s2, 3")
    k("s_and_b32 s22, s20, 3")
    k("s_lshr_b32 s23, s20, 2")
    k("s_and_b32 s24, s21, 3")
    k("s_lshr_b32 s25, s21, 2")
    k("s_lshl_b32 s23, s23, 3")
    k("s_add_u32 s25, s25, s23")
    k("v_lshrrev_b32 v1, 6, v0")
    k("v_and_b32 v0, 63, v0")
    k("v_readfirstlane_b32 s26, v1")
    VD = 8
    k("s_mov_b32 s27, 0x%x", (1 << 32) // 18 + 1)
    for i in range(9):
        k("v_add_u32 v2, %d, v0", 64 * i)
        k("v_mul_hi_u32 v3, v2, s27")
        k("v_mul_u32_u24 v4, 18, v3")
        k("v_sub_u32 v4, v2, v4")
        k("v_mul_u32_u24 v3, 1152, v3")
        k("v_lshl_add_u32 v%d, v4, 4, v3", VD + i)
    VTB = 17
    k("v_lshrrev_b32 v2, 5, v0")
    k("v_bfe_u32 v3, v0, 4, 1")
    k("v_bfe_u32 v4, v0, 2, 2")
    k("v_and_b32 v5, 3, v0")
    k("v_lshlrev_b32 v2, 4, v2")
    k("v_lshl_add_u32 v2, v3, 2, v2")
    k("v_add_u32 v2, v2, v4")
    k("v_mul_u32_u24 v2, 288, v2")
    k("v_lshl_add_u32 v%d, v5, 3, v2", VTB)
    for sl in range(1, 4):
        k("v_add_u32 v%d, %d, v%d", VTB + sl, sl * SLOT, VTB)
    VLANE16 = 21
    k("v_lshlrev_b32 v%d, 4, v0", VLANE16)
    VST = 22
    k("v_and_b32 v2, 15, v0")
    k("v_lshrrev_b32 v3, 4, v0")
    k("v_mul_u32_u24 v2, 2304, v2")
    k("v_lshl_add_u32 v%d, v3, 4, v2", VST)
    k("s_waitcnt lgkmcnt(0)")
    k.srd(8, 4, 5, SZ_ACT, WS_ACT)
    k.srd(12, 6, 7, F * D * 2)
    k.srd(16, 4, 5, SZ_PART, WS_PART)
    k("s_lshl_b32 s28, s25, 3")
    k("s_lshl_b32 s29, s26, 1")
    k("s_add_u32 s28, s28, s29")
    k("s_mul_i32 s28, s28, 144")
    k("s_mul_i32 s29, s22, 36")
    k("s_add_u32 s28, s28, s29")
    k("s_lshl_b32 s28, s28, 10")
    k("s_add_u32 s29, s28, %d", 144 * 1024)
    k("s_mul_i32 s30, s22, 1152")
    k("s_lshl_b32 s31, s26, 5")
    k("s_add_u32 s30, s30, s31")
    k("s_mul_i32 s30, s30, 1152")
    k("s_mul_i32 s31, s24, 288")
    k("s_add_u32 s30, s30, s31")
    k("s_mul_i32 s31, s26, 9216")

    VA = 32
    VW = 128
    NWB = 8
    ACC = 160

    def dma_ops(st):
        if "nodma" in OPT or st >= 9:
            return []
        slot = st % 4
        sreg = 36 + (st % 2)
        ops = []
        for i in range(9):
            def f(i=i):
                if i == 0:
                    k("s_add_u32 s%d, s30, %d", sreg, st * 128 * 1152)
                k("s_add_u32 m0, s31, %d", slot * SLOT + i * 1024)
                k.vmem(("D", st), "buffer_load_dwordx4 v%d, s[12:15], s%d offen lds", VD + i, sreg)
            ops.append(f)
        return ops

    def act_ops(st):
        if "noact" in OPT or st >= 9:
            return []
        base = VA + (st % 3) * 32
        ops = []
        for s in range(4):
            for t in range(2):
                def f(s=s, t=t):
                    if s == 0 and t == 0:
                        k("s_add_u32 s33, s28, %d", st * 4096)
                        k("s_add_u32 s34, s29, %d", st * 4096)
                    k.vmem(("A", st), "buffer_load_dwordx4 %s, v%d, s[8:11], s%d offen offset:%d",
                           vr(base + (s * 2 + t) * 4, 4), VLANE16, 33 + t, s * 1024)
                ops.append(f)
        return ops

    stamp(k)
    stamp(k, True)
    for f in dma_ops(0) + act_ops(0) + dma_ops(1) + act_ops(1) + dma_ops(2):
        f()
    for j in range(72):
        k("v_mov_b32 v%d, 0", ACC + j)

    frags = [(st, s, mu) for st in range(9) for s in range(4) for mu in range(9)]
    AHEAD = 6

    def issue_tr(fi):
        st, s, mu = frags[fi]
        b = VW + (fi % NWB) * 4
        off = s * 9216 + mu * 32
        k.lds(("W", fi), "ds_read_b64_tr_b16 %s, v%d offset:%d", vr(b, 2), VTB + st % 4, off)
        k.lds(("W", fi), "ds_read_b64_tr_b16 %s, v%d offset:%d", vr(b + 2, 2), VTB + st % 4, off + 2304)

    nissued = 0
    pend = []
    for fi, (st, s, mu) in enumerate(frags):
        if s == 0 and mu == 0:
            k.comment("stage %d" % st)
            k.wait_vm([("D", st), ("A", st)])
            k("s_barrier")
            stamp(k)
            d, a = dma_ops(st + 3), act_ops(st + 2)
            pend = []
            while d or a:
                if d:
                    pend.append(d.pop(0))
                if a:
                    pend.append(a.pop(0))
        if "nomfma" in OPT:
            for f in pend:
                f()
            pend = []
            continue
        lim = min(fi + AHEAD, (st + 1) * 36 - 1)
        while nissued <= lim:
            issue_tr(nissued)
            nissued += 1
        k.wait_lg([("W", fi)])
        b = VW + (fi % NWB) * 4
        abase = VA + (st % 3) * 32
        for t in range(2):
            a = ACC + (mu * 2 + t) * 4
            k("v_mfma_f32_16x16x32_bf16 %s, %s, %s, %s", vr(a, 4), vr(b, 4), vr(abase + (s * 2 + t) * 4, 4), vr(a, 4))
        if pend and (fi % 2 == 1):
            pend.pop(0)()
    stamp(k)
    k("s_lshl_b32 s32, s22, 11")
    k("s_lshl_b32 s33, s25, 7")
    k("s_add_u32 s32, s32, s33")
    k("s_lshl_b32 s33, s26, 5")
    k("s_add_u32 s32, s32, s33")
    k("s_mul_i32 s32, s32, 2304")
    k("s_mul_i32 s33, s24, 576")
    k("s_add_u32 s32, s32, s33")
    k("s_add_u32 s33, s32, %d", 16 * 2304)
    for mu in range(9):
        for t in range(2):
            a = ACC + (mu * 2 + t) * 4
            k("buffer_store_dwordx4 %s, v%d, s[16:19], s%d offen offset:%d", vr(a, 4), VST, 32 + t, mu * 64)
    if STAMP:
        k("s_waitcnt vmcnt(0)")
        stamp(k)
        stamp(k, True)
        stamp_dump(k, 4, 5, 26)
    k.label(end)
    k("s_endpgm")
    return k.finish(232, 0, 102), "k4_kernel grid=(256,1,1) block=(256,1,1) lds=%d" % (4 * SLOT)


HEADER = """; Kernarg layout for this problem (80 bytes, ptrs only, base s[0:1]):
"""


def build(kernels):
    texts, descs, launches = [], [], []
    for g in kernels:
        (t, d, nn), l = g()
        texts.append(t)
        descs.append(d)
        launches.append(l)
    out = HEADER
    for l in launches:
        out += "; @launch kernel=%s\n" % l
    out += '.amdgcn_target "amdgcn-amd-amdhsa--gfx950"\n.text\n'
    out += "\n".join(texts) + "\n"
    out += '.section .rodata,"a"\n'
    for d in descs:
        out += ".p2align 6\n" + d + "\n"
    return out


ALL = {}


def main():
    import gen_k1, gen_k2, gen_k3, gen_k4
    global STAMP
    args = sys.argv[2:]
    if "stamp" in args:
        args.remove("stamp")
        STAMP = True
        import gen as _g
        _g.STAMP = True
    for a in list(args):
        if a.startswith("-"):
            args.remove(a)
            OPT.add(a[1:])
            import gen as _g
            _g.OPT.add(a[1:])
    names = args if args else ["k1", "k2", "k3", "k4"]
    table = {"k4old": gen_k4old, "k5": gen_k5}
    for mod, nm in ((gen_k1, "k1"), (gen_k2, "k2"), (gen_k3, "k3"), (gen_k4, "k4")):
        if hasattr(mod, "gen"):
            table[nm] = mod.gen
    s = build([table[n] for n in names])
    open(sys.argv[1], "w").write(s)
    print("wrote", sys.argv[1], len(s), "bytes")


if __name__ == "__main__":
    main()
```

```python
from asmfw import K, vr, ar, sr
import gen as G

OOB = 0x7f000000
RSTR = 240
XS = 16384
SL = XS + 64 * RSTR
PREPD = 4 * SL
XCH = 0
XST = 73728
KVX = 77824
KVS = 48 * 208
CSA = KVX + 8 * KVS
STB = CSA + 640
LDS_TOTAL = STB + 1024
LOG2E = 1.4426950408889634


def gen():
    k = K("k1_kernel")
    k.sbase = 88
    end = G.prologue_exit(k, 256, 1, (146, 147), 16)
    k("s_load_dwordx2 s[4:5], s[0:1], %d", G.KA_WS)
    k("s_load_dwordx4 s[8:11], s[0:1], %d", G.KA_X)
    k("s_load_dwordx2 s[12:13], s[0:1], %d", G.KA_WD)
    k("s_load_dwordx2 s[14:15], s[0:1], %d", G.KA_DBG)
    k("s_and_b32 s25, s2, 3")
    k("s_lshl_b32 s25, s25, 2")
    k("s_bfe_u32 s24, s2, 0x20003")
    k("s_add_u32 s25, s25, s24")
    k("s_bfe_u32 s24, s2, 0x10002")
    k("s_lshl_b32 s24, s24, 3")
    k("s_lshr_b32 s22, s2, 5")
    k("s_add_u32 s24, s24, s22")
    k("s_lshr_b32 s22, s2, 2")
    k("s_and_b32 s23, s2, 3")
    VTID = 1
    k("v_mov_b32 v%d, v0", VTID)
    k("v_lshrrev_b32 v2, 6, v0")
    k("v_and_b32 v0, 63, v0")
    k("v_readfirstlane_b32 s26, v2")
    k("s_and_b32 s20, s26, 3")
    k("s_lshr_b32 s21, s26, 2")
    VG, VI, VI4, VIM, VL16, VOOB = 2, 3, 4, 5, 6, 7
    k("v_lshrrev_b32 v%d, 4, v0", VG)
    k("v_and_b32 v%d, 15, v0", VI)
    k("v_bfe_u32 v%d, v0, 2, 2", VI4)
    k("v_and_b32 v%d, 3, v0", VIM)
    k("v_lshlrev_b32 v%d, 4, v0", VL16)
    k("v_mov_b32 v%d, 0x%x", VOOB, OOB)
    k("v_cmp_eq_u32 s[30:31], 0, v%d", VG)
    for r in (12, 13, 14, 15):
        k("v_mov_b32 v%d, 0", r)
    k("v_lshlrev_b32 v9, 2, v%d", VTID)
    k("v_add_u32 v9, %d, v9", CSA)
    k("v_cmp_gt_u32 vcc, 144, v%d", VTID)
    k("s_and_saveexec_b64 s[28:29], vcc")
    k("ds_write_b32 v9, v12")
    k("s_mov_b64 exec, s[28:29]")
    VXD, VWD, VPD = 16, 18, 20
    k("s_mov_b32 s28, 0x%x", (1 << 32) // 15 + 1)
    k("s_mov_b32 s29, 0x%x", (1 << 32) // 5 + 1)
    k("s_mov_b32 s32, 0x%x", (1 << 32) // 18 + 1)
    for i in range(3):
        k("v_add_u32 v9, %d, v0", 64 * i)
        if i < 2:
            k("v_lshrrev_b32 v10, 3, v9")
            k("v_xor_b32 v11, v9, v10")
            k("v_and_b32 v11, 7, v11")
            k("v_mul_u32_u24 v10, 1152, v10")
            k("v_lshl_add_u32 v%d, v11, 4, v10", VXD + i)
            k("v_mul_hi_u32 v10, v9, s28")
            k("v_mul_u32_u24 v11, 15, v10")
            k("v_sub_u32 v11, v9, v11")
            k("v_mul_hi_u32 v8, v11, s29")
            k("v_mul_u32_u24 v23, 5, v8")
            k("v_sub_u32 v23, v11, v23")
            k("v_mul_u32_u24 v10, 3456, v10")
            k("v_mul_u32_u24 v8, 1152, v8")
            k("v_lshlrev_b32 v23, 4, v23")
            k("v_add3_u32 v%d, v10, v8, v23", VWD + i)
        k("v_mul_hi_u32 v10, v9, s32")
        k("v_mul_u32_u24 v11, 18, v10")
        k("v_sub_u32 v11, v9, v11")
        k("v_mul_u32_u24 v10, 1152, v10")
        k("v_lshl_add_u32 v%d, v11, 4, v10", VPD + i)
    VTB = 24
    k("v_lshl_add_u32 v11, v%d, 3, v%d", VG, VI4)
    k("v_mul_u32_u24 v11, %d, v11", RSTR)
    k("v_lshl_add_u32 v11, v%d, 3, v11", VIM)
    k("s_and_b32 s27, s24, 1")
    k("s_lshl_b32 s27, s27, 3")
    k("s_add_u32 s27, s27, %d", XS)
    k("s_mul_i32 s28, s21, %d", 32 * RSTR)
    k("s_add_u32 s27, s27, s28")
    k("v_add_u32 v%d, s27, v11", VTB)
    k("v_add_u32 v%d, %d, v%d", VTB + 1, 2 * SL, VTB)
    VXA = 26
    k("s_lshl_b32 s34, s26, 11")
    k("s_lshl_b32 s27, s21, 2")
    k("s_lshl_b32 s28, s20, 12")
    k("s_lshl_b32 s29, s21, 11")
    k("s_add_u32 s28, s28, s29")
    k("v_add_u32 v9, s27, v%d", VG)
    k("v_xor_b32 v9, v9, v%d", VI)
    k("v_and_b32 v9, 7, v9")
    k("v_lshlrev_b32 v9, 4, v9")
    k("v_lshl_add_u32 v9, v%d, 7, v9", VI)
    k("v_add_u32 v%d, s28, v9", VXA)
    k("v_xor_b32 v%d, 0x800, v%d", VXA + 1, VXA)
    k("v_add_u32 v%d, %d, v%d", VXA + 2, 2 * SL, VXA)
    k("v_add_u32 v%d, %d, v%d", VXA + 3, 2 * SL, VXA + 1)
    k("s_waitcnt lgkmcnt(0)")
    k.srd(64, 8, 9, G.SZ_H)
    k.srd(68, 10, 11, G.D * 3 * G.D * 2)
    k.srd(72, 12, 13, G.F * G.D * 2)
    k.srd(76, 14, 15, 256)
    k.srd(80, 4, 5, G.SZ_KV, G.WS_KV)
    k.srd(84, 4, 5, G.SZ_CS, G.WS_CS)
    k.srd(44, 4, 5, G.SZ_WDF, G.WS_WDF)
    G.stamp(k)
    k("s_lshl_b32 s32, s25, 7")
    k("s_lshl_b32 s33, s26, 4")
    k("s_add_u32 s32, s32, s33")
    k("s_mul_i32 s32, s32, 1152")
    k("s_mul_i32 s33, s26, %d", 8 * 3456)
    k("s_mul_i32 s35, s24, 72")
    k("s_and_b32 s35, s35, 0xfffffff0")
    k("s_add_u32 s33, s33, s35")
    k("s_mul_i32 s35, s26, %d", 8 * RSTR)
    k("s_add_u32 s35, s35, %d", XS)

    def slice_ops(j):
        if j >= 9 or "nodma" in G.OPT:
            return []
        ops = []
        slot = (j % 4) * SL
        for i in range(2):
            def fx(i=i):
                if i == 0:
                    k("s_add_u32 s36, s32, %d", j * 128)
                k("s_add_u32 m0, s34, %d", slot + i * 1024)
                k.vmem(("S", j), "buffer_load_dwordx4 v%d, s[64:67], s36 offen lds", VXD + i)

            def fw(i=i):
                if i == 0:
                    k("s_add_u32 s37, s33, %d", j * 64 * 3456)
                k("s_add_u32 m0, s35, %d", slot + i * 1024)
                if i == 1:
                    k("s_mov_b32 exec_hi, 0xffffff")
                k.vmem(("S", j), "buffer_load_dwordx4 v%d, s[68:71], s37 offen lds", VWD + i)
                if i == 1:
                    k("s_mov_b64 exec, -1")
            ops += [fw, fx]
        return ops

    def prep_ops():
        ops = []
        for i in range(3):
            def f(i=i):
                if i == 0:
                    k("s_mul_i32 s38, s22, 72")
                    k("s_mul_i32 s39, s26, 9")
                    k("s_add_u32 s38, s38, s39")
                    k("s_mul_i32 s38, s38, 1152")
                    k("s_mul_i32 s39, s23, 288")
                    k("s_add_u32 s38, s38, s39")
                    k("s_mul_i32 s39, s26, %d", 9 * 288)
                k("s_add_u32 m0, s39, %d", PREPD + i * 1024)
                if i == 2:
                    k("s_mov_b32 exec_hi, 3")
                k.vmem("P", "buffer_load_dwordx4 v%d, s[72:75], s38 offen lds", VPD + i)
                if i == 2:
                    k("s_mov_b64 exec, -1")
            ops.append(f)
        return ops

    for f in slice_ops(0):
        f()
    for f in slice_ops(1) + slice_ops(2):
        f()
    VT = 11
    k("v_mov_b32 v%d, 1", VT)
    k("s_lshl_b32 s29, s24, 2")
    lab = k.newlabel("notk")
    k("s_cmp_lg_u32 s26, 0")
    k("s_cbranch_scc1 %s", lab)
    k("v_lshlrev_b32 v9, 2, v0")
    k("v_cmp_gt_u32 vcc, 36, v0")
    k("v_cndmask_b32 v9, v%d, v9, vcc", VOOB)
    k("s_mul_i32 s38, s2, 144")
    k("buffer_store_dword v12, v9, s[84:87], s38 offen")
    k("s_cmp_lg_u32 s25, 0")
    k("s_cbranch_scc1 %s", lab)
    k("s_mov_b64 exec, 1")
    k("buffer_atomic_add v%d, v12, s[76:79], s29 offen sc0 sc1", VT)
    k("s_mov_b64 exec, -1")
    k.label(lab)

    def zero_stores():
        k("s_mul_i32 s41, s24, 7168")
        k("s_add_u32 s42, s41, 4096")
        for r in range(7):
            k("buffer_store_dwordx4 v[12:15], v%d, s[80:83], s%d offen offset:%d sc0 sc1", VL16, 41 + r // 4, (r % 4) * 1024)

    def flag_store():
        k("v_mov_b32 v31, 1")
        k("s_mov_b64 exec, 1")
        k("buffer_store_dword v31, v12, s[76:79], s29 offen offset:64 sc0 sc1")
        k("s_mov_b64 exec, -1")

    def zero_kv():
        zero_stores()
        k("s_waitcnt vmcnt(0)")
        flag_store()

    k("s_mov_b32 s40, 1")

    for j in range(12):
        k("v_accvgpr_write_b32 a%d, 0", j)
    VONE = 32
    for j in range(4):
        k("v_mov_b32 v%d, 0x3f803f80", VONE + j)
    VS = 36
    XF = 40
    ACC = 56
    PT = 128
    WB, NWB, AH = 28, 18, 6

    side = []

    def S(fmt, *a):
        side.append(lambda: k(fmt, *a))

    def prep_stream():
        S("s_lshl_b32 s41, s26, 2")
        S("v_add_u32 v8, s41, v%d", VG)
        S("v_mul_u32_u24 v9, 288, v%d", VI4)
        S("v_lshl_add_u32 v9, v%d, 3, v9", VIM)
        S("v_add_u32 v9, %d, v9", PREPD)
        S("s_mov_b32 s41, 0x%x", (1 << 32) // 9 + 1)
        S("s_mul_i32 s42, s22, 72")
        S("s_lshl_b32 s43, s23, 1")
        for it in range(6):
            b = PT + (it % 2) * 8
            S("v_add_u32 v10, %d, v8", it * 32)
            S("v_min_u32 v30, 161, v10")
            S("v_mul_hi_u32 v%d, v30, s41", b + 2)
            S("v_mul_u32_u24 v%d, 9, v%d", b + 3, b + 2)
            S("v_sub_u32 v%d, v30, v%d", b + 3, b + 3)
            S("v_mul_u32_u24 v%d, 1152, v%d", b + 4, b + 2)
            S("v_lshl_add_u32 v%d, v%d, 5, v%d", b + 4, b + 3, b + 4)
            S("v_add_u32 v%d, v%d, v9", b + 4, b + 4)
            side.append(lambda b=b, it=it: k.lds(("PT", it), "ds_read_b64_tr_b16 %s, v%d", vr(b, 2), b + 4))
            S("v_lshl_add_u32 v%d, v%d, 2, s42", b + 2, b + 2)
            S("v_lshl_add_u32 v%d, v%d, 4, v%d", b + 3, b + 3, VI)
            S("v_cmp_le_u32 vcc, 72, v%d", b + 3)
            S("v_cndmask_b32 v%d, 0, 1, vcc", b + 5)
            S("v_mul_u32_u24 v%d, 72, v%d", b + 6, b + 5)
            S("v_sub_u32 v%d, v%d, v%d", b + 3, b + 3, b + 6)
            S("v_add_u32 v%d, s43, v%d", b + 5, b + 5)
            S("v_mul_u32_u24 v%d, 144, v%d", b + 5, b + 5)
            S("v_lshrrev_b32 v%d, 5, v%d", b + 6, b + 2)
            S("v_add_u32 v%d, v%d, v%d", b + 5, b + 5, b + 6)
            S("v_mul_u32_u24 v%d, 4608, v%d", b + 5, b + 5)
            S("v_bfe_u32 v%d, v%d, 4, 1", b + 6, b + 2)
            S("v_bfe_u32 v%d, v%d, 2, 1", b + 7, b + 2)
            S("v_lshl_add_u32 v%d, v%d, 1, v%d", b + 6, b + 6, b + 7)
            S("v_bfe_u32 v%d, v%d, 3, 1", b + 7, b + 2)
            S("v_lshl_add_u32 v%d, v%d, 3, v%d", b + 5, b + 7, b + 5)
            S("v_and_b32 v%d, 15, v%d", b + 7, b + 3)
            S("v_lshrrev_b32 v%d, 4, v%d", b + 2, b + 3)
            S("v_lshl_add_u32 v30, v%d, 4, v%d", b + 6, b + 7)
            S("v_lshl_add_u32 v%d, v%d, 3, v%d", b + 7, b + 6, b + 7)
            S("v_cmp_gt_u32 vcc, 4, v%d", b + 2)
            S("v_cndmask_b32 v%d, v%d, v30, vcc", b + 7, b + 7)
            S("v_lshlrev_b32 v%d, 4, v%d", b + 7, b + 7)
            S("v_lshl_add_u32 v%d, v%d, 10, v%d", b + 7, b + 2, b + 7)
            S("v_add_u32 v%d, v%d, v%d", b + 5, b + 5, b + 7)
            if it == 5:
                S("v_cmp_gt_u32 vcc, 162, v10")
                S("v_cndmask_b32 v%d, v%d, v%d, vcc", b + 5, VOOB, b + 5)
            side.append(lambda it=it: k.wait_lg([("PT", it)]))
            side.append(lambda b=b: k.vmem("PS", "buffer_store_dwordx2 %s, v%d, s[44:47], 0 offen sc1", vr(b, 2), b + 5))

    AH = 7
    visible = -1
    nr = 0
    pend = []
    stq = []

    def xread(j):
        xb = XF + (j % 2) * 8
        for t in range(2):
            k.lds(("X", j), "ds_read_b128 %s, v%d offset:%d", vr(xb + t * 4, 4), VXA + 2 * ((j % 4) // 2) + t, (j % 2) * SL)

    def barrier(jn):
        nonlocal visible, pend
        tags = [("S", jn)] + (["P"] if jn == 4 else [])
        for f in pend:
            f()
        pend = []
        k.wait_vm(tags)
        if jn == 3:
            lab = k.newlabel("nozero")
            k("s_or_b32 s41, s26, s25")
            k("s_cmp_lg_u32 s41, 0")
            k("s_cbranch_scc1 %s", lab)
            k("v_readfirstlane_b32 s40, v%d", VT)
            k("s_cmp_lg_u32 s40, 0")
            k("s_cbranch_scc1 %s", lab)
            zero_stores()
            k.label(lab)
        if jn == 6:
            lab = k.newlabel("noflag")
            k("s_cmp_lg_u32 s40, 0")
            k("s_cbranch_scc1 %s", lab)
            flag_store()
            k.label(lab)
        k("s_barrier")
        visible = jn
        xread(jn)
        if jn == 4:
            prep_stream()

    k("s_waitcnt lgkmcnt(0)")
    barrier(0)
    G.stamp(k)
    pend = slice_ops(3) + prep_ops()
    for n in range(81):
        j, c = divmod(n, 9)
        if c == 2 and j < 8:
            barrier(j + 1)
            if j >= 1:
                pend = slice_ops(j + 3)
            if j in (3,):
                G.stamp(k)
        xb = XF + (j % 2) * 8
        while nr <= min(n + AH, 80) and nr // 9 <= visible:
            j2, c2 = divmod(nr, 9)
            b = WB + (nr % NWB) * 4
            off = (j2 % 2) * SL + (c2 // 3) * 80 + (c2 % 3) * 32
            k.lds(("W", nr), "ds_read_b64_tr_b16 %s, v%d offset:%d", ar(b, 2), VTB + (j2 % 4) // 2, off)
            k.lds(("W", nr), "ds_read_b64_tr_b16 %s, v%d offset:%d", ar(b + 2, 2), VTB + (j2 % 4) // 2, off + 4 * RSTR)
            nr += 1
        k.wait_lg([("W", n), ("X", j)])
        w = ar(WB + (n % NWB) * 4, 4)
        for t in range(2):
            a = vr(ACC + (c * 2 + t) * 4, 4)
            cc = "0" if j == 0 else a
            x = vr(xb + t * 4, 4)
            if c < 3:
                k("v_mfma_f32_16x16x32_bf16 %s, %s, %s, %s", a, w, x, cc)
            else:
                k("v_mfma_f32_16x16x32_bf16 %s, %s, %s, %s", a, x, w, cc)
        if c in (0, 1):
            x = vr(xb + c * 4, 4)
            sa, ga = ar(12 + c * 8, 4), ar(16 + c * 8, 4)
            k("v_mfma_f32_16x16x32_bf16 %s, %s, %s, %s", sa, vr(VONE, 4), x, "0" if j == 0 else sa)
            k("v_mfma_f32_16x16x32_bf16 %s, %s, %s, %s", ga, x, x, "0" if j == 0 else ga)
        if pend:
            pend.pop(0)()
        for _ in range(6):
            if side:
                side.pop(0)()
        if c % 3 == 2:
            lab = k.newlabel("nocs")
            k("s_cmp_lg_u32 s20, %d", c // 3)
            k("s_cbranch_scc1 %s", lab)
            for c2 in range(3):
                w2 = ar(WB + ((n - 2 + c2) % NWB) * 4, 4)
                k("v_mfma_f32_16x16x32_bf16 %s, %s, %s, %s", ar(c2 * 4, 4), vr(VONE, 4), w2, ar(c2 * 4, 4))
            k.label(lab)
    while side:
        side.pop(0)()
    G.stamp(k)
    lab = k.newlabel("nopoll0")
    k("s_cmp_lg_u32 s26, 0")
    k("s_cbranch_scc1 %s", lab)
    k("buffer_load_dword v10, v12, s[76:79], s29 offen offset:64 sc0 sc1")
    k.label(lab)
    lab = k.newlabel("nocsadd")
    k("s_cmp_eq_u32 s20, 3")
    k("s_cbranch_scc1 %s", lab)
    k("s_mul_i32 s38, s20, 192")
    k("s_add_u32 s38, s38, %d", CSA)
    k("v_lshl_add_u32 v8, v%d, 2, s38", VI)
    k("s_mov_b64 exec, s[30:31]")
    for c in range(3):
        k("ds_add_f32 v8, a%d offset:%d", c * 4, c * 64)
    k("s_mov_b64 exec, -1")
    k.label(lab)
    k("v_cmp_eq_u32 s[44:45], 1, v%d", VIM)
    k("v_cmp_eq_u32 s[46:47], 2, v%d", VIM)
    k("v_cmp_eq_u32 s[48:49], 3, v%d", VIM)
    for t in range(2):
        k("v_accvgpr_read_b32 v%d, a%d", VS + 2 * t, 12 + t * 8)
        for jj in range(4):
            k("v_accvgpr_read_b32 v%d, a%d", 16 + jj, 16 + t * 8 + jj)
        k("v_cndmask_b32 v16, v16, v17, s[44:45]")
        k("v_cndmask_b32 v16, v16, v18, s[46:47]")
        k("v_cndmask_b32 v%d, v16, v19, s[48:49]", VS + 2 * t + 1)
    k("s_waitcnt lgkmcnt(0)")
    k.lg.ops = []
    k("s_barrier")
    k("s_mul_i32 s38, s26, 9216")
    k("v_add_u32 v8, s38, v%d", VL16)
    k("s_lshl_b32 s38, s26, 9")
    k("s_add_u32 s38, s38, %d", XST)
    k("v_lshl_add_u32 v9, v0, 3, s38")
    k("ds_write_b64 v9, %s", vr(VS + 2, 2))
    for c in range(9):
        k("ds_write_b128 v8, %s offset:%d", vr(ACC + (c * 2 + 1) * 4, 4), XCH + c * 1024)
    CQ = 128
    CK = 140
    RS = 48
    k("v_lshlrev_b32 v16, 4, v%d", VG)
    k("v_add_u32 v16, %d, v16", CSA)
    k("v_lshlrev_b32 v17, 2, v%d", VI)
    k("v_add_u32 v17, %d, v17", CSA)
    for c in range(3):
        k("ds_read_b128 %s, v16 offset:%d", vr(CQ + c * 4, 4), c * 64)
    for c in range(3, 9):
        k("ds_read_b32 v%d, v17 offset:%d", CK + c - 3, c * 64)
    k("s_xor_b32 s38, s26, 4")
    k("s_mul_i32 s39, s38, 9216")
    k("v_add_u32 v8, s39, v%d", VL16)
    k("s_lshl_b32 s38, s38, 9")
    k("s_add_u32 s38, s38, %d", XST)
    k("v_lshl_add_u32 v9, v0, 3, s38")
    k("s_waitcnt lgkmcnt(0)")
    k("s_barrier")
    G.stamp(k)
    k("ds_read_b64 %s, v9", vr(VS + 2, 2))
    for c in range(9):
        k("ds_read_b128 %s, v8 offset:%d", vr(ACC + c * 8 + 4, 4), XCH + c * 1024)
    k("s_waitcnt lgkmcnt(9)")
    k("v_add_f32 v%d, v%d, v%d", VS, VS, VS + 2)
    k("v_add_f32 v%d, v%d, v%d", VS + 2, VS + 1, VS + 3)
    k("v_lshl_add_u32 v8, v%d, 4, v%d", VI4, VI)
    k("v_lshlrev_b32 v8, 2, v8")
    k("ds_bpermute_b32 v%d, v8, v%d", VS + 2, VS + 2)
    k("s_waitcnt lgkmcnt(0)")
    b = VS
    k("v_mul_f32 v%d, 0x%08x, v%d", b, G.f32bits(1.0 / 576), b)
    k("v_mul_f32 v%d, 0x%08x, v%d", b + 2, G.f32bits(1.0 / 576), b + 2)
    k("v_fma_f32 v%d, -v%d, v%d, v%d", b + 2, b, b, b + 2)
    k("v_max_f32 v%d, 0, v%d", b + 2, b + 2)
    k("v_cvt_pk_bf16_f32 v%d, v%d, v%d", b + 3, b, b + 2)
    k("v_lshlrev_b32 v%d, 16, v%d", b, b + 3)
    k("v_and_b32 v%d, 0xffff0000, v%d", b + 2, b + 3)
    k("v_add_f32 v%d, 0x%08x, v%d", b + 2, G.f32bits(1e-5), b + 2)
    k("v_cvt_pk_bf16_f32 v%d, v%d, v%d", b + 3, b + 2, b + 2)
    k("v_lshlrev_b32 v%d, 16, v%d", b + 2, b + 3)
    k("v_sqrt_f32 v%d, v%d", b + 2, b + 2)
    k("v_sub_f32 v%d, 0, v%d", b, b)
    k("v_cvt_pk_bf16_f32 v%d, v%d, v%d", b + 3, b + 2, b + 2)
    k("v_lshlrev_b32 v%d, 16, v%d", b + 2, b + 3)
    k("v_rcp_f32 v%d, v%d", b + 1, b + 2)
    k("s_lshl_b32 s38, s26, 7")
    k("s_add_u32 s38, s38, %d", STB)
    k("v_lshl_add_u32 v8, v%d, 3, s38", VI)
    k("s_mov_b64 exec, s[30:31]")
    k("ds_write_b64 v8, %s", vr(VS, 2))
    k("s_mov_b64 exec, -1")
    for c in range(9):
        for jj in range(4):
            k("v_add_f32 v%d, v%d, v%d", ACC + c * 8 + jj, ACC + c * 8 + jj, ACC + c * 8 + 4 + jj)
    k("v_lshl_add_u32 v8, v%d, 5, s38", VG)
    k("s_waitcnt lgkmcnt(0)")
    k("ds_read_b128 %s, v8", vr(RS, 4))
    k("ds_read_b128 %s, v8 offset:16", vr(RS + 4, 4))

    T0 = 16

    def bf16round4(regs):
        k("v_cvt_pk_bf16_f32 v%d, v%d, v%d", T0, regs[0], regs[1])
        k("v_cvt_pk_bf16_f32 v%d, v%d, v%d", T0 + 1, regs[2], regs[3])
        k("v_lshlrev_b32 v%d, 16, v%d", regs[0], T0)
        k("v_and_b32 v%d, 0xffff0000, v%d", regs[1], T0)
        k("v_lshlrev_b32 v%d, 16, v%d", regs[2], T0 + 1)
        k("v_and_b32 v%d, 0xffff0000, v%d", regs[3], T0 + 1)

    def phi4(regs):
        for j, r in enumerate(regs):
            k("v_min_f32 v%d, 0, v%d", T0 + 4 + j, r)
        for j, r in enumerate(regs):
            k("v_mul_f32 v%d, 0x%08x, v%d", T0 + 4 + j, G.f32bits(LOG2E), T0 + 4 + j)
        for j, r in enumerate(regs):
            k("v_exp_f32 v%d, v%d", T0 + 4 + j, T0 + 4 + j)
        for j, r in enumerate(regs):
            k("v_max_f32 v%d, 0, v%d", r, r)
        for j, r in enumerate(regs):
            k("v_add_f32 v%d, v%d, v%d", r, r, T0 + 4 + j)
        for j, r in enumerate(regs):
            k("v_add_f32 v%d, 0x%08x, v%d", r, G.f32bits(1e-6), r)

    k.srd(64, 4, 5, G.SZ_PQA, G.WS_PQA)
    k.srd(68, 4, 5, G.SZ_PQB, G.WS_PQB)
    k("s_lshl_b32 s38, s25, 3")
    k("s_lshl_b32 s39, s20, 1")
    k("s_add_u32 s38, s38, s39")
    k("s_add_u32 s38, s38, s21")
    k("s_lshl_b32 s38, s38, 4")
    k("s_add_u32 s38, s38, s24")
    k("s_lshl_b32 s39, s38, 7")
    k("s_lshl_b32 s38, s38, 10")
    k("v_lshlrev_b32 v9, 3, v%d", VI)
    k("v_cndmask_b32 v9, v%d, v9, s[30:31]", VOOB)
    PK = 40
    KF = 128
    for c in range(3):
        regs = [ACC + c * 8 + j for j in range(4)]
        for j, r in enumerate(regs):
            k("v_fma_f32 v%d, v%d, v%d, v%d", r, CQ + c * 4 + j, VS, r)
        for r in regs:
            k("v_mul_f32 v%d, v%d, v%d", r, r, VS + 1)
        bf16round4(regs)
        phi4(regs)
        k("v_cvt_pk_bf16_f32 v%d, v%d, v%d", PK + c * 2, regs[0], regs[1])
        k("v_cvt_pk_bf16_f32 v%d, v%d, v%d", PK + c * 2 + 1, regs[2], regs[3])
    k("buffer_store_dwordx4 %s, v%d, s[64:67], s38 offen sc1", vr(PK, 4), VL16)
    k("buffer_store_dwordx2 %s, v9, s[68:71], s39 offen sc1", vr(PK + 4, 2))
    k("s_waitcnt lgkmcnt(0)")
    k("v_cmp_eq_u32 s[52:53], 4, v%d", VI)
    for c in range(3, 9):
        regs = [ACC + c * 8 + j for j in range(4)]
        for j, r in enumerate(regs):
            k("v_fma_f32 v%d, v%d, v%d, v%d", r, CK + c - 3, RS + 2 * j, r)
        for j, r in enumerate(regs):
            k("v_mul_f32 v%d, v%d, v%d", r, r, RS + 2 * j + 1)
        if c < 6:
            bf16round4(regs)
            phi4(regs)
        if c == 8:
            for r in regs:
                k("v_cndmask_b32 v%d, v%d, 1.0, s[52:53]", r, r)
        d = KF + (c - 3) * 2
        k("v_cvt_pk_bf16_f32 v%d, v%d, v%d", d, regs[0], regs[1])
        k("v_cvt_pk_bf16_f32 v%d, v%d, v%d", d + 1, regs[2], regs[3])
    KVD = ACC
    for a in range(3):
        for b in range(3):
            k("v_mfma_f32_16x16x16_bf16 %s, %s, %s, 0", vr(KVD + (a * 3 + b) * 4, 4), vr(KF + a * 2, 2),
              vr(KF + 6 + b * 2, 2))
    k("s_mul_i32 s43, s26, %d", KVS)
    k("s_add_u32 s43, s43, %d", KVX)
    k("v_mul_u32_u24 v8, 208, v%d", VI)
    k("v_lshl_add_u32 v8, v%d, 4, v8", VG)
    k("v_add_u32 v8, s43, v8")
    for a in range(3):
        for b in range(3):
            k("ds_write_b128 v8, %s offset:%d", vr(KVD + (a * 3 + b) * 4, 4), b * 16 * 208 + a * 64)
    VJ, VII, VIO, VGA = 16, 17, 18, 19
    k("v_and_b32 v%d, 3, v0", VJ)
    k("v_lshrrev_b32 v%d, 2, v0", VII)
    k("v_and_b32 v%d, 3, v%d", VIO, VII)
    k("v_lshrrev_b32 v%d, 2, v%d", VGA, VII)
    k("s_and_b32 s27, s26, 3")
    k("s_lshl_b32 s38, s27, 2")
    k("s_and_b32 s39, s24, 3")
    k("s_and_b32 s41, s24, 1")
    k("s_lshl_b32 s41, s41, 1")
    k("s_add_u32 s42, s41, 1")
    k("v_cmp_gt_u32 s[44:45], 2, v%d", VJ)
    k("v_cmp_gt_u32 s[46:47], 2, v%d", VIO)
    k("v_cmp_eq_u32 s[48:49], s41, v%d", VGA)
    k("v_cmp_eq_u32 s[50:51], s42, v%d", VGA)
    k("v_cmp_eq_u32 s[52:53], 2, v%d", VIO)
    k("v_cmp_eq_u32 s[54:55], 3, v%d", VIO)
    k("s_and_b64 s[48:49], s[48:49], s[46:47]")
    k("s_and_b64 s[50:51], s[50:51], s[46:47]")
    k("s_or_b64 s[48:49], s[48:49], s[52:53]")
    k("s_or_b64 s[50:51], s[50:51], s[54:55]")
    k("s_cmp_eq_u32 s27, 0")
    k("s_cselect_b64 s[56:57], -1, 0")
    k("s_cmp_eq_u32 s27, s39")
    k("s_cselect_b64 s[58:59], -1, 0")
    k("v_add_u32 v20, s38, v%d", VJ)
    k("v_add_u32 v21, 16, v20")
    k("v_add_u32 v22, 32, v%d", VJ)
    k("v_cmp_le_u32 s[60:61], 18, v21")
    k("v_add_u32 v23, 18, v%d", VII)
    k("v_add_u32 v24, 16, v%d", VIO)
    k("v_cndmask_b32 v24, 36, v24, s[46:47]")
    k("v_add_u32 v25, 34, v%d", VIO)
    k("v_cndmask_b32 v25, 36, v25, s[46:47]")
    k("v_cndmask_b32 v26, v25, v24, s[48:49]")
    k("s_and_b64 s[62:63], s[56:57], s[44:45]")
    k("s_mov_b64 s[64:65], -1")
    k("s_mov_b64 s[66:67], s[62:63]")
    k("s_mov_b64 s[68:69], s[60:61]")
    k("s_mov_b64 s[70:71], s[58:59]")
    k("s_mov_b64 s[72:73], s[48:49]")
    k("s_and_b64 s[74:75], s[48:49], s[62:63]")
    k("s_and_b64 s[44:45], s[50:51], s[60:61]")
    k("s_or_b64 s[74:75], s[74:75], s[44:45]")
    k("s_and_b64 s[46:47], s[50:51], s[58:59]")
    k("v_and_b32 v27, 255, v%d", VTID)
    k("v_lshlrev_b32 v27, 2, v27")
    k("s_mul_i32 s38, s24, 7168")
    k("s_add_u32 s39, s38, 4096")
    poll = k.newlabel("poll")
    pd = k.newlabel("polldone")
    k("s_cmp_lg_u32 s26, 0")
    k("s_cbranch_scc1 %s", pd)
    k("s_waitcnt vmcnt(2)")
    k("v_readfirstlane_b32 s41, v10")
    k("s_cmp_eq_u32 s41, 1")
    k("s_cbranch_scc1 %s", pd)
    k("s_cmp_eq_u32 s25, 0")
    k("s_cbranch_scc1 %s", poll)
    k("v_mov_b32 v%d, 1", VT)
    k("s_mov_b64 exec, 1")
    k("buffer_atomic_add v%d, v12, s[76:79], s29 offen sc0 sc1", VT)
    k("s_mov_b64 exec, -1")
    k("s_waitcnt vmcnt(0)")
    k("v_readfirstlane_b32 s41, v%d", VT)
    k("s_cmp_lg_u32 s41, 0")
    k("s_cbranch_scc1 %s", poll)
    zero_kv()
    k.label(poll)
    k("buffer_load_dword v10, v12, s[76:79], s29 offen offset:64 sc0 sc1")
    k("s_waitcnt vmcnt(0)")
    k("v_readfirstlane_b32 s41, v10")
    k("s_cmp_eq_u32 s41, 1")
    k("s_cbranch_scc1 %s", pd)
    k("s_sleep 2")
    k("s_branch %s", poll)
    k.label(pd)
    k("s_waitcnt lgkmcnt(0)")
    k("s_barrier")
    G.stamp(k)
    blocks = [(VII, 20), (VII, 21), (23, 21), (23, 22), (24, 20), (26, 21), (25, 22)]
    masks = ["s[64:65]", "s[66:67]", "s[68:69]", "s[70:71]", "s[72:73]", "s[74:75]", "s[46:47]"]
    other = k.newlabel("half1")
    fin = k.newlabel("fin")
    k("s_cmp_ge_u32 s26, 4")
    k("s_cbranch_scc1 %s", other)
    for half in range(2):
        rs = [0, 3, 4, 6] if half == 0 else [2, 1, 5]
        for n, r in enumerate(rs):
            ve, vd = blocks[r]
            b = 56 + n * 12
            k("v_mul_u32_u24 v%d, 52, v%d", b, ve)
            k("v_add_lshl_u32 v%d, v%d, v%d, 2", b, b, vd)
            k("v_add_u32 v%d, %d, v%d", b, KVX, b)
            k("v_add_u32 v%d, %d, v%d", b + 2, 4 * KVS, b)
            k("v_cndmask_b32 v%d, v%d, v27, %s", b + 1, VOOB, masks[r])
            for w in range(8):
                k("ds_read_b32 v%d, v%d offset:%d", b + 4 + w, b + (2 if w >= 4 else 0), (w % 4) * KVS)
            k("s_waitcnt lgkmcnt(8)" if n else "s_nop 0")
            if n:
                bb = 56 + (n - 1) * 12
                rr = rs[n - 1]
                for (x, y) in ((4, 5), (6, 7), (8, 9), (10, 11), (4, 6), (8, 10), (4, 8)):
                    k("v_add_f32 v%d, v%d, v%d", bb + x, bb + x, bb + y)
                k("buffer_atomic_add_f32 v%d, v%d, s[80:83], s%d offen offset:%d", bb + 4, bb + 1, 38 + rr // 4, (rr % 4) * 1024)
        k("s_waitcnt lgkmcnt(0)")
        bb = 56 + (len(rs) - 1) * 12
        rr = rs[-1]
        for (x, y) in ((4, 5), (6, 7), (8, 9), (10, 11), (4, 6), (8, 10), (4, 8)):
            k("v_add_f32 v%d, v%d, v%d", bb + x, bb + x, bb + y)
        k("buffer_atomic_add_f32 v%d, v%d, s[80:83], s%d offen offset:%d", bb + 4, bb + 1, 38 + rr // 4, (rr % 4) * 1024)
        if half == 0:
            k("s_branch %s", fin)
            k.label(other)
    k.label(fin)
    if G.STAMP:
        k("s_waitcnt vmcnt(0)")
        G.stamp(k)
        G.stamp_dump(k, 4, 5, 26)
    k.label(end)
    k("s_endpgm")
    return k.finish(148, 100, 102), "k1_kernel grid=(256,1,1) block=(512,1,1) lds=%d" % LDS_TOTAL
```

```python
from asmfw import K, vr, ar, sr
import gen as G

OOB = 0x7f000000
WOW = 20736
PREP = 84992
CSL = 128000
XL = 129024
LDS_TOTAL = XL + 4 * 2304


def gen():
    k = K("k2_kernel")
    k.sbase = 88
    end = G.prologue_exit(k, 256, 1, (250, 251), 16)
    k("s_load_dwordx2 s[4:5], s[0:1], %d", G.KA_WS)
    k("s_load_dwordx2 s[6:7], s[0:1], %d", G.KA_X)
    k("s_load_dwordx2 s[8:9], s[0:1], %d", G.KA_WO)
    k("s_load_dwordx4 s[12:15], s[0:1], %d", G.KA_WG)
    k("s_lshr_b32 s21, s2, 3")
    k("s_and_b32 s24, s21, 7")
    k("s_and_b32 s25, s2, 7")
    k("s_lshl_b32 s25, s25, 2")
    k("s_lshr_b32 s20, s2, 6")
    k("s_add_u32 s25, s25, s20")
    k("s_bfe_u32 s22, s2, 0x10002")
    k("s_and_b32 s23, s2, 3")
    k("v_mov_b32 v255, v0")
    k("v_lshrrev_b32 v1, 6, v0")
    k("v_and_b32 v0, 63, v0")
    k("v_readfirstlane_b32 s26, v1")
    VG, VI, VI4, VIM, VL16, VOOB = 1, 2, 3, 4, 5, 6
    k("v_lshrrev_b32 v%d, 4, v0", VG)
    k("v_and_b32 v%d, 15, v0", VI)
    k("v_bfe_u32 v%d, v0, 2, 2", VI4)
    k("v_and_b32 v%d, 3, v0", VIM)
    k("v_lshlrev_b32 v%d, 4, v0", VL16)
    k("v_mov_b32 v%d, 0x%x", VOOB, OOB)
    k("v_cmp_eq_u32 s[30:31], 0, v%d", VG)
    VPB = 16
    VL8 = 8
    k("v_lshlrev_b32 v17, 3, v%d", VI)
    k("v_cndmask_b32 v%d, v%d, v17, s[30:31]", VPB, VOOB)
    k("v_lshlrev_b32 v%d, 3, v0", VL8)
    k("v_and_b32 v17, 1, v%d", VG)
    k("v_cmp_eq_u32 s[42:43], 1, v17")
    VWD = 17
    k("s_mov_b32 s27, 0x%x", (1 << 32) // 9 + 1)
    for i in range(9):
        k("v_add_u32 v40, %d, v0", 64 * i)
        k("v_mul_hi_u32 v41, v40, s27")
        k("v_mul_u32_u24 v42, 9, v41")
        k("v_sub_u32 v42, v40, v42")
        k("v_mul_u32_u24 v41, 1152, v41")
        k("v_lshl_add_u32 v%d, v42, 4, v41", VWD + i)
    VPD = 26
    k("s_mov_b32 s27, 0x%x", (1 << 32) // 18 + 1)
    for i in range(9):
        k("v_add_u32 v40, %d, v0", 64 * i)
        k("v_mul_hi_u32 v41, v40, s27")
        k("v_mul_u32_u24 v42, 18, v41")
        k("v_sub_u32 v42, v40, v42")
        k("v_mul_u32_u24 v41, 9216, v41")
        k("v_lshl_add_u32 v%d, v42, 4, v41", VPD + i)
    VTB, VTB2 = 35, 36
    k("s_mul_i32 s27, s26, %d", WOW)
    k("v_lshl_add_u32 v40, v%d, 2, v%d", VG, VI4)
    k("v_mul_u32_u24 v40, 144, v40")
    k("v_lshl_add_u32 v40, v%d, 3, v40", VIM)
    k("v_add_u32 v%d, s27, v40", VTB)
    k("v_mul_u32_u24 v40, 18, v%d", VG)
    k("v_and_b32 v41, 1, v%d", VI4)
    k("v_lshrrev_b32 v42, 1, v%d", VI4)
    k("v_mul_u32_u24 v42, 72, v42")
    k("v_add3_u32 v40, v40, v41, v42")
    k("v_add_u32 v40, 16, v40")
    k("v_mul_u32_u24 v40, 144, v40")
    k("v_lshl_add_u32 v40, v%d, 3, v40", VIM)
    k("v_add_u32 v%d, s27, v40", VTB2)
    k("v_cmp_gt_u32 s[44:45], 32, v0")
    VXR = 37
    k("s_mul_i32 s53, s26, 2304")
    k("s_add_u32 s53, s53, %d", XL)
    k("v_mul_u32_u24 v40, 144, v%d", VI)
    k("v_lshl_add_u32 v40, v%d, 3, v40", VG)
    k("v_add_u32 v%d, s53, v40", VXR)
    k("s_waitcnt lgkmcnt(0)")
    k.srd(64, 4, 5, G.SZ_KV, G.WS_KV)
    k.srd(68, 4, 5, G.SZ_PQA, G.WS_PQA)
    k.srd(72, 4, 5, G.SZ_PQB, G.WS_PQB)
    k.srd(76, 8, 9, G.D * G.D * 2)
    k.srd(80, 6, 7, G.SZ_H)
    k("s_cmp_eq_u32 s22, 0")
    k("s_cselect_b32 s84, s12, s14")
    k("s_cselect_b32 s85, s13, s15")
    k("s_mov_b32 s86, 0x%x", G.D * G.F * 2)
    k("s_mov_b32 s87, 0x20000")
    G.stamp(k)
    KVR = 48
    PQ = 160
    PB2 = 224
    k("v_mov_b32 v47, v255")
    k("s_mul_i32 s54, s26, %d", 4 * 7168)
    k("s_lshl_b32 s28, s25, 6")
    k("s_lshl_b32 s29, s26, 2")
    k("s_add_u32 s28, s28, s29")
    k("s_lshl_b32 s55, s28, 10")
    k("s_lshl_b32 s56, s28, 7")
    k("s_mul_i32 s57, s26, %d", 144 * 1152)
    k("s_mul_i32 s29, s24, 144")
    k("s_add_u32 s57, s57, s29")
    k("s_mul_i32 s58, s23, 144")
    k("s_mul_i32 s29, s26, 36")
    k("s_add_u32 s58, s58, s29")
    k("s_mul_i32 s58, s58, 9216")
    k("s_mul_i32 s29, s21, 288")
    k("s_add_u32 s58, s58, s29")
    k("s_mul_i32 s59, s26, %d", 36 * 288)
    k("s_lshl_b32 s28, s25, 6")
    k("s_lshl_b32 s29, s26, 4")
    k("s_add_u32 s28, s28, s29")
    k("s_mul_i32 s28, s28, 1152")
    k("s_mul_i32 s29, s24, 144")
    k("s_add_u32 s48, s28, s29")
    rr = [0]

    def sreg():
        rr[0] += 1
        return 60 + rr[0] % 4

    def kv_ops(q):
        ops = []
        for n in range(7):
            def f(n=n):
                r = sreg()
                k("s_add_u32 s%d, s54, %d", r, q * 7168 + n * 1024)
                k.vmem(("KV", q), "buffer_load_dwordx4 %s, v%d, s[64:67], s%d offen", vr(KVR + q * 28 + 4 * n, 4), VL16, r)
            ops.append(f)
        return ops

    def pqa_ops(q):
        ops = []
        for t in range(4):
            def f(t=t):
                r = sreg()
                k("s_add_u32 s%d, s55, %d", r, (t * 16 + q) * 1024)
                k.vmem(("PQ", q), "buffer_load_dwordx4 %s, v%d, s[68:71], s%d offen", vr(PQ + (q * 4 + t) * 4, 4), VL16, r)
            ops.append(f)
        return ops

    def pqb_ops():
        ops = []
        for t in range(4):
            def f(t=t):
                r = sreg()
                k("s_add_u32 s%d, s56, %d", r, t * 2048)
                k.vmem(("PQ", 0), "buffer_load_dwordx2 %s, v%d, s[72:75], s%d offen", vr(PB2 + t * 2, 2), VL8, r)
            ops.append(f)
        return ops

    def wo_ops():
        ops = []
        for i in range(21):
            def f(i=i):
                r = sreg()
                k("s_add_u32 s%d, s57, %d", r, (i // 9) * 64 * 1152)
                k("s_add_u32 m0, s27, %d", i * 1024)
                if i == 20:
                    k("s_mov_b64 exec, 0xffff")
                k.vmem("WO", "buffer_load_dwordx4 v%d, s[76:79], s%d offen lds", VWD + i % 9, r)
                if i == 20:
                    k("s_mov_b64 exec, -1")
            ops.append(f)
        return ops

    def x_ops():
        ops = []
        for i in range(3):
            def f(i=i):
                k("s_add_u32 m0, s53, %d", i * 1024)
                if i == 2:
                    k("s_mov_b64 exec, 0xffff")
                k.vmem("X", "buffer_load_dwordx4 v%d, s[80:83], s48 offen lds", VWD + i)
                if i == 2:
                    k("s_mov_b64 exec, -1")
            ops.append(f)
        return ops

    def prep_ops():
        ops = []
        for i in range(11):
            def f(i=i):
                r = sreg()
                k("s_add_u32 s%d, s58, %d", r, (i // 9) * 32 * 9216)
                k("s_add_u32 m0, s59, %d", PREP + i * 1024)
                if i == 10:
                    k("s_mov_b64 exec, 0xff")
                k.vmem("PR", "buffer_load_dwordx4 v%d, s[84:87], s%d offen lds", VPD + i % 9, r)
                if i == 10:
                    k("s_mov_b64 exec, -1")
            ops.append(f)
        return ops

    for f in kv_ops(0) + pqb_ops() + pqa_ops(0) + kv_ops(1) + pqa_ops(1):
        f()
    pend = kv_ops(2) + pqa_ops(2) + kv_ops(3) + pqa_ops(3) + wo_ops() + prep_ops() + x_ops()

    def tick(n=1):
        for _ in range(n):
            if pend:
                pend.pop(0)()

    G.stamp(k)

    def dregs(n):
        return (232, 236, 240) if n == 0 else (244, 248, 252)

    def lreg(t, j):
        return 9 + 0 if False else (KVR + t * 28 + (10, 11, 18, 19)[j])

    LR = [9, 10, 11, 12, 13, 14, 15, 38, 39, 40, 41, 42, 43, 44, 45, 46]

    def lreg(t, j):
        return LR[t * 4 + j]

    it = 0
    for q in range(4):
        b = KVR + q * 28
        k.wait_vm([("KV", q)])
        cv = lambda d, s_: k("v_cvt_pk_bf16_f32 v%d, v%d, v%d", d, s_, s_ + 1)
        cv(b + 0, b + 0); cv(b + 1, b + 2); cv(b + 2, b + 4); cv(b + 3, b + 6)
        cv(b + 6, b + 8); cv(b + 7, b + 10)
        k("v_mov_b32 v%d, 0", b + 4)
        k("v_mov_b32 v%d, 0", b + 5)
        tick()
        cv(b + 8, b + 12); cv(b + 9, b + 14)
        cv(b + 12, b + 16); cv(b + 13, b + 18); cv(b + 14, b + 20); cv(b + 15, b + 22)
        cv(b + 16, b + 24); cv(b + 17, b + 26)
        tick()
        k.wait_vm([("PQ", q)])
        for t in range(4):
            p = PQ + (q * 4 + t) * 4
            pb = PB2 + t * 2
            d0, d1, d2 = dregs(it % 2)
            it += 1
            k("v_mfma_f32_16x16x32_bf16 %s, %s, %s, 0", vr(d2, 4), vr(b + 12, 4), vr(p, 4))
            k("v_mfma_f32_16x16x32_bf16 %s, %s, %s, 0", vr(d1, 4), vr(b + 4, 4), vr(p, 4))
            k("v_mfma_f32_16x16x32_bf16 %s, %s, %s, 0", vr(d0, 4), vr(b, 4), vr(p, 4))
            k("v_mfma_f32_16x16x16_bf16 %s, %s, %s, %s", vr(d2, 4), vr(b + 16, 2), vr(pb, 2), vr(d2, 4))
            k("v_mfma_f32_16x16x16_bf16 %s, %s, %s, %s", vr(d1, 4), vr(b + 8, 2), vr(pb, 2), vr(d1, 4))
            tick(3)
            k("v_add_f32 v%d, 0x%08x, v%d", b + 20, G.f32bits(1e-6), d2 + 2)
            k("v_add_f32 v%d, 0x%08x, v%d", b + 21, G.f32bits(1e-6), d2 + 3)
            k("v_rcp_f32 v%d, v%d", b + 20, b + 20)
            k("v_rcp_f32 v%d, v%d", b + 21, b + 21)
            tick()
            k("v_cndmask_b32 v%d, v%d, v%d, s[42:43]", b + 22, b + 20, b + 21)
            for j in range(4):
                k("v_mul_f32 v%d, v%d, v%d", d0 + j, d0 + j, b + 20)
            for j in range(4):
                k("v_mul_f32 v%d, v%d, v%d", d1 + j, d1 + j, b + 21)
            l0, l1 = lreg(t, 2 * (q // 2)), lreg(t, 2 * (q // 2) + 1)
            if q % 2 == 0:
                k("v_mul_f32 v%d, v%d, v%d", l0, d2, b + 22)
                k("v_mul_f32 v%d, v%d, v%d", l1, d2 + 1, b + 22)
            else:
                k("v_fmac_f32 v%d, v%d, v%d", l0, d2, b + 22)
                k("v_fmac_f32 v%d, v%d, v%d", l1, d2 + 1, b + 22)
            k("v_cvt_pk_bf16_f32 v%d, v%d, v%d", p, d0, d0 + 1)
            k("v_cvt_pk_bf16_f32 v%d, v%d, v%d", p + 1, d0 + 2, d0 + 3)
            k("v_cvt_pk_bf16_f32 v%d, v%d, v%d", p + 2, d1, d1 + 1)
            k("v_cvt_pk_bf16_f32 v%d, v%d, v%d", p + 3, d1 + 2, d1 + 3)
    tick(100)
    for t in range(4):
        p = PB2 + t * 2
        k("v_cvt_pk_bf16_f32 v%d, v%d, v%d", p, lreg(t, 0), lreg(t, 1))
        k("v_cvt_pk_bf16_f32 v%d, v%d, v%d", p + 1, lreg(t, 2), lreg(t, 3))
    G.stamp(k)
    k.wait_vm(["WO"])
    WB = 48
    fr = []
    for mu in range(5):
        for kap in range(5):
            fr.append((mu, kap))
    NB = 6
    def rd(n):
        mu, kap = fr[n]
        b = WB + n * 4
        if kap < 4:
            k.lds(("W", n), "ds_read_b64_tr_b16 %s, v%d offset:%d", vr(b, 2), VTB, kap * 5184 + mu * 32)
            k.lds(("W", n), "ds_read_b64_tr_b16 %s, v%d offset:%d", vr(b + 2, 2), VTB, kap * 5184 + mu * 32 + 2592)
        else:
            k.lds(("W", n), "ds_read_b64_tr_b16 %s, v%d offset:%d", vr(b, 2), VTB2, mu * 32)
    nr = 0
    for n, (mu, kap) in enumerate(fr):
        while nr <= min(n + NB, len(fr) - 1):
            rd(nr)
            nr += 1
        k.wait_lg([("W", n)])
        b = WB + n * 4
        for t in range(4):
            a = ar((mu * 4 + t) * 4, 4)
            if kap < 4:
                k("v_mfma_f32_16x16x32_bf16 %s, %s, %s, %s", a, vr(b, 4), vr(PQ + (kap * 4 + t) * 4, 4), "0" if kap == 0 else a)
            else:
                k("v_mfma_f32_16x16x16_bf16 %s, %s, %s, %s", a, vr(b, 2), vr(PB2 + t * 2, 2), a)
    G.stamp(k)
    for t in range(4):
        lab = k.newlabel("skipw")
        k("s_cmp_eq_u32 s26, %d", t)
        k("s_cbranch_scc1 %s", lab)
        k("s_sub_u32 s28, %d, s26", t + 3)
        k("s_and_b32 s28, s28, 3")
        k("s_mul_i32 s28, s28, 5120")
        k("s_add_u32 s28, s28, s27")
        k("v_add_u32 v28, s28, v%d", VL16)
        for mu in range(5):
            k("ds_write_b128 v28, %s offset:%d", ar((mu * 4 + t) * 4, 4), mu * 1024)
        k.label(lab)
    VS = 48
    done = k.newlabel("own_done")
    for t in range(4):
        lab = k.newlabel("own")
        k("s_cmp_lg_u32 s26, %d", t)
        k("s_cbranch_scc1 %s", lab)
        for mu in range(5):
            for j in range(4):
                k("v_accvgpr_read_b32 v%d, a%d", VS + mu * 4 + j, (mu * 4 + t) * 4 + j)
        k("s_branch %s", done)
        k.label(lab)
    k.label(done)
    k.wait_vm(["PR", "X"])
    k("s_waitcnt lgkmcnt(0)")
    k.lg.ops = []
    k("s_barrier")
    G.stamp(k)
    k.srd(64, 4, 5, G.SZ_WF, G.WS_WF)
    k.srd(68, 4, 5, G.SZ_CS, G.WS_CS)
    k("v_lshrrev_b32 v40, 1, v%d", VG)
    k("v_and_b32 v41, 1, v%d", VG)
    k("s_lshl_b32 s28, s26, 1")
    k("v_add_u32 v40, s28, v40")
    k("v_lshl_add_u32 v42, v41, 3, v%d", VI4)
    k("v_mul_u32_u24 v42, 288, v42")
    k("v_lshl_add_u32 v42, v%d, 3, v42", VIM)
    k("v_add_u32 v42, %d, v42", PREP)
    k("v_lshl_add_u32 v44, v40, 5, v42")
    k("v_mul_u32_u24 v45, %d, v40", 16 * 288)
    k("v_add_u32 v45, v45, v42")
    k("s_lshl_b32 s28, s22, 4")
    k("v_lshl_add_u32 v43, v41, 5, v%d", VI)
    k("v_add_u32 v43, s28, v43")
    k("v_lshlrev_b32 v43, 4, v43")
    k("v_mul_u32_u24 v46, 36864, v40")
    k("v_add_u32 v46, v46, v43")
    k("v_lshl_add_u32 v38, v40, 10, v43")
    k("v_cmp_eq_u32 vcc, 0, v40")
    k("v_cndmask_b32 v39, v%d, v43, vcc", VOOB)
    k("s_mul_i32 s28, s21, 324")
    k("s_mul_i32 s29, s23, 9")
    k("s_add_u32 s28, s28, s29")
    k("s_lshl_b32 s51, s28, 10")
    k("v_lshrrev_b32 v9, 1, v%d", VG)
    k("v_mov_b32 v10, 0x3f803f80")
    k("v_cmp_eq_u32 s[46:47], v9, v%d", VI)
    k("v_cmp_eq_u32 s[60:61], 0, v%d", VI)
    k("s_and_b64 s[62:63], s[60:61], vcc")
    for j in range(4):
        k("v_cndmask_b32 v%d, 0, v10, s[46:47]", 232 + j)
        k("v_cndmask_b32 v%d, 0, v10, s[60:61]", 236 + j)
        k("v_cndmask_b32 v%d, 0, v10, s[62:63]", 240 + j)
    PB = 160
    for it in range(11):
        b = PB + it * 4
        if it < 9:
            ad, off = 44, it * 16 * 288
        elif it == 9:
            ad, off = 45, 256
        else:
            ad, off = 42, 8 * 16 * 288 + 256
        k.lds(("PT", it), "ds_read_b64_tr_b16 %s, v%d offset:%d", vr(b, 2), ad, off)
        k.lds(("PT", it), "ds_read_b64_tr_b16 %s, v%d offset:%d", vr(b + 2, 2), ad, off + 1152)
        if it >= 5:
            j2 = it - 5
            k.wait_lg([("PT", j2)])
            b2 = PB + j2 * 4
            k("s_add_u32 s%d, s51, %d", 60 + j2 % 2, j2 * 1024)
            k("buffer_store_dwordx4 %s, v46, s[64:67], s%d offen sc1", vr(b2, 4), 60 + j2 % 2)
            k("v_mfma_f32_16x16x32_bf16 v[244:247], %s, v[232:235], %s", vr(b2, 4), "0" if j2 == 0 else "v[244:247]")
    for j2 in range(6, 11):
        k.wait_lg([("PT", j2)])
        b2 = PB + j2 * 4
        if j2 < 9:
            k("s_add_u32 s%d, s51, %d", 60 + j2 % 2, j2 * 1024)
            k("buffer_store_dwordx4 %s, v46, s[64:67], s%d offen sc1", vr(b2, 4), 60 + j2 % 2)
            k("v_mfma_f32_16x16x32_bf16 v[244:247], %s, v[232:235], v[244:247]", vr(b2, 4))
        elif j2 == 9:
            k("s_add_u32 s60, s51, %d", 8 * 36864)
            k("buffer_store_dwordx4 %s, v38, s[64:67], s60 offen sc1", vr(b2, 4))
            k("v_mfma_f32_16x16x32_bf16 v[248:251], %s, v[236:239], 0", vr(b2, 4))
        else:
            k("s_add_u32 s61, s51, %d", 8 * 36864 + 8 * 1024)
            k("buffer_store_dwordx4 %s, v39, s[64:67], s61 offen sc1", vr(b2, 4))
            k("v_mfma_f32_16x16x32_bf16 v[248:251], %s, v[240:243], v[248:251]", vr(b2, 4))
    k("s_lshl_b32 s28, s22, 1")
    k("v_add_u32 v9, s28, v9")
    k("v_lshlrev_b32 v9, 2, v9")
    k("v_lshl_add_u32 v9, v41, 4, v9")
    k("v_lshlrev_b32 v9, 2, v9")
    k("v_lshl_add_u32 v10, v%d, 7, v9", VI)
    k("v_cmp_gt_u32 vcc, 2, v%d", VI)
    k("v_cndmask_b32 v10, v%d, v10, vcc", VOOB)
    k("v_cmp_eq_u32 vcc, 0, v%d", VI)
    k("v_cndmask_b32 v9, v%d, v9, vcc", VOOB)
    k("s_mul_i32 s28, s21, 1152")
    k("s_lshl_b32 s29, s26, 8")
    k("s_add_u32 s29, s29, s28")
    k("s_add_u32 s28, s28, 1024")
    for j in range(4):
        k("buffer_atomic_add_f32 v%d, v10, s[68:71], s29 offen offset:%d", 244 + j, 4 * j)
    for j in range(4):
        k("buffer_atomic_add_f32 v%d, v9, s[68:71], s28 offen offset:%d", 248 + j, 4 * j)
    k.lg.ops = []
    VR = 80
    VX = 18
    for mu in range(5):
        k("ds_read_b64 %s, v%d offset:%d", vr(VX + 2 * mu, 2), VXR, mu * 32)
    for d in range(1, 4):
        k("s_add_u32 s28, s26, %d", d)
        k("s_and_b32 s28, s28, 3")
        k("s_mul_i32 s28, s28, %d", WOW)
        k("v_add_u32 v%d, s28, v%d", 28 + d, VL16)
        for mu in range(5):
            k("ds_read_b128 %s, v%d offset:%d", vr(VR + ((d - 1) * 5 + mu) * 4, 4), 28 + d, (3 - d) * 5120 + mu * 1024)
    for d in range(3):
        k("s_waitcnt lgkmcnt(%d)", 10 - 5 * d)
        for j in range(20):
            k("v_add_f32 v%d, v%d, v%d", VS + j, VS + j, VR + d * 20 + j)
    k.srd(64, 4, 5, G.SZ_HT, G.WS_HT)
    k.srd(68, 4, 5, G.SZ_H, G.WS_HF)
    k("s_lshl_b32 s28, s25, 3")
    k("s_add_u32 s28, s28, s24")
    k("s_lshl_b32 s28, s28, 2")
    k("s_add_u32 s28, s28, s26")
    k("s_mul_i32 s48, s28, 2560")
    k.srd(72, 4, 5, G.SZ_STAT, G.WS_STAT)
    k("s_mul_i32 s28, s24, 72")
    k("v_lshl_add_u32 v28, v%d, 2, s28", VG)
    k("v_lshrrev_b32 v29, 4, v28")
    k("v_bfe_u32 v30, v28, 3, 1")
    k("v_bfe_u32 v31, v28, 2, 1")
    k("v_lshlrev_b32 v29, 6, v29")
    k("v_lshl_add_u32 v29, v30, 5, v29")
    k("s_and_b32 s28, s26, 1")
    k("s_lshl_b32 s28, s28, 4")
    k("v_add3_u32 v29, v29, v%d, s28", VI)
    k("v_lshlrev_b32 v29, 4, v29")
    k("v_lshl_add_u32 v32, v31, 3, v29")
    k("v_cndmask_b32 v33, v%d, v32, s[44:45]", VOOB)
    k("s_lshl_b32 s28, s25, 1")
    k("s_lshr_b32 s29, s26, 1")
    k("s_add_u32 s28, s28, s29")
    k("s_mul_i32 s49, s28, 36864")
    k("s_add_u32 s50, s49, 4096")
    k("v_mov_b32 v34, 0")
    k("v_mov_b32 v39, 0")
    for mu in range(5):
        b = VS + mu * 4
        k("v_cvt_pk_bf16_f32 v40, v%d, v%d", b, b + 1)
        k("v_cvt_pk_bf16_f32 v41, v%d, v%d", b + 2, b + 3)
        k("v_lshlrev_b32 v%d, 16, v40", b)
        k("v_and_b32 v%d, 0xffff0000, v40", b + 1)
        k("v_lshlrev_b32 v%d, 16, v41", b + 2)
        k("v_and_b32 v%d, 0xffff0000, v41", b + 3)
        x = VX + mu * 2
        k("v_lshlrev_b32 v40, 16, v%d", x)
        k("v_and_b32 v41, 0xffff0000, v%d", x)
        k("v_lshlrev_b32 v42, 16, v%d", x + 1)
        k("v_and_b32 v43, 0xffff0000, v%d", x + 1)
        for j in range(4):
            k("v_add_f32 v%d, v%d, v%d", b + j, b + j, 40 + j)
        k("v_cvt_pk_bf16_f32 v%d, v%d, v%d", x, b, b + 1)
        k("v_cvt_pk_bf16_f32 v%d, v%d, v%d", x + 1, b + 2, b + 3)
        k("buffer_store_dwordx2 %s, v%d, s[64:67], s48 offen offset:%d sc1", vr(x, 2), VL8, mu * 512)
        k("buffer_store_dwordx2 %s, v%d, s[68:71], s%d offen offset:%d sc1", vr(x, 2), 32 if mu < 4 else 33,
          49 if mu < 4 else 50, (mu % 4) * 1024)
        if mu == 4:
            k("v_cndmask_b32 v40, 0, v%d, s[44:45]", x)
            k("v_cndmask_b32 v41, 0, v%d, s[44:45]", x + 1)
            src = (40, 41)
        else:
            src = (x, x + 1)
        k("v_mov_b32 v42, 0x3f803f80")
        for sreg in src:
            k("v_dot2_f32_bf16 v34, v%d, v42, v34", sreg)
            k("v_dot2_f32_bf16 v39, v%d, v%d, v39", sreg, sreg)
    for xr in (16, 32):
        k("v_xor_b32 v40, %d, v0", xr)
        k("v_lshlrev_b32 v40, 2, v40")
        k("ds_bpermute_b32 v41, v40, v34")
        k("ds_bpermute_b32 v42, v40, v39")
        k("s_waitcnt lgkmcnt(0)")
        k("v_add_f32 v34, v34, v41")
        k("v_add_f32 v39, v39, v42")
    k("v_mov_b32 v35, v39")
    k("s_lshl_b32 s28, s24, 14")
    k("s_lshl_b32 s29, s25, 9")
    k("s_add_u32 s28, s28, s29")
    k("s_lshl_b32 s29, s26, 7")
    k("s_add_u32 s28, s28, s29")
    k("buffer_store_dwordx2 v[34:35], v%d, s[72:75], s28 offen", VPB)
    if G.STAMP:
        G.stamp(k)
        k("s_waitcnt vmcnt(0)")
        G.stamp(k)
        G.stamp_dump(k, 4, 5, 26)
    k.label(end)
    k("s_endpgm")
    return k.finish(256, 80, 102), "k2_kernel grid=(256,1,1) block=(256,1,1) lds=%d" % LDS_TOTAL
```

```python
from asmfw import K, vr, ar, sr
import gen as G


def gen():
    k = K("k4_kernel")
    end = G.prologue_exit(k, 256, 1, (230, 231), 16)
    k("s_load_dwordx2 s[4:5], s[0:1], %d", G.KA_WS)
    k("s_load_dwordx2 s[6:7], s[0:1], %d", G.KA_OUT)
    k("s_and_b32 s20, s2, 7")
    k("s_lshr_b32 s21, s2, 3")
    k("s_and_b32 s24, s21, 7")
    k("s_lshr_b32 s25, s21, 3")
    k("s_lshl_b32 s20, s20, 2")
    k("s_add_u32 s25, s25, s20")
    k("v_lshrrev_b32 v1, 6, v0")
    k("v_and_b32 v0, 63, v0")
    k("v_readfirstlane_b32 s26, v1")
    VL16 = 2
    VHALF = 3
    k("v_lshlrev_b32 v%d, 4, v0", VL16)
    k("v_lshrrev_b32 v4, 4, v0")
    k("v_and_b32 v5, 15, v0")
    k("v_lshl_add_u32 v4, v4, 3, v5")
    k("v_lshlrev_b32 v4, 4, v4")
    k("v_mov_b32 v6, 0x7f000000")
    k("v_cmp_gt_u32 vcc, 8, v5")
    k("v_cndmask_b32 v%d, v6, v4, vcc", VHALF)
    k("s_waitcnt lgkmcnt(0)")
    k.srd(8, 4, 5, G.SZ_ACT, G.WS_ACT)
    k.srd(12, 4, 5, G.SZ_WDF, G.WS_WDF)
    k.srd(44, 4, 5, G.SZ_HT, G.WS_HT)
    k.srd(48, 6, 7, G.SZ_H)
    G.stamp(k)
    G.stamp(k, True)
    k("s_mul_i32 s28, s25, %d", 4 * 144)
    k("s_mul_i32 s29, s26, 36")
    k("s_add_u32 s30, s28, s29")
    k("s_lshl_b32 s30, s30, 10")
    k("s_mul_i32 s31, s24, 144")
    k("s_add_u32 s31, s31, s29")
    k("s_mul_i32 s31, s31, 4608")

    NSET = 6
    PF = 5
    NK = 36
    VB = 16

    def wreg(ks, mu):
        return VB + (ks % NSET) * 36 + mu * 4

    def areg(ks, t):
        return VB + (ks % NSET) * 36 + 20 + t * 4

    def load_ops(ks):
        if ks >= NK:
            return []
        a, w = [], []
        sa = 32 + (ks % 2) * 4
        for t in range(4):
            def f(t=t):
                k("s_add_u32 s%d, s30, %d", sa + t, (t * 144 + ks) * 1024)
                k.vmem(("L", ks), "buffer_load_dwordx4 %s, v%d, s[8:11], s%d offen", vr(areg(ks, t), 4), VL16, sa + t)
            a.append(f)
        for mu in range(5):
            def f(mu=mu):
                sw = 52 + (ks % 2) * 2 + mu // 4
                if mu % 4 == 0:
                    k("s_add_u32 s%d, s31, %d", sw, ks * 4608 + (mu // 4) * 4096)
                k.vmem(("L", ks), "buffer_load_dwordx4 %s, v%d, s[12:15], s%d offen offset:%d",
                       vr(wreg(ks, mu), 4), VL16 if mu < 4 else VHALF, sw, (mu % 4) * 1024)
            w.append(f)
        return [a[0], w[0], a[1], a[2], a[3]] + w[1:]

    for ks in range(PF):
        for f in load_ops(ks):
            f()
    for ks in range(NK):
        pend = load_ops(ks + PF)
        k.wait_vm([("L", ks)])
        n = 0
        for mu in range(5):
            for t in range(4):
                a = (mu * 4 + t) * 4
                c = "0" if ks == 0 else ar(a, 4)
                k("v_mfma_f32_16x16x32_bf16 %s, %s, %s, %s", ar(a, 4), vr(wreg(ks, mu), 4), vr(areg(ks, t), 4), c)
                n += 1
                if pend and n % 2 == 0:
                    pend.pop(0)()
        for f in pend:
            f()
        if ks in (0, 17):
            G.stamp(k)
        if ks == NK - PF:
            VHO = 5
            k("v_and_b32 v6, 15, v0")
            k("v_lshrrev_b32 v7, 4, v0")
            k("v_mul_u32_u24 v6, 1152, v6")
            k("v_lshl_add_u32 v%d, v7, 3, v6", VHO)
            k("v_mov_b32 v6, 0x7f000000")
            k("v_cmp_gt_u32 vcc, 32, v0")
            k("v_cndmask_b32 v4, v6, v%d, vcc", VHO)
            k("s_lshl_b32 s28, s25, 6")
            k("s_lshl_b32 s29, s26, 4")
            k("s_add_u32 s28, s28, s29")
            k("s_mul_i32 s28, s28, 1152")
            k("s_mul_i32 s29, s24, 144")
            k("s_add_u32 s40, s28, s29")
            VH = 6
            k("s_lshl_b32 s28, s25, 3")
            k("s_add_u32 s28, s28, s24")
            k("s_lshl_b32 s28, s28, 2")
            k("s_add_u32 s28, s28, s26")
            k("s_mul_i32 s41, s28, 2560")
            k("v_lshlrev_b32 v1, 3, v0")
            for mu in range(5):
                k.vmem("H", "buffer_load_dwordx2 %s, v1, s[44:47], s41 offen offset:%d", vr(VH + mu * 2, 2), mu * 512)
    G.stamp(k)
    for t in range(4):
        lab = k.newlabel("skipw")
        k("s_cmp_eq_u32 s26, %d", t)
        k("s_cbranch_scc1 %s", lab)
        k("s_sub_u32 s28, s26, %d", t + 1)
        k("s_and_b32 s28, s28, 3")
        k("s_add_u32 s28, s28, %d", t * 3)
        k("s_mul_i32 s28, s28, 5120")
        k("v_add_u32 v1, s28, v%d", VL16)
        for mu in range(5):
            k("ds_write_b128 v1, %s offset:%d", ar((mu * 4 + t) * 4, 4), mu * 1024)
        k.label(lab)
    VS = 40
    done = k.newlabel("own_done")
    for t in range(4):
        lab = k.newlabel("own")
        k("s_cmp_lg_u32 s26, %d", t)
        k("s_cbranch_scc1 %s", lab)
        for mu in range(5):
            for j in range(4):
                k("v_accvgpr_read_b32 v%d, a%d", VS + mu * 4 + j, (mu * 4 + t) * 4 + j)
        k("s_branch %s", done)
        k.label(lab)
    k.label(done)
    k("s_mul_i32 s28, s26, %d", 3 * 5120)
    k("v_add_u32 v1, s28, v%d", VL16)
    k("s_waitcnt lgkmcnt(0)")
    k("s_barrier")
    VR = 80
    for sl in range(3):
        for mu in range(5):
            k("ds_read_b128 %s, v1 offset:%d", vr(VR + (sl * 5 + mu) * 4, 4), sl * 5120 + mu * 1024)
    for sl in range(3):
        k("s_waitcnt lgkmcnt(%d)", 10 - 5 * sl)
        for j in range(20):
            k("v_add_f32 v%d, v%d, v%d", VS + j, VS + j, VR + sl * 20 + j)
    G.stamp(k)
    k("s_waitcnt vmcnt(0)")
    for mu in range(5):
        b = VS + mu * 4
        k("v_cvt_pk_bf16_f32 v60, v%d, v%d", b, b + 1)
        k("v_cvt_pk_bf16_f32 v61, v%d, v%d", b + 2, b + 3)
        k("v_lshlrev_b32 v%d, 16, v60", b)
        k("v_and_b32 v%d, 0xffff0000, v60", b + 1)
        k("v_lshlrev_b32 v%d, 16, v61", b + 2)
        k("v_and_b32 v%d, 0xffff0000, v61", b + 3)
        h = VH + mu * 2
        k("v_lshlrev_b32 v60, 16, v%d", h)
        k("v_and_b32 v61, 0xffff0000, v%d", h)
        k("v_lshlrev_b32 v62, 16, v%d", h + 1)
        k("v_and_b32 v63, 0xffff0000, v%d", h + 1)
        for j in range(4):
            k("v_add_f32 v%d, v%d, v%d", b + j, b + j, 60 + j)
        k("v_cvt_pk_bf16_f32 v%d, v%d, v%d", h, b, b + 1)
        k("v_cvt_pk_bf16_f32 v%d, v%d, v%d", h + 1, b + 2, b + 3)
        k("buffer_store_dwordx2 %s, v%d, s[48:51], s40 offen offset:%d", vr(h, 2), VHO if mu < 4 else 4, mu * 32)
    if G.STAMP:
        k("s_waitcnt vmcnt(0)")
        G.stamp(k)
        G.stamp(k, True)
        G.stamp_dump(k, 4, 5, 26)
    k.label(end)
    k("s_endpgm")
    return k.finish(16 + NSET * 36, 80, 102), "k4_kernel grid=(256,1,1) block=(256,1,1) lds=%d" % (61440)
```

```python
import sys
from asmfw import K, vr, ar, sr

S, D, F = 2048, 576, 4608
WS_KV = 0x3100000
WS_CS = 0x010000
WS_STAT = 0x020000
WS_PQA = 0x040000
WS_PQB = 0x240000
WS_H = 0x280000
WS_HF = 0x4C0000
WS_WF = 0x700000
WS_ACT = 0x1200000
WS_PART = 0x2400000
WS_WDF = 0x2400000
WS_XCH = 0x2A00000
WS_FLAG = 0x3000000
WS_HT = 0x3200000
SZ_HT = 256 * 4 * 2560
SZ_WDF = 4 * 144 * 9216
SZ_XCH = 128 * 4 * 9216
SZ_FLAG = 4096
SZ_KV = 16 * 7168
SZ_CS = 288 * 32 * 4
SZ_STAT = 8 * 2048 * 2 * 4
SZ_PQA = 128 * 16 * 1024
SZ_PQB = 128 * 16 * 128
SZ_H = S * D * 2
SZ_WF = 288 * 36 * 1024
SZ_ACT = 128 * 144 * 1024
SZ_PART = 4 * S * D * 4

KA_X, KA_WQKV, KA_WO, KA_BX, KA_WG, KA_WU, KA_WD, KA_OUT, KA_DBG, KA_WS = [8 * i for i in range(10)]


import struct


def f32bits(x):
    return struct.unpack("<I", struct.pack("<f", x))[0]


STAMP = False
OPT = set()
STMOD = ""
WS_DBG = 0x3600000


def stamp(k, real=False):
    if not STAMP:
        return
    n = getattr(k, "nstamp", 0)
    sb = getattr(k, "sbase", 60)
    k("%s s[%d:%d]", "s_memrealtime" if real else "s_memtime", sb + 2 * n, sb + 1 + 2 * n)
    k("s_waitcnt lgkmcnt(0)")
    k.lg.ops = []
    k.nstamp = n + 1


def stamp_dump(k, ws_lo, ws_hi, swave):
    if not STAMP:
        return
    n = k.nstamp
    k.srd(56, ws_lo, ws_hi, 0x80000, WS_DBG + 0x80000 * (int(k.name[1]) - 1))
    k("s_lshl_b32 s55, s2, 4")
    k("s_add_u32 s55, s55, s%d", swave)
    k("s_lshl_b32 s55, s55, 7")
    k("v_mov_b32 v1, 0")
    for i in range(n):
        k("v_mov_b32 v2, s%d", getattr(k, "sbase", 60) + 2 * i)
        k("buffer_store_dword v2, v1, s[56:59], s55 offen offset:%d", 4 * i)


def prologue_exit(k, nwg, code_kb=0, vtmp=(250, 251), stmp=16):
    end = k.name + "_end"
    k("s_cmp_ge_u32 s2, %d", nwg)
    k("s_cbranch_scc1 %s", end)
    if code_kb and "nocodepf" not in OPT:
        k("s_getpc_b64 s[%d:%d]", stmp, stmp + 1)
        k.label(k.name + "_pc")
        k("v_lshlrev_b32 v%d, 7, v0", vtmp[0])
        k("v_min_u32 v%d, %s-%s_pc, v%d", vtmp[0], end, k.name, vtmp[0])
        k("global_load_dword v%d, v%d, s[%d:%d]", vtmp[1], vtmp[0], stmp, stmp + 1)
    return end


def gen_k5():
    k = K("k5_kernel")
    end = prologue_exit(k, 576)
    k("s_load_dwordx2 s[4:5], s[0:1], %d", KA_WS)
    k("s_load_dwordx2 s[6:7], s[0:1], %d", KA_OUT)
    k("s_lshl_b32 s3, s2, 8")
    k("v_add_u32 v1, s3, v0")
    k("v_lshlrev_b32 v2, 5, v1")
    k("v_lshlrev_b32 v3, 4, v1")
    k("s_waitcnt lgkmcnt(0)")
    k.srd(8, 4, 5, SZ_PART, WS_PART)
    k.srd(12, 4, 5, SZ_H, WS_H)
    k.srd(16, 6, 7, SZ_H)
    k("s_mov_b32 s20, %d", S * D * 4)
    k("s_mov_b32 s21, %d", 2 * S * D * 4)
    k("s_mov_b32 s22, %d", 3 * S * D * 4)
    k("buffer_load_dwordx4 v[4:7], v2, s[8:11], 0 offen")
    k("buffer_load_dwordx4 v[8:11], v2, s[8:11], 0 offen offset:16")
    k("buffer_load_dwordx4 v[12:15], v2, s[8:11], s20 offen")
    k("buffer_load_dwordx4 v[16:19], v2, s[8:11], s20 offen offset:16")
    k("buffer_load_dwordx4 v[20:23], v2, s[8:11], s21 offen")
    k("buffer_load_dwordx4 v[24:27], v2, s[8:11], s21 offen offset:16")
    k("buffer_load_dwordx4 v[28:31], v2, s[8:11], s22 offen")
    k("buffer_load_dwordx4 v[32:35], v2, s[8:11], s22 offen offset:16")
    k("buffer_load_dwordx4 v[36:39], v3, s[12:15], 0 offen")
    k("s_waitcnt vmcnt(5)")
    for j in range(8):
        k("v_add_f32 v%d, v%d, v%d", 4 + j, 4 + j, 12 + j)
    k("s_waitcnt vmcnt(1)")
    for j in range(8):
        k("v_add_f32 v%d, v%d, v%d", 20 + j, 20 + j, 28 + j)
    for j in range(8):
        k("v_add_f32 v%d, v%d, v%d", 4 + j, 4 + j, 20 + j)
    for j in range(4):
        k("v_cvt_pk_bf16_f32 v%d, v%d, v%d", 12 + j, 4 + 2 * j, 5 + 2 * j)
    k("s_waitcnt vmcnt(0)")
    for j in range(4):
        k("v_lshlrev_b32 v%d, 16, v%d", 4 + 2 * j, 12 + j)
        k("v_and_b32 v%d, 0xffff0000, v%d", 5 + 2 * j, 12 + j)
        k("v_lshlrev_b32 v%d, 16, v%d", 20 + 2 * j, 36 + j)
        k("v_and_b32 v%d, 0xffff0000, v%d", 21 + 2 * j, 36 + j)
    for j in range(8):
        k("v_add_f32 v%d, v%d, v%d", 4 + j, 4 + j, 20 + j)
    for j in range(4):
        k("v_cvt_pk_bf16_f32 v%d, v%d, v%d", 12 + j, 4 + 2 * j, 5 + 2 * j)
    k("buffer_store_dwordx4 v[12:15], v3, s[16:19], 0 offen")
    k.label(end)
    k("s_endpgm")
    return k.finish(40, 0, 32), "k5_kernel grid=(576,1,1) block=(256,1,1) lds=0"


def gen_k4old():
    k = K("k4_kernel")
    end = prologue_exit(k, 256)
    SLOT = 36864
    k("s_load_dwordx2 s[4:5], s[0:1], %d", KA_WS)
    k("s_load_dwordx2 s[6:7], s[0:1], %d", KA_WD)
    k("s_and_b32 s20, s2, 7")
    k("s_lshr_b32 s21, s2, 3")
    k("s_and_b32 s22, s20, 3")
    k("s_lshr_b32 s23, s20, 2")
    k("s_and_b32 s24, s21, 3")
    k("s_lshr_b32 s25, s21, 2")
    k("s_lshl_b32 s23, s23, 3")
    k("s_add_u32 s25, s25, s23")
    k("v_lshrrev_b32 v1, 6, v0")
    k("v_and_b32 v0, 63, v0")
    k("v_readfirstlane_b32 s26, v1")
    VD = 8
    k("s_mov_b32 s27, 0x%x", (1 << 32) // 18 + 1)
    for i in range(9):
        k("v_add_u32 v2, %d, v0", 64 * i)
        k("v_mul_hi_u32 v3, v2, s27")
        k("v_mul_u32_u24 v4, 18, v3")
        k("v_sub_u32 v4, v2, v4")
        k("v_mul_u32_u24 v3, 1152, v3")
        k("v_lshl_add_u32 v%d, v4, 4, v3", VD + i)
    VTB = 17
    k("v_lshrrev_b32 v2, 5, v0")
    k("v_bfe_u32 v3, v0, 4, 1")
    k("v_bfe_u32 v4, v0, 2, 2")
    k("v_and_b32 v5, 3, v0")
    k("v_lshlrev_b32 v2, 4, v2")
    k("v_lshl_add_u32 v2, v3, 2, v2")
    k("v_add_u32 v2, v2, v4")
    k("v_mul_u32_u24 v2, 288, v2")
    k("v_lshl_add_u32 v%d, v5, 3, v2", VTB)
    for sl in range(1, 4):
        k("v_add_u32 v%d, %d, v%d", VTB + sl, sl * SLOT, VTB)
    VLANE16 = 21
    k("v_lshlrev_b32 v%d, 4, v0", VLANE16)
    VST = 22
    k("v_and_b32 v2, 15, v0")
    k("v_lshrrev_b32 v3, 4, v0")
    k("v_mul_u32_u24 v2, 2304, v2")
    k("v_lshl_add_u32 v%d, v3, 4, v2", VST)
    k("s_waitcnt lgkmcnt(0)")
    k.srd(8, 4, 5, SZ_ACT, WS_ACT)
    k.srd(12, 6, 7, F * D * 2)
    k.srd(16, 4, 5, SZ_PART, WS_PART)
    k("s_lshl_b32 s28, s25, 3")
    k("s_lshl_b32 s29, s26, 1")
    k("s_add_u32 s28, s28, s29")
    k("s_mul_i32 s28, s28, 144")
    k("s_mul_i32 s29, s22, 36")
    k("s_add_u32 s28, s28, s29")
    k("s_lshl_b32 s28, s28, 10")
    k("s_add_u32 s29, s28, %d", 144 * 1024)
    k("s_mul_i32 s30, s22, 1152")
    k("s_lshl_b32 s31, s26, 5")
    k("s_add_u32 s30, s30, s31")
    k("s_mul_i32 s30, s30, 1152")
    k("s_mul_i32 s31, s24, 288")
    k("s_add_u32 s30, s30, s31")
    k("s_mul_i32 s31, s26, 9216")

    VA = 32
    VW = 128
    NWB = 8
    ACC = 160

    def dma_ops(st):
        if "nodma" in OPT or st >= 9:
            return []
        slot = st % 4
        sreg = 36 + (st % 2)
        ops = []
        for i in range(9):
            def f(i=i):
                if i == 0:
                    k("s_add_u32 s%d, s30, %d", sreg, st * 128 * 1152)
                k("s_add_u32 m0, s31, %d", slot * SLOT + i * 1024)
                k.vmem(("D", st), "buffer_load_dwordx4 v%d, s[12:15], s%d offen lds", VD + i, sreg)
            ops.append(f)
        return ops

    def act_ops(st):
        if "noact" in OPT or st >= 9:
            return []
        base = VA + (st % 3) * 32
        ops = []
        for s in range(4):
            for t in range(2):
                def f(s=s, t=t):
                    if s == 0 and t == 0:
                        k("s_add_u32 s33, s28, %d", st * 4096)
                        k("s_add_u32 s34, s29, %d", st * 4096)
                    k.vmem(("A", st), "buffer_load_dwordx4 %s, v%d, s[8:11], s%d offen offset:%d",
                           vr(base + (s * 2 + t) * 4, 4), VLANE16, 33 + t, s * 1024)
                ops.append(f)
        return ops

    stamp(k)
    stamp(k, True)
    for f in dma_ops(0) + act_ops(0) + dma_ops(1) + act_ops(1) + dma_ops(2):
        f()
    for j in range(72):
        k("v_mov_b32 v%d, 0", ACC + j)

    frags = [(st, s, mu) for st in range(9) for s in range(4) for mu in range(9)]
    AHEAD = 6

    def issue_tr(fi):
        st, s, mu = frags[fi]
        b = VW + (fi % NWB) * 4
        off = s * 9216 + mu * 32
        k.lds(("W", fi), "ds_read_b64_tr_b16 %s, v%d offset:%d", vr(b, 2), VTB + st % 4, off)
        k.lds(("W", fi), "ds_read_b64_tr_b16 %s, v%d offset:%d", vr(b + 2, 2), VTB + st % 4, off + 2304)

    nissued = 0
    pend = []
    for fi, (st, s, mu) in enumerate(frags):
        if s == 0 and mu == 0:
            k.comment("stage %d" % st)
            k.wait_vm([("D", st), ("A", st)])
            k("s_barrier")
            stamp(k)
            d, a = dma_ops(st + 3), act_ops(st + 2)
            pend = []
            while d or a:
                if d:
                    pend.append(d.pop(0))
                if a:
                    pend.append(a.pop(0))
        if "nomfma" in OPT:
            for f in pend:
                f()
            pend = []
            continue
        lim = min(fi + AHEAD, (st + 1) * 36 - 1)
        while nissued <= lim:
            issue_tr(nissued)
            nissued += 1
        k.wait_lg([("W", fi)])
        b = VW + (fi % NWB) * 4
        abase = VA + (st % 3) * 32
        for t in range(2):
            a = ACC + (mu * 2 + t) * 4
            k("v_mfma_f32_16x16x32_bf16 %s, %s, %s, %s", vr(a, 4), vr(b, 4), vr(abase + (s * 2 + t) * 4, 4), vr(a, 4))
        if pend and (fi % 2 == 1):
            pend.pop(0)()
    stamp(k)
    k("s_lshl_b32 s32, s22, 11")
    k("s_lshl_b32 s33, s25, 7")
    k("s_add_u32 s32, s32, s33")
    k("s_lshl_b32 s33, s26, 5")
    k("s_add_u32 s32, s32, s33")
    k("s_mul_i32 s32, s32, 2304")
    k("s_mul_i32 s33, s24, 576")
    k("s_add_u32 s32, s32, s33")
    k("s_add_u32 s33, s32, %d", 16 * 2304)
    for mu in range(9):
        for t in range(2):
            a = ACC + (mu * 2 + t) * 4
            k("buffer_store_dwordx4 %s, v%d, s[16:19], s%d offen offset:%d", vr(a, 4), VST, 32 + t, mu * 64)
    if STAMP:
        k("s_waitcnt vmcnt(0)")
        stamp(k)
        stamp(k, True)
        stamp_dump(k, 4, 5, 26)
    k.label(end)
    k("s_endpgm")
    return k.finish(232, 0, 102), "k4_kernel grid=(256,1,1) block=(256,1,1) lds=%d" % (4 * SLOT)


HEADER = """; Kernarg layout for this problem (80 bytes, ptrs only, base s[0:1]):
"""


def build(kernels):
    texts, descs, launches = [], [], []
    for g in kernels:
        (t, d, nn), l = g()
        texts.append(t)
        descs.append(d)
        launches.append(l)
    out = HEADER
    for l in launches:
        out += "; @launch kernel=%s\n" % l
    out += '.amdgcn_target "amdgcn-amd-amdhsa--gfx950"\n.text\n'
    out += "\n".join(texts) + "\n"
    out += '.section .rodata,"a"\n'
    for d in descs:
        out += ".p2align 6\n" + d + "\n"
    return out


ALL = {}


def main():
    import gen_k1, gen_k2, gen_k3, gen_k4
    global STAMP
    args = sys.argv[2:]
    if "stamp" in args:
        args.remove("stamp")
        STAMP = True
        import gen as _g
        _g.STAMP = True
    for a in list(args):
        if a.startswith("-"):
            args.remove(a)
            OPT.add(a[1:])
            import gen as _g
            _g.OPT.add(a[1:])
            if a[1:] in ("sc1", "nt", "sc0sc1"):
                _g.STMOD = " " + a[1:].replace("sc0sc1", "sc0 sc1")
    names = args if args else ["k1", "k2", "k3", "k4"]
    table = {"k4old": gen_k4old, "k5": gen_k5}
    for mod, nm in ((gen_k1, "k1"), (gen_k2, "k2"), (gen_k3, "k3"), (gen_k4, "k4")):
        if hasattr(mod, "gen"):
            table[nm] = mod.gen
    s = build([table[n] for n in names])
    open(sys.argv[1], "w").write(s)
    print("wrote", sys.argv[1], len(s), "bytes")


if __name__ == "__main__":
    main()
```

```python
from asmfw import K, vr, ar, sr
import gen as G

OOB = 0x7f000000
RSTR = 240
XS = 16384
SL = XS + 64 * RSTR
PREPD = 4 * SL
XCH = 0
XST = 73728
KVX = 77824
KVS = 48 * 208
CSA = KVX + 8 * KVS
STB = CSA + 640
LDS_TOTAL = STB + 1024
LOG2E = 1.4426950408889634


def gen():
    k = K("k1_kernel")
    k.sbase = 88
    end = G.prologue_exit(k, 256, 1, (146, 147), 16)
    k("s_load_dwordx2 s[4:5], s[0:1], %d", G.KA_WS)
    k("s_load_dwordx4 s[8:11], s[0:1], %d", G.KA_X)
    k("s_load_dwordx2 s[14:15], s[0:1], %d", G.KA_DBG)
    k("s_load_dwordx2 s[12:13], s[0:1], %d", G.KA_WO)
    k("s_load_dwordx4 s[72:75], s[0:1], %d", G.KA_WG)
    k("s_and_b32 s25, s2, 3")
    k("s_lshl_b32 s25, s25, 2")
    k("s_bfe_u32 s24, s2, 0x20003")
    k("s_add_u32 s25, s25, s24")
    k("s_bfe_u32 s24, s2, 0x10002")
    k("s_lshl_b32 s24, s24, 3")
    k("s_lshr_b32 s22, s2, 5")
    k("s_add_u32 s24, s24, s22")
    k("s_lshr_b32 s22, s2, 2")
    k("s_and_b32 s23, s2, 3")
    VTID = 1
    k("v_mov_b32 v%d, v0", VTID)
    k("v_lshrrev_b32 v2, 6, v0")
    k("v_and_b32 v0, 63, v0")
    k("v_readfirstlane_b32 s26, v2")
    k("s_and_b32 s20, s26, 3")
    k("s_lshr_b32 s21, s26, 2")
    VG, VI, VI4, VIM, VL16, VOOB = 2, 3, 4, 5, 6, 7
    k("v_lshrrev_b32 v%d, 4, v0", VG)
    k("v_and_b32 v%d, 15, v0", VI)
    k("v_bfe_u32 v%d, v0, 2, 2", VI4)
    k("v_and_b32 v%d, 3, v0", VIM)
    k("v_lshlrev_b32 v%d, 4, v0", VL16)
    k("v_mov_b32 v%d, 0x%x", VOOB, OOB)
    k("v_cmp_eq_u32 s[30:31], 0, v%d", VG)
    for r in (12, 13, 14, 15):
        k("v_mov_b32 v%d, 0", r)
    k("v_lshlrev_b32 v9, 2, v%d", VTID)
    k("v_add_u32 v9, %d, v9", CSA)
    k("v_cmp_gt_u32 vcc, 144, v%d", VTID)
    k("s_and_saveexec_b64 s[28:29], vcc")
    k("ds_write_b32 v9, v12")
    k("s_mov_b64 exec, s[28:29]")
    VXD, VWD, VPD = 16, 18, 20
    k("s_mov_b32 s28, 0x%x", (1 << 32) // 15 + 1)
    k("s_mov_b32 s29, 0x%x", (1 << 32) // 5 + 1)
    k("s_mov_b32 s32, 0x%x", (1 << 32) // 18 + 1)
    for i in range(2):
        k("v_add_u32 v9, %d, v0", 64 * i)
        if i < 2:
            k("v_lshrrev_b32 v10, 3, v9")
            k("v_xor_b32 v11, v9, v10")
            k("v_and_b32 v11, 7, v11")
            k("v_mul_u32_u24 v10, 1152, v10")
            k("v_lshl_add_u32 v%d, v11, 4, v10", VXD + i)
            k("v_mul_hi_u32 v10, v9, s28")
            k("v_mul_u32_u24 v11, 15, v10")
            k("v_sub_u32 v11, v9, v11")
            k("v_mul_hi_u32 v8, v11, s29")
            k("v_mul_u32_u24 v23, 5, v8")
            k("v_sub_u32 v23, v11, v23")
            k("v_mul_u32_u24 v10, 3456, v10")
            k("v_mul_u32_u24 v8, 1152, v8")
            k("v_lshlrev_b32 v23, 4, v23")
            k("v_add3_u32 v%d, v10, v8, v23", VWD + i)
    VTB = 24
    k("v_lshl_add_u32 v11, v%d, 3, v%d", VG, VI4)
    k("v_mul_u32_u24 v11, %d, v11", RSTR)
    k("v_lshl_add_u32 v11, v%d, 3, v11", VIM)
    k("s_and_b32 s27, s24, 1")
    k("s_lshl_b32 s27, s27, 3")
    k("s_add_u32 s27, s27, %d", XS)
    k("s_mul_i32 s28, s21, %d", 32 * RSTR)
    k("s_add_u32 s27, s27, s28")
    k("v_add_u32 v%d, s27, v11", VTB)
    k("v_add_u32 v%d, %d, v%d", VTB + 1, 2 * SL, VTB)
    VXA = 26
    k("s_lshl_b32 s34, s26, 11")
    k("s_lshl_b32 s27, s21, 2")
    k("s_lshl_b32 s28, s20, 12")
    k("s_lshl_b32 s29, s21, 11")
    k("s_add_u32 s28, s28, s29")
    k("v_add_u32 v9, s27, v%d", VG)
    k("v_xor_b32 v9, v9, v%d", VI)
    k("v_and_b32 v9, 7, v9")
    k("v_lshlrev_b32 v9, 4, v9")
    k("v_lshl_add_u32 v9, v%d, 7, v9", VI)
    k("v_add_u32 v%d, s28, v9", VXA)
    k("v_xor_b32 v%d, 0x800, v%d", VXA + 1, VXA)
    k("v_add_u32 v%d, %d, v%d", VXA + 2, 2 * SL, VXA)
    k("v_add_u32 v%d, %d, v%d", VXA + 3, 2 * SL, VXA + 1)
    k("s_waitcnt lgkmcnt(0)")
    k.srd(64, 8, 9, G.SZ_H)
    k.srd(68, 10, 11, G.D * 3 * G.D * 2)
    k.srd(76, 14, 15, 256)
    k.srd(80, 4, 5, G.SZ_KV, G.WS_KV)
    k.srd(84, 4, 5, G.SZ_CS, G.WS_CS)
    G.stamp(k)
    k("s_lshl_b32 s32, s25, 7")
    k("s_lshl_b32 s33, s26, 4")
    k("s_add_u32 s32, s32, s33")
    k("s_mul_i32 s32, s32, 1152")
    k("s_mul_i32 s33, s26, %d", 8 * 3456)
    k("s_mul_i32 s35, s24, 72")
    k("s_and_b32 s35, s35, 0xfffffff0")
    k("s_add_u32 s33, s33, s35")
    k("s_mul_i32 s35, s26, %d", 8 * RSTR)
    k("s_add_u32 s35, s35, %d", XS)

    def slice_ops(j):
        if j >= 9 or "nodma" in G.OPT:
            return []
        ops = []
        slot = (j % 4) * SL
        for i in range(2):
            def fx(i=i):
                if i == 0:
                    k("s_add_u32 s36, s32, %d", j * 128)
                k("s_add_u32 m0, s34, %d", slot + i * 1024)
                k.vmem(("S", j), "buffer_load_dwordx4 v%d, s[64:67], s36 offen lds", VXD + i)

            def fw(i=i):
                if i == 0:
                    k("s_add_u32 s37, s33, %d", j * 64 * 3456)
                k("s_add_u32 m0, s35, %d", slot + i * 1024)
                if i == 1:
                    k("s_mov_b32 exec_hi, 0xffffff")
                k.vmem(("S", j), "buffer_load_dwordx4 v%d, s[68:71], s37 offen lds", VWD + i)
                if i == 1:
                    k("s_mov_b64 exec, -1")
            ops += [fw, fx]
        return ops

    def prep_ops():
        ops = []
        for i in range(3):
            def f(i=i):
                if i == 0:
                    k("s_mul_i32 s38, s22, 72")
                    k("s_mul_i32 s39, s26, 9")
                    k("s_add_u32 s38, s38, s39")
                    k("s_mul_i32 s38, s38, 1152")
                    k("s_mul_i32 s39, s23, 288")
                    k("s_add_u32 s38, s38, s39")
                    k("s_mul_i32 s39, s26, %d", 9 * 288)
                k("s_add_u32 m0, s39, %d", PREPD + i * 1024)
                if i == 2:
                    k("s_mov_b32 exec_hi, 3")
                k.vmem("P", "buffer_load_dwordx4 v%d, s[72:75], s38 offen lds", VPD + i)
                if i == 2:
                    k("s_mov_b64 exec, -1")
            ops.append(f)
        return ops

    for f in slice_ops(0):
        f()
    for f in slice_ops(1) + slice_ops(2):
        f()
    VT = 11
    k("v_mov_b32 v%d, 1", VT)
    k("s_lshl_b32 s29, s24, 2")
    lab = k.newlabel("notk")
    k("s_cmp_lg_u32 s26, 0")
    k("s_cbranch_scc1 %s", lab)
    k("v_lshlrev_b32 v9, 2, v0")
    k("v_cmp_gt_u32 vcc, 36, v0")
    k("v_cndmask_b32 v9, v%d, v9, vcc", VOOB)
    k("s_mul_i32 s38, s2, 144")
    k("buffer_store_dword v12, v9, s[84:87], s38 offen")
    k("s_cmp_lg_u32 s25, 0")
    k("s_cbranch_scc1 %s", lab)
    k("s_mov_b64 exec, 1")
    k("buffer_atomic_add v%d, v12, s[76:79], s29 offen sc0 sc1", VT)
    k("s_mov_b64 exec, -1")
    k.label(lab)

    def zero_stores():
        k("s_mul_i32 s41, s24, 7168")
        k("s_add_u32 s42, s41, 4096")
        for r in range(7):
            k("buffer_store_dwordx4 v[12:15], v%d, s[80:83], s%d offen offset:%d sc0 sc1", VL16, 41 + r // 4, (r % 4) * 1024)

    def flag_store():
        k("v_mov_b32 v31, 1")
        k("s_mov_b64 exec, 1")
        k("buffer_store_dword v31, v12, s[76:79], s29 offen offset:64 sc0 sc1")
        k("s_mov_b64 exec, -1")

    def zero_kv():
        zero_stores()
        k("s_waitcnt vmcnt(0)")
        flag_store()

    k("s_mov_b32 s40, 1")

    for j in range(12):
        k("v_accvgpr_write_b32 a%d, 0", j)
    VONE = 32
    for j in range(4):
        k("v_mov_b32 v%d, 0x3f803f80", VONE + j)
    VS = 36
    XF = 40
    ACC = 56
    PT = 128
    WB, NWB, AH = 28, 18, 6

    side = []

    def S(fmt, *a):
        side.append(lambda: k(fmt, *a))

    def prep_stream():
        S("s_lshl_b32 s41, s26, 2")
        S("v_add_u32 v8, s41, v%d", VG)
        S("v_mul_u32_u24 v9, 288, v%d", VI4)
        S("v_lshl_add_u32 v9, v%d, 3, v9", VIM)
        S("v_add_u32 v9, %d, v9", PREPD)
        S("s_mov_b32 s41, 0x%x", (1 << 32) // 9 + 1)
        S("s_mul_i32 s42, s22, 72")
        S("s_lshl_b32 s43, s23, 1")
        for it in range(6):
            b = PT + (it % 2) * 8
            S("v_add_u32 v10, %d, v8", it * 32)
            S("v_min_u32 v30, 161, v10")
            S("v_mul_hi_u32 v%d, v30, s41", b + 2)
            S("v_mul_u32_u24 v%d, 9, v%d", b + 3, b + 2)
            S("v_sub_u32 v%d, v30, v%d", b + 3, b + 3)
            S("v_mul_u32_u24 v%d, 1152, v%d", b + 4, b + 2)
            S("v_lshl_add_u32 v%d, v%d, 5, v%d", b + 4, b + 3, b + 4)
            S("v_add_u32 v%d, v%d, v9", b + 4, b + 4)
            side.append(lambda b=b, it=it: k.lds(("PT", it), "ds_read_b64_tr_b16 %s, v%d", vr(b, 2), b + 4))
            S("v_lshl_add_u32 v%d, v%d, 2, s42", b + 2, b + 2)
            S("v_lshl_add_u32 v%d, v%d, 4, v%d", b + 3, b + 3, VI)
            S("v_cmp_le_u32 vcc, 72, v%d", b + 3)
            S("v_cndmask_b32 v%d, 0, 1, vcc", b + 5)
            S("v_mul_u32_u24 v%d, 72, v%d", b + 6, b + 5)
            S("v_sub_u32 v%d, v%d, v%d", b + 3, b + 3, b + 6)
            S("v_add_u32 v%d, s43, v%d", b + 5, b + 5)
            S("v_mul_u32_u24 v%d, 144, v%d", b + 5, b + 5)
            S("v_lshrrev_b32 v%d, 5, v%d", b + 6, b + 2)
            S("v_add_u32 v%d, v%d, v%d", b + 5, b + 5, b + 6)
            S("v_mul_u32_u24 v%d, 4608, v%d", b + 5, b + 5)
            S("v_bfe_u32 v%d, v%d, 4, 1", b + 6, b + 2)
            S("v_bfe_u32 v%d, v%d, 2, 1", b + 7, b + 2)
            S("v_lshl_add_u32 v%d, v%d, 1, v%d", b + 6, b + 6, b + 7)
            S("v_bfe_u32 v%d, v%d, 3, 1", b + 7, b + 2)
            S("v_lshl_add_u32 v%d, v%d, 3, v%d", b + 5, b + 7, b + 5)
            S("v_and_b32 v%d, 15, v%d", b + 7, b + 3)
            S("v_lshrrev_b32 v%d, 4, v%d", b + 2, b + 3)
            S("v_lshl_add_u32 v30, v%d, 4, v%d", b + 6, b + 7)
            S("v_lshl_add_u32 v%d, v%d, 3, v%d", b + 7, b + 6, b + 7)
            S("v_cmp_gt_u32 vcc, 4, v%d", b + 2)
            S("v_cndmask_b32 v%d, v%d, v30, vcc", b + 7, b + 7)
            S("v_lshlrev_b32 v%d, 4, v%d", b + 7, b + 7)
            S("v_lshl_add_u32 v%d, v%d, 10, v%d", b + 7, b + 2, b + 7)
            S("v_add_u32 v%d, v%d, v%d", b + 5, b + 5, b + 7)
            if it == 5:
                S("v_cmp_gt_u32 vcc, 162, v10")
                S("v_cndmask_b32 v%d, v%d, v%d, vcc", b + 5, VOOB, b + 5)
            side.append(lambda it=it: k.wait_lg([("PT", it)]))
            side.append(lambda b=b: k.vmem("PS", "buffer_store_dwordx2 %s, v%d, s[44:47], 0 offen sc1", vr(b, 2), b + 5))

    def l2_warm():
        k("s_mov_b32 s38, 0x%x", (1 << 32) // 9 + 1)
        k("s_mov_b32 s39, 0x%x", (1 << 32) // 5 + 1)
        k("v_mul_hi_u32 v20, v%d, s38", VTID)
        k("v_mul_u32_u24 v21, 9, v20")
        k("v_sub_u32 v21, v%d, v21", VTID)
        k("v_mul_u32_u24 v20, 1152, v20")
        k("v_lshl_add_u32 v20, v21, 7, v20")
        k("v_cmp_gt_u32 vcc, 144, v%d", VTID)
        k("v_cndmask_b32 v20, v%d, v20, vcc", VOOB)
        k("s_and_b32 s41, s2, 3")
        k("s_lshl_b32 s41, s41, 9")
        k("s_lshr_b32 s42, s2, 3")
        k("s_lshl_b32 s43, s42, 4")
        k("s_add_u32 s41, s41, s43")
        k("s_mul_i32 s41, s41, 1152")
        k.vmem("PF", "buffer_load_dword v22, v20, s[64:67], s41 offen")
        k("v_subrev_u32 v20, 144, v%d", VTID)
        k("v_mul_hi_u32 v21, v20, s39")
        k("v_mul_u32_u24 v23, 5, v21")
        k("v_sub_u32 v23, v20, v23")
        k("v_mul_u32_u24 v21, 1152, v21")
        k("v_lshl_add_u32 v21, v23, 7, v21")
        k("v_cmp_gt_u32 vcc, 270, v20")
        k("v_cndmask_b32 v21, v%d, v21, vcc", VOOB)
        k("s_mul_i32 s41, s42, %d", 18 * 3456)
        k("s_bfe_u32 s43, s2, 0x10002")
        k("s_lshl_b32 s43, s43, 9")
        k("s_add_u32 s41, s41, s43")
        k.vmem("PF", "buffer_load_dword v23, v21, s[68:71], s41 offen")

    AH = 7
    visible = -1
    nr = 0
    pend = []
    stq = []

    def xread(j):
        xb = XF + (j % 2) * 8
        for t in range(2):
            k.lds(("X", j), "ds_read_b128 %s, v%d offset:%d", vr(xb + t * 4, 4), VXA + 2 * ((j % 4) // 2) + t, (j % 2) * SL)

    def barrier(jn):
        nonlocal visible, pend
        tags = [("S", jn)]
        for f in pend:
            f()
        pend = []
        k.wait_vm(tags)
        if jn == 3:
            lab = k.newlabel("nozero")
            k("s_or_b32 s41, s26, s25")
            k("s_cmp_lg_u32 s41, 0")
            k("s_cbranch_scc1 %s", lab)
            k("v_readfirstlane_b32 s40, v%d", VT)
            k("s_cmp_lg_u32 s40, 0")
            k("s_cbranch_scc1 %s", lab)
            zero_stores()
            k.label(lab)
        if jn == 6:
            lab = k.newlabel("noflag")
            k("s_cmp_lg_u32 s40, 0")
            k("s_cbranch_scc1 %s", lab)
            flag_store()
            k.label(lab)
        k("s_barrier")
        visible = jn
        xread(jn)

    k("s_waitcnt lgkmcnt(0)")
    barrier(0)
    G.stamp(k)
    pend = [l2_warm] + slice_ops(3)
    for n in range(81):
        j, c = divmod(n, 9)
        if c == 2 and j < 8:
            barrier(j + 1)
            if j >= 1:
                pend = slice_ops(j + 3)
            if j in (3,):
                G.stamp(k)
        xb = XF + (j % 2) * 8
        while nr <= min(n + AH, 80) and nr // 9 <= visible:
            j2, c2 = divmod(nr, 9)
            b = WB + (nr % NWB) * 4
            off = (j2 % 2) * SL + (c2 // 3) * 80 + (c2 % 3) * 32
            k.lds(("W", nr), "ds_read_b64_tr_b16 %s, v%d offset:%d", ar(b, 2), VTB + (j2 % 4) // 2, off)
            k.lds(("W", nr), "ds_read_b64_tr_b16 %s, v%d offset:%d", ar(b + 2, 2), VTB + (j2 % 4) // 2, off + 4 * RSTR)
            nr += 1
        k.wait_lg([("W", n), ("X", j)])
        w = ar(WB + (n % NWB) * 4, 4)
        for t in range(2):
            a = vr(ACC + (c * 2 + t) * 4, 4)
            cc = "0" if j == 0 else a
            x = vr(xb + t * 4, 4)
            if c < 3:
                k("v_mfma_f32_16x16x32_bf16 %s, %s, %s, %s", a, w, x, cc)
            else:
                k("v_mfma_f32_16x16x32_bf16 %s, %s, %s, %s", a, x, w, cc)
        if c in (0, 1):
            x = vr(xb + c * 4, 4)
            sa, ga = ar(12 + c * 8, 4), ar(16 + c * 8, 4)
            k("v_mfma_f32_16x16x32_bf16 %s, %s, %s, %s", sa, vr(VONE, 4), x, "0" if j == 0 else sa)
            k("v_mfma_f32_16x16x32_bf16 %s, %s, %s, %s", ga, x, x, "0" if j == 0 else ga)
        if pend:
            pend.pop(0)()
        for _ in range(6):
            if side:
                side.pop(0)()
        if c % 3 == 2:
            lab = k.newlabel("nocs")
            k("s_cmp_lg_u32 s20, %d", c // 3)
            k("s_cbranch_scc1 %s", lab)
            for c2 in range(3):
                w2 = ar(WB + ((n - 2 + c2) % NWB) * 4, 4)
                k("v_mfma_f32_16x16x32_bf16 %s, %s, %s, %s", ar(c2 * 4, 4), vr(VONE, 4), w2, ar(c2 * 4, 4))
            k.label(lab)
    while side:
        side.pop(0)()
    G.stamp(k)
    lab = k.newlabel("nopoll0")
    k("s_cmp_lg_u32 s26, 0")
    k("s_cbranch_scc1 %s", lab)
    k("buffer_load_dword v10, v12, s[76:79], s29 offen offset:64 sc0 sc1")
    k.label(lab)
    if "nopf2" not in G.OPT:
        k("s_bfe_u32 s38, s2, 0x10002")
        k("s_cmp_eq_u32 s38, 0")
        k("s_cselect_b32 s44, s72, s74")
        k("s_cselect_b32 s45, s73, s75")
        k("s_mov_b32 s46, 0x%x", G.D * G.F * 2)
        k("s_mov_b32 s47, 0x20000")
        k("s_and_b32 s38, s2, 3")
        k("s_mul_i32 s38, s38, %d", 144 * 9216)
        k("s_lshr_b32 s39, s2, 3")
        k("s_mul_i32 s41, s39, 288")
        k("s_add_u32 s38, s38, s41")
        k("v_lshrrev_b32 v20, 2, v%d", VTID)
        k("v_and_b32 v21, 3, v%d", VTID)
        k("v_lshlrev_b32 v21, 7, v21")
        k("v_min_u32 v21, 284, v21")
        k("v_mul_u32_u24 v20, 9216, v20")
        k("v_add_u32 v20, v20, v21")
        k("buffer_load_dword v147, v20, s[44:47], s38 offen")
        k("v_cmp_gt_u32 vcc, 64, v%d", VTID)
        k("v_cndmask_b32 v20, v%d, v20, vcc", VOOB)
        k("s_add_u32 s38, s38, %d", 128 * 9216)
        k("buffer_load_dword v147, v20, s[44:47], s38 offen")
        k.srd(48, 12, 13, G.D * G.D * 2)
        k("v_subrev_u32 v20, 64, v%d", VTID)
        k("v_cmp_gt_u32 vcc, 162, v20")
        k("v_lshlrev_b32 v20, 7, v20")
        k("v_cndmask_b32 v20, v%d, v20, vcc", VOOB)
        k("s_mul_i32 s38, s39, 20736")
        k("buffer_load_dword v147, v20, s[48:51], s38 offen")
    lab = k.newlabel("nocsadd")
    k("s_cmp_eq_u32 s20, 3")
    k("s_cbranch_scc1 %s", lab)
    k("s_mul_i32 s38, s20, 192")
    k("s_add_u32 s38, s38, %d", CSA)
    k("v_lshl_add_u32 v8, v%d, 2, s38", VI)
    k("s_mov_b64 exec, s[30:31]")
    for c in range(3):
        k("ds_add_f32 v8, a%d offset:%d", c * 4, c * 64)
    k("s_mov_b64 exec, -1")
    k.label(lab)
    k("v_cmp_eq_u32 s[44:45], 1, v%d", VIM)
    k("v_cmp_eq_u32 s[46:47], 2, v%d", VIM)
    k("v_cmp_eq_u32 s[48:49], 3, v%d", VIM)
    for t in range(2):
        k("v_accvgpr_read_b32 v%d, a%d", VS + 2 * t, 12 + t * 8)
        for jj in range(4):
            k("v_accvgpr_read_b32 v%d, a%d", 16 + jj, 16 + t * 8 + jj)
        k("v_cndmask_b32 v16, v16, v17, s[44:45]")
        k("v_cndmask_b32 v16, v16, v18, s[46:47]")
        k("v_cndmask_b32 v%d, v16, v19, s[48:49]", VS + 2 * t + 1)
    k("s_waitcnt lgkmcnt(0)")
    k.lg.ops = []
    k("s_barrier")
    k("s_mul_i32 s38, s26, 9216")
    k("v_add_u32 v8, s38, v%d", VL16)
    k("s_lshl_b32 s38, s26, 9")
    k("s_add_u32 s38, s38, %d", XST)
    k("v_lshl_add_u32 v9, v0, 3, s38")
    k("ds_write_b64 v9, %s", vr(VS + 2, 2))
    for c in range(9):
        k("ds_write_b128 v8, %s offset:%d", vr(ACC + (c * 2 + 1) * 4, 4), XCH + c * 1024)
    CQ = 128
    CK = 140
    RS = 48
    k("v_lshlrev_b32 v16, 4, v%d", VG)
    k("v_add_u32 v16, %d, v16", CSA)
    k("v_lshlrev_b32 v17, 2, v%d", VI)
    k("v_add_u32 v17, %d, v17", CSA)
    for c in range(3):
        k("ds_read_b128 %s, v16 offset:%d", vr(CQ + c * 4, 4), c * 64)
    for c in range(3, 9):
        k("ds_read_b32 v%d, v17 offset:%d", CK + c - 3, c * 64)
    k("s_xor_b32 s38, s26, 4")
    k("s_mul_i32 s39, s38, 9216")
    k("v_add_u32 v8, s39, v%d", VL16)
    k("s_lshl_b32 s38, s38, 9")
    k("s_add_u32 s38, s38, %d", XST)
    k("v_lshl_add_u32 v9, v0, 3, s38")
    k("s_waitcnt lgkmcnt(0)")
    k("s_barrier")
    G.stamp(k)
    k("ds_read_b64 %s, v9", vr(VS + 2, 2))
    for c in range(9):
        k("ds_read_b128 %s, v8 offset:%d", vr(ACC + c * 8 + 4, 4), XCH + c * 1024)
    k("s_waitcnt lgkmcnt(9)")
    k("v_add_f32 v%d, v%d, v%d", VS, VS, VS + 2)
    k("v_add_f32 v%d, v%d, v%d", VS + 2, VS + 1, VS + 3)
    k("v_lshl_add_u32 v8, v%d, 4, v%d", VI4, VI)
    k("v_lshlrev_b32 v8, 2, v8")
    k("ds_bpermute_b32 v%d, v8, v%d", VS + 2, VS + 2)
    k("s_waitcnt lgkmcnt(0)")
    b = VS
    k("v_mul_f32 v%d, 0x%08x, v%d", b, G.f32bits(1.0 / 576), b)
    k("v_mul_f32 v%d, 0x%08x, v%d", b + 2, G.f32bits(1.0 / 576), b + 2)
    k("v_fma_f32 v%d, -v%d, v%d, v%d", b + 2, b, b, b + 2)
    k("v_max_f32 v%d, 0, v%d", b + 2, b + 2)
    k("v_cvt_pk_bf16_f32 v%d, v%d, v%d", b + 3, b, b + 2)
    k("v_lshlrev_b32 v%d, 16, v%d", b, b + 3)
    k("v_and_b32 v%d, 0xffff0000, v%d", b + 2, b + 3)
    k("v_add_f32 v%d, 0x%08x, v%d", b + 2, G.f32bits(1e-5), b + 2)
    k("v_cvt_pk_bf16_f32 v%d, v%d, v%d", b + 3, b + 2, b + 2)
    k("v_lshlrev_b32 v%d, 16, v%d", b + 2, b + 3)
    k("v_sqrt_f32 v%d, v%d", b + 2, b + 2)
    k("v_sub_f32 v%d, 0, v%d", b, b)
    k("v_cvt_pk_bf16_f32 v%d, v%d, v%d", b + 3, b + 2, b + 2)
    k("v_lshlrev_b32 v%d, 16, v%d", b + 2, b + 3)
    k("v_rcp_f32 v%d, v%d", b + 1, b + 2)
    k("s_lshl_b32 s38, s26, 7")
    k("s_add_u32 s38, s38, %d", STB)
    k("v_lshl_add_u32 v8, v%d, 3, s38", VI)
    k("s_mov_b64 exec, s[30:31]")
    k("ds_write_b64 v8, %s", vr(VS, 2))
    k("s_mov_b64 exec, -1")
    for c in range(9):
        for jj in range(4):
            k("v_add_f32 v%d, v%d, v%d", ACC + c * 8 + jj, ACC + c * 8 + jj, ACC + c * 8 + 4 + jj)
    k("v_lshl_add_u32 v8, v%d, 5, s38", VG)
    k("s_waitcnt lgkmcnt(0)")
    k("ds_read_b128 %s, v8", vr(RS, 4))
    k("ds_read_b128 %s, v8 offset:16", vr(RS + 4, 4))

    T0 = 16

    def bf16round4(regs):
        k("v_cvt_pk_bf16_f32 v%d, v%d, v%d", T0, regs[0], regs[1])
        k("v_cvt_pk_bf16_f32 v%d, v%d, v%d", T0 + 1, regs[2], regs[3])
        k("v_lshlrev_b32 v%d, 16, v%d", regs[0], T0)
        k("v_and_b32 v%d, 0xffff0000, v%d", regs[1], T0)
        k("v_lshlrev_b32 v%d, 16, v%d", regs[2], T0 + 1)
        k("v_and_b32 v%d, 0xffff0000, v%d", regs[3], T0 + 1)

    def phi4(regs):
        for j, r in enumerate(regs):
            k("v_min_f32 v%d, 0, v%d", T0 + 4 + j, r)
        for j, r in enumerate(regs):
            k("v_mul_f32 v%d, 0x%08x, v%d", T0 + 4 + j, G.f32bits(LOG2E), T0 + 4 + j)
        for j, r in enumerate(regs):
            k("v_exp_f32 v%d, v%d", T0 + 4 + j, T0 + 4 + j)
        for j, r in enumerate(regs):
            k("v_max_f32 v%d, 0, v%d", r, r)
        for j, r in enumerate(regs):
            k("v_add_f32 v%d, v%d, v%d", r, r, T0 + 4 + j)
        for j, r in enumerate(regs):
            k("v_add_f32 v%d, 0x%08x, v%d", r, G.f32bits(1e-6), r)

    k.srd(64, 4, 5, G.SZ_PQA, G.WS_PQA)
    k.srd(68, 4, 5, G.SZ_PQB, G.WS_PQB)
    k("s_lshl_b32 s38, s25, 3")
    k("s_lshl_b32 s39, s20, 1")
    k("s_add_u32 s38, s38, s39")
    k("s_add_u32 s38, s38, s21")
    k("s_lshl_b32 s38, s38, 4")
    k("s_add_u32 s38, s38, s24")
    k("s_lshl_b32 s39, s38, 7")
    k("s_lshl_b32 s38, s38, 10")
    k("v_lshlrev_b32 v9, 3, v%d", VI)
    k("v_cndmask_b32 v9, v%d, v9, s[30:31]", VOOB)
    PK = 40
    KF = 128
    for c in range(3):
        regs = [ACC + c * 8 + j for j in range(4)]
        for j, r in enumerate(regs):
            k("v_fma_f32 v%d, v%d, v%d, v%d", r, CQ + c * 4 + j, VS, r)
        for r in regs:
            k("v_mul_f32 v%d, v%d, v%d", r, r, VS + 1)
        bf16round4(regs)
        phi4(regs)
        k("v_cvt_pk_bf16_f32 v%d, v%d, v%d", PK + c * 2, regs[0], regs[1])
        k("v_cvt_pk_bf16_f32 v%d, v%d, v%d", PK + c * 2 + 1, regs[2], regs[3])
    k("buffer_store_dwordx4 %s, v%d, s[64:67], s38 offen sc1", vr(PK, 4), VL16)
    k("buffer_store_dwordx2 %s, v9, s[68:71], s39 offen sc1", vr(PK + 4, 2))
    k("s_waitcnt lgkmcnt(0)")
    k("v_cmp_eq_u32 s[52:53], 4, v%d", VI)
    for c in range(3, 9):
        regs = [ACC + c * 8 + j for j in range(4)]
        for j, r in enumerate(regs):
            k("v_fma_f32 v%d, v%d, v%d, v%d", r, CK + c - 3, RS + 2 * j, r)
        for j, r in enumerate(regs):
            k("v_mul_f32 v%d, v%d, v%d", r, r, RS + 2 * j + 1)
        if c < 6:
            bf16round4(regs)
            phi4(regs)
        if c == 8:
            for r in regs:
                k("v_cndmask_b32 v%d, v%d, 1.0, s[52:53]", r, r)
        d = KF + (c - 3) * 2
        k("v_cvt_pk_bf16_f32 v%d, v%d, v%d", d, regs[0], regs[1])
        k("v_cvt_pk_bf16_f32 v%d, v%d, v%d", d + 1, regs[2], regs[3])
    KVD = ACC
    for a in range(3):
        for b in range(3):
            k("v_mfma_f32_16x16x16_bf16 %s, %s, %s, 0", vr(KVD + (a * 3 + b) * 4, 4), vr(KF + a * 2, 2),
              vr(KF + 6 + b * 2, 2))
    k("s_mul_i32 s43, s26, %d", KVS)
    k("s_add_u32 s43, s43, %d", KVX)
    k("v_mul_u32_u24 v8, 208, v%d", VI)
    k("v_lshl_add_u32 v8, v%d, 4, v8", VG)
    k("v_add_u32 v8, s43, v8")
    for a in range(3):
        for b in range(3):
            k("ds_write_b128 v8, %s offset:%d", vr(KVD + (a * 3 + b) * 4, 4), b * 16 * 208 + a * 64)
    VJ, VII, VIO, VGA = 16, 17, 18, 19
    k("v_and_b32 v%d, 3, v0", VJ)
    k("v_lshrrev_b32 v%d, 2, v0", VII)
    k("v_and_b32 v%d, 3, v%d", VIO, VII)
    k("v_lshrrev_b32 v%d, 2, v%d", VGA, VII)
    k("s_and_b32 s27, s26, 3")
    k("s_lshl_b32 s38, s27, 2")
    k("s_and_b32 s39, s24, 3")
    k("s_and_b32 s41, s24, 1")
    k("s_lshl_b32 s41, s41, 1")
    k("s_add_u32 s42, s41, 1")
    k("v_cmp_gt_u32 s[44:45], 2, v%d", VJ)
    k("v_cmp_gt_u32 s[46:47], 2, v%d", VIO)
    k("v_cmp_eq_u32 s[48:49], s41, v%d", VGA)
    k("v_cmp_eq_u32 s[50:51], s42, v%d", VGA)
    k("v_cmp_eq_u32 s[52:53], 2, v%d", VIO)
    k("v_cmp_eq_u32 s[54:55], 3, v%d", VIO)
    k("s_and_b64 s[48:49], s[48:49], s[46:47]")
    k("s_and_b64 s[50:51], s[50:51], s[46:47]")
    k("s_or_b64 s[48:49], s[48:49], s[52:53]")
    k("s_or_b64 s[50:51], s[50:51], s[54:55]")
    k("s_cmp_eq_u32 s27, 0")
    k("s_cselect_b64 s[56:57], -1, 0")
    k("s_cmp_eq_u32 s27, s39")
    k("s_cselect_b64 s[58:59], -1, 0")
    k("v_add_u32 v20, s38, v%d", VJ)
    k("v_add_u32 v21, 16, v20")
    k("v_add_u32 v22, 32, v%d", VJ)
    k("v_cmp_le_u32 s[60:61], 18, v21")
    k("v_add_u32 v23, 18, v%d", VII)
    k("v_add_u32 v24, 16, v%d", VIO)
    k("v_cndmask_b32 v24, 36, v24, s[46:47]")
    k("v_add_u32 v25, 34, v%d", VIO)
    k("v_cndmask_b32 v25, 36, v25, s[46:47]")
    k("v_cndmask_b32 v26, v25, v24, s[48:49]")
    k("s_and_b64 s[62:63], s[56:57], s[44:45]")
    k("s_mov_b64 s[64:65], -1")
    k("s_mov_b64 s[66:67], s[62:63]")
    k("s_mov_b64 s[68:69], s[60:61]")
    k("s_mov_b64 s[70:71], s[58:59]")
    k("s_mov_b64 s[72:73], s[48:49]")
    k("s_and_b64 s[74:75], s[48:49], s[62:63]")
    k("s_and_b64 s[44:45], s[50:51], s[60:61]")
    k("s_or_b64 s[74:75], s[74:75], s[44:45]")
    k("s_and_b64 s[46:47], s[50:51], s[58:59]")
    k("v_and_b32 v27, 255, v%d", VTID)
    k("v_lshlrev_b32 v27, 2, v27")
    k("s_mul_i32 s38, s24, 7168")
    k("s_add_u32 s39, s38, 4096")
    poll = k.newlabel("poll")
    pd = k.newlabel("polldone")
    k("s_cmp_lg_u32 s26, 0")
    k("s_cbranch_scc1 %s", pd)
    k("s_waitcnt vmcnt(%d)", 2 if "nopf2" in G.OPT else 5)
    k("v_readfirstlane_b32 s41, v10")
    k("s_cmp_eq_u32 s41, 1")
    k("s_cbranch_scc1 %s", pd)
    k("s_cmp_eq_u32 s25, 0")
    k("s_cbranch_scc1 %s", poll)
    k("v_mov_b32 v%d, 1", VT)
    k("s_mov_b64 exec, 1")
    k("buffer_atomic_add v%d, v12, s[76:79], s29 offen sc0 sc1", VT)
    k("s_mov_b64 exec, -1")
    k("s_waitcnt vmcnt(0)")
    k("v_readfirstlane_b32 s41, v%d", VT)
    k("s_cmp_lg_u32 s41, 0")
    k("s_cbranch_scc1 %s", poll)
    zero_kv()
    k.label(poll)
    k("buffer_load_dword v10, v12, s[76:79], s29 offen offset:64 sc0 sc1")
    k("s_waitcnt vmcnt(0)")
    k("v_readfirstlane_b32 s41, v10")
    k("s_cmp_eq_u32 s41, 1")
    k("s_cbranch_scc1 %s", pd)
    k("s_sleep 2")
    k("s_branch %s", poll)
    k.label(pd)
    k("s_waitcnt lgkmcnt(0)")
    k("s_barrier")
    G.stamp(k)
    blocks = [(VII, 20), (VII, 21), (23, 21), (23, 22), (24, 20), (26, 21), (25, 22)]
    masks = ["s[64:65]", "s[66:67]", "s[68:69]", "s[70:71]", "s[72:73]", "s[74:75]", "s[46:47]"]
    other = k.newlabel("half1")
    fin = k.newlabel("fin")
    k("s_cmp_ge_u32 s26, 4")
    k("s_cbranch_scc1 %s", other)
    for half in range(2):
        rs = [0, 3, 4, 6] if half == 0 else [2, 1, 5]
        for n, r in enumerate(rs):
            ve, vd = blocks[r]
            b = 56 + n * 12
            k("v_mul_u32_u24 v%d, 52, v%d", b, ve)
            k("v_add_lshl_u32 v%d, v%d, v%d, 2", b, b, vd)
            k("v_add_u32 v%d, %d, v%d", b, KVX, b)
            k("v_add_u32 v%d, %d, v%d", b + 2, 4 * KVS, b)
            k("v_cndmask_b32 v%d, v%d, v27, %s", b + 1, VOOB, masks[r])
            for w in range(8):
                k("ds_read_b32 v%d, v%d offset:%d", b + 4 + w, b + (2 if w >= 4 else 0), (w % 4) * KVS)
            k("s_waitcnt lgkmcnt(8)" if n else "s_nop 0")
            if n:
                bb = 56 + (n - 1) * 12
                rr = rs[n - 1]
                for (x, y) in ((4, 5), (6, 7), (8, 9), (10, 11), (4, 6), (8, 10), (4, 8)):
                    k("v_add_f32 v%d, v%d, v%d", bb + x, bb + x, bb + y)
                k("buffer_atomic_add_f32 v%d, v%d, s[80:83], s%d offen offset:%d", bb + 4, bb + 1, 38 + rr // 4, (rr % 4) * 1024)
        k("s_waitcnt lgkmcnt(0)")
        bb = 56 + (len(rs) - 1) * 12
        rr = rs[-1]
        for (x, y) in ((4, 5), (6, 7), (8, 9), (10, 11), (4, 6), (8, 10), (4, 8)):
            k("v_add_f32 v%d, v%d, v%d", bb + x, bb + x, bb + y)
        k("buffer_atomic_add_f32 v%d, v%d, s[80:83], s%d offen offset:%d", bb + 4, bb + 1, 38 + rr // 4, (rr % 4) * 1024)
        if half == 0:
            k("s_branch %s", fin)
            k.label(other)
    k.label(fin)
    if G.STAMP:
        k("s_waitcnt vmcnt(0)")
        G.stamp(k)
        G.stamp_dump(k, 4, 5, 26)
    k.label(end)
    k("s_endpgm")
    return k.finish(148, 100, 102), "k1_kernel grid=(256,1,1) block=(512,1,1) lds=%d" % LDS_TOTAL
```

```python
from asmfw import K, vr, ar, sr
import gen as G

OOB = 0x7f000000
WOW = 20736
PREP = 84992
XL = 129024
CNT = XL + 4 * 2304
CSW = CNT + 64
LDS_TOTAL = CSW + 4 * 1152


def gen():
    k = K("k2_kernel")
    k.sbase = 88
    end = G.prologue_exit(k, 256, 1, (198, 199), 16)
    k("s_load_dwordx2 s[4:5], s[0:1], %d", G.KA_WS)
    k("s_load_dwordx2 s[6:7], s[0:1], %d", G.KA_X)
    k("s_load_dwordx2 s[8:9], s[0:1], %d", G.KA_WO)
    k("s_load_dwordx4 s[12:15], s[0:1], %d", G.KA_WG)
    k("s_lshr_b32 s21, s2, 3")
    k("s_and_b32 s24, s21, 7")
    k("s_and_b32 s25, s2, 7")
    k("s_lshl_b32 s25, s25, 2")
    k("s_lshr_b32 s20, s2, 6")
    k("s_add_u32 s25, s25, s20")
    k("s_bfe_u32 s22, s2, 0x10002")
    k("s_and_b32 s23, s2, 3")
    k("v_lshrrev_b32 v1, 6, v0")
    k("v_and_b32 v0, 63, v0")
    k("v_readfirstlane_b32 s26, v1")
    VG, VI, VI4, VIM, VL16, VOOB = 1, 2, 3, 4, 5, 6
    k("v_lshrrev_b32 v%d, 4, v0", VG)
    k("v_and_b32 v%d, 15, v0", VI)
    k("v_bfe_u32 v%d, v0, 2, 2", VI4)
    k("v_and_b32 v%d, 3, v0", VIM)
    k("v_lshlrev_b32 v%d, 4, v0", VL16)
    k("v_mov_b32 v%d, 0x%x", VOOB, OOB)
    k("v_mov_b32 v7, %d", CNT)
    k("v_mov_b32 v8, 0")
    k("ds_write_b32 v7, v8")
    k("s_waitcnt lgkmcnt(0)")
    k("s_barrier")
    lprep = k.newlabel("prep")
    k("s_cmp_ge_u32 s26, 4")
    k("s_cbranch_scc1 %s", lprep)

    k("v_cmp_eq_u32 s[30:31], 0, v%d", VG)
    VPB, VL8 = 16, 8
    k("v_lshlrev_b32 v17, 3, v%d", VI)
    k("v_cndmask_b32 v%d, v%d, v17, s[30:31]", VPB, VOOB)
    k("v_lshlrev_b32 v%d, 3, v0", VL8)
    k("v_and_b32 v17, 1, v%d", VG)
    k("v_cmp_eq_u32 s[42:43], 1, v17")
    VWD = 17
    k("s_mov_b32 s27, 0x%x", (1 << 32) // 9 + 1)
    for i in range(9):
        k("v_add_u32 v40, %d, v0", 64 * i)
        k("v_mul_hi_u32 v41, v40, s27")
        k("v_mul_u32_u24 v42, 9, v41")
        k("v_sub_u32 v42, v40, v42")
        k("v_mul_u32_u24 v41, 1152, v41")
        k("v_lshl_add_u32 v%d, v42, 4, v41", VWD + i)
    VTB, VTB2, VXR = 35, 36, 37
    k("s_mul_i32 s27, s26, %d", WOW)
    k("v_lshl_add_u32 v40, v%d, 2, v%d", VG, VI4)
    k("v_mul_u32_u24 v40, 144, v40")
    k("v_lshl_add_u32 v40, v%d, 3, v40", VIM)
    k("v_add_u32 v%d, s27, v40", VTB)
    k("v_mul_u32_u24 v40, 18, v%d", VG)
    k("v_and_b32 v41, 1, v%d", VI4)
    k("v_lshrrev_b32 v42, 1, v%d", VI4)
    k("v_mul_u32_u24 v42, 72, v42")
    k("v_add3_u32 v40, v40, v41, v42")
    k("v_add_u32 v40, 16, v40")
    k("v_mul_u32_u24 v40, 144, v40")
    k("v_lshl_add_u32 v40, v%d, 3, v40", VIM)
    k("v_add_u32 v%d, s27, v40", VTB2)
    k("v_cmp_gt_u32 s[44:45], 32, v0")
    k("s_mul_i32 s53, s26, 2304")
    k("s_add_u32 s53, s53, %d", XL)
    k("v_mul_u32_u24 v40, 144, v%d", VI)
    k("v_lshl_add_u32 v40, v%d, 3, v40", VG)
    k("v_add_u32 v%d, s53, v40", VXR)
    k("s_waitcnt lgkmcnt(0)")
    k.srd(64, 4, 5, G.SZ_KV, G.WS_KV)
    k.srd(68, 4, 5, G.SZ_PQA, G.WS_PQA)
    k.srd(72, 4, 5, G.SZ_PQB, G.WS_PQB)
    k.srd(76, 8, 9, G.D * G.D * 2)
    k.srd(80, 6, 7, G.SZ_H)
    G.stamp(k)
    KVR = 48
    PQ = 104
    PB2 = 168
    DT = 176
    k("s_mul_i32 s54, s26, %d", 4 * 7168)
    k("s_lshl_b32 s28, s25, 6")
    k("s_lshl_b32 s29, s26, 2")
    k("s_add_u32 s28, s28, s29")
    k("s_lshl_b32 s55, s28, 10")
    k("s_lshl_b32 s56, s28, 7")
    k("s_mul_i32 s57, s26, %d", 144 * 1152)
    k("s_mul_i32 s29, s24, 144")
    k("s_add_u32 s57, s57, s29")
    k("s_lshl_b32 s28, s25, 6")
    k("s_lshl_b32 s29, s26, 4")
    k("s_add_u32 s28, s28, s29")
    k("s_mul_i32 s28, s28, 1152")
    k("s_mul_i32 s29, s24, 144")
    k("s_add_u32 s48, s28, s29")
    rr = [0]

    def sreg():
        rr[0] += 1
        return 60 + rr[0] % 4

    def kv_ops(q):
        ops = []
        for n in range(7):
            def f(n=n):
                r = sreg()
                k("s_add_u32 s%d, s54, %d", r, q * 7168 + n * 1024)
                k.vmem(("KV", q), "buffer_load_dwordx4 %s, v%d, s[64:67], s%d offen", vr(KVR + (q % 2) * 28 + 4 * n, 4), VL16, r)
            ops.append(f)
        return ops

    def pqa_ops(q):
        ops = []
        for t in range(4):
            def f(t=t):
                r = sreg()
                k("s_add_u32 s%d, s55, %d", r, (t * 16 + q) * 1024)
                k.vmem(("PQ", q), "buffer_load_dwordx4 %s, v%d, s[68:71], s%d offen", vr(PQ + (q * 4 + t) * 4, 4), VL16, r)
            ops.append(f)
        return ops

    def pqb_ops():
        ops = []
        for t in range(4):
            def f(t=t):
                r = sreg()
                k("s_add_u32 s%d, s56, %d", r, t * 2048)
                k.vmem(("PQ", 0), "buffer_load_dwordx2 %s, v%d, s[72:75], s%d offen", vr(PB2 + t * 2, 2), VL8, r)
            ops.append(f)
        return ops

    def wo_ops():
        ops = []
        for i in range(21):
            def f(i=i):
                r = sreg()
                k("s_add_u32 s%d, s57, %d", r, (i // 9) * 64 * 1152)
                k("s_add_u32 m0, s27, %d", i * 1024)
                if i == 20:
                    k("s_mov_b64 exec, 0xffff")
                k.vmem("WO", "buffer_load_dwordx4 v%d, s[76:79], s%d offen lds", VWD + i % 9, r)
                if i == 20:
                    k("s_mov_b64 exec, -1")
            ops.append(f)
        return ops

    def x_ops():
        ops = []
        for i in range(3):
            def f(i=i):
                k("s_add_u32 m0, s53, %d", i * 1024)
                if i == 2:
                    k("s_mov_b64 exec, 0xffff")
                k.vmem("X", "buffer_load_dwordx4 v%d, s[80:83], s48 offen lds", VWD + i)
                if i == 2:
                    k("s_mov_b64 exec, -1")
            ops.append(f)
        return ops

    for f in kv_ops(0) + pqb_ops() + pqa_ops(0) + kv_ops(1) + pqa_ops(1):
        f()
    wo_l = wo_ops() + x_ops()
    pend = pqa_ops(2) + pqa_ops(3) + wo_l[:8]

    def tick(n=1):
        for _ in range(n):
            if pend:
                pend.pop(0)()

    G.stamp(k)

    def dregs(n):
        return (DT + 12 * n, DT + 12 * n + 4, DT + 12 * n + 8)

    LR = [9, 10, 11, 12, 13, 14, 15, 38, 39, 40, 41, 42, 43, 44, 45, 46]

    def lreg(t, j):
        return LR[t * 4 + j]

    it = 0
    for q in range(4):
        b = KVR + (q % 2) * 28
        k.wait_vm([("KV", q)])
        cv = lambda d, s_: k("v_cvt_pk_bf16_f32 v%d, v%d, v%d", d, s_, s_ + 1)
        cv(b + 0, b + 0); cv(b + 1, b + 2); cv(b + 2, b + 4); cv(b + 3, b + 6)
        cv(b + 6, b + 8); cv(b + 7, b + 10)
        k("v_mov_b32 v%d, 0", b + 4)
        k("v_mov_b32 v%d, 0", b + 5)
        tick()
        cv(b + 8, b + 12); cv(b + 9, b + 14)
        cv(b + 12, b + 16); cv(b + 13, b + 18); cv(b + 14, b + 20); cv(b + 15, b + 22)
        cv(b + 16, b + 24); cv(b + 17, b + 26)
        tick()
        k.wait_vm([("PQ", q)])
        for t in range(4):
            p = PQ + (q * 4 + t) * 4
            pb = PB2 + t * 2
            d0, d1, d2 = dregs(it % 2)
            it += 1
            k("v_mfma_f32_16x16x32_bf16 %s, %s, %s, 0", vr(d2, 4), vr(b + 12, 4), vr(p, 4))
            k("v_mfma_f32_16x16x32_bf16 %s, %s, %s, 0", vr(d1, 4), vr(b + 4, 4), vr(p, 4))
            k("v_mfma_f32_16x16x32_bf16 %s, %s, %s, 0", vr(d0, 4), vr(b, 4), vr(p, 4))
            k("v_mfma_f32_16x16x16_bf16 %s, %s, %s, %s", vr(d2, 4), vr(b + 16, 2), vr(pb, 2), vr(d2, 4))
            k("v_mfma_f32_16x16x16_bf16 %s, %s, %s, %s", vr(d1, 4), vr(b + 8, 2), vr(pb, 2), vr(d1, 4))
            if t == 3 and q < 2:
                pend[0:0] = kv_ops(q + 2)
                tick(7)
            else:
                tick(3)
            k("v_add_f32 v26, 0x%08x, v%d", G.f32bits(1e-6), d2 + 2)
            k("v_add_f32 v27, 0x%08x, v%d", G.f32bits(1e-6), d2 + 3)
            k("v_rcp_f32 v26, v26")
            k("v_rcp_f32 v27, v27")
            tick()
            k("v_cndmask_b32 v28, v26, v27, s[42:43]")
            for j in range(4):
                k("v_mul_f32 v%d, v%d, v26", d0 + j, d0 + j)
            for j in range(4):
                k("v_mul_f32 v%d, v%d, v27", d1 + j, d1 + j)
            l0, l1 = lreg(t, 2 * (q // 2)), lreg(t, 2 * (q // 2) + 1)
            if q % 2 == 0:
                k("v_mul_f32 v%d, v%d, v28", l0, d2)
                k("v_mul_f32 v%d, v%d, v28", l1, d2 + 1)
            else:
                k("v_fmac_f32 v%d, v%d, v28", l0, d2)
                k("v_fmac_f32 v%d, v%d, v28", l1, d2 + 1)
            k("v_cvt_pk_bf16_f32 v%d, v%d, v%d", p, d0, d0 + 1)
            k("v_cvt_pk_bf16_f32 v%d, v%d, v%d", p + 1, d0 + 2, d0 + 3)
            k("v_cvt_pk_bf16_f32 v%d, v%d, v%d", p + 2, d1, d1 + 1)
            k("v_cvt_pk_bf16_f32 v%d, v%d, v%d", p + 3, d1 + 2, d1 + 3)
        if q == 0:
            pend += wo_l[8:16]
        if q == 1:
            pend += wo_l[16:]
    tick(100)
    for t in range(4):
        p = PB2 + t * 2
        k("v_cvt_pk_bf16_f32 v%d, v%d, v%d", p, lreg(t, 0), lreg(t, 1))
        k("v_cvt_pk_bf16_f32 v%d, v%d, v%d", p + 1, lreg(t, 2), lreg(t, 3))
    G.stamp(k)
    def accr(mu, t):
        n = mu * 4 + t
        return KVR + n * 4 if n < 14 else DT + (n - 14) * 4
    k.wait_vm(["WO"])
    fr = [(mu, kap) for mu in range(5) for kap in range(5)]
    NB, NWB = 6, 12

    def rd(n):
        mu, kap = fr[n]
        b = (n % NWB) * 4
        if kap < 4:
            k.lds(("W", n), "ds_read_b64_tr_b16 %s, v%d offset:%d", ar(b, 2), VTB, kap * 5184 + mu * 32)
            k.lds(("W", n), "ds_read_b64_tr_b16 %s, v%d offset:%d", ar(b + 2, 2), VTB, kap * 5184 + mu * 32 + 2592)
        else:
            k.lds(("W", n), "ds_read_b64_tr_b16 %s, v%d offset:%d", ar(b, 2), VTB2, mu * 32)
    nr = 0
    for n, (mu, kap) in enumerate(fr):
        while nr <= min(n + NB, len(fr) - 1):
            rd(nr)
            nr += 1
        k.wait_lg([("W", n)])
        b = (n % NWB) * 4
        for t in range(4):
            a = vr(accr(mu, t), 4)
            if kap < 4:
                k("v_mfma_f32_16x16x32_bf16 %s, %s, %s, %s", a, ar(b, 4), vr(PQ + (kap * 4 + t) * 4, 4), "0" if kap == 0 else a)
            else:
                k("v_mfma_f32_16x16x16_bf16 %s, %s, %s, %s", a, ar(b, 2), vr(PB2 + t * 2, 2), a)
    G.stamp(k)
    VS = 104
    done = k.newlabel("own_done")
    for t in range(4):
        lab = k.newlabel("skipw")
        lab2 = k.newlabel("next")
        k("s_cmp_eq_u32 s26, %d", t)
        k("s_cbranch_scc1 %s", lab)
        k("s_sub_u32 s28, %d, s26", t + 3)
        k("s_and_b32 s28, s28, 3")
        k("s_mul_i32 s28, s28, 5120")
        k("s_add_u32 s28, s28, s27")
        k("v_add_u32 v28, s28, v%d", VL16)
        for mu in range(5):
            k("ds_write_b128 v28, %s offset:%d", vr(accr(mu, t), 4), mu * 1024)
        k("s_branch %s", lab2)
        k.label(lab)
        for mu in range(5):
            for j in range(4):
                k("v_mov_b32 v%d, v%d", VS + mu * 4 + j, accr(mu, t) + j)
        k.label(lab2)
    k.wait_vm(["X"])
    k("s_waitcnt lgkmcnt(0)")
    k.lg.ops = []
    k("v_mov_b32 v28, 1")
    k("s_mov_b64 exec, 1")
    k("ds_add_u32 v7, v28")
    k("s_mov_b64 exec, -1")
    spin = k.newlabel("spin")
    k.label(spin)
    k("ds_read_b32 v28, v7")
    k("s_waitcnt lgkmcnt(0)")
    k("v_readfirstlane_b32 s28, v28")
    k("s_cmp_lt_u32 s28, 4")
    k("s_cbranch_scc1 %s", spin)
    G.stamp(k)
    VR = 124
    VX = 18
    for mu in range(5):
        k("ds_read_b64 %s, v%d offset:%d", vr(VX + 2 * mu, 2), VXR, mu * 32)
    for d in range(1, 4):
        k("s_add_u32 s28, s26, %d", d)
        k("s_and_b32 s28, s28, 3")
        k("s_mul_i32 s28, s28, %d", WOW)
        k("v_add_u32 v%d, s28, v%d", 28 + d, VL16)
        for mu in range(5):
            k("ds_read_b128 %s, v%d offset:%d", vr(VR + ((d - 1) * 5 + mu) * 4, 4), 28 + d, (3 - d) * 5120 + mu * 1024)
    k.srd(64, 4, 5, G.SZ_HT, G.WS_HT)
    k.srd(68, 4, 5, G.SZ_H, G.WS_HF)
    k.srd(72, 4, 5, G.SZ_STAT, G.WS_STAT)
    k("s_lshl_b32 s28, s25, 3")
    k("s_add_u32 s28, s28, s24")
    k("s_lshl_b32 s28, s28, 2")
    k("s_add_u32 s28, s28, s26")
    k("s_mul_i32 s48, s28, 2560")
    k("s_mul_i32 s28, s24, 72")
    k("v_lshl_add_u32 v44, v%d, 2, s28", VG)
    k("v_lshrrev_b32 v45, 4, v44")
    k("v_bfe_u32 v46, v44, 3, 1")
    k("v_bfe_u32 v47, v44, 2, 1")
    k("v_lshlrev_b32 v45, 6, v45")
    k("v_lshl_add_u32 v45, v46, 5, v45")
    k("s_and_b32 s28, s26, 1")
    k("s_lshl_b32 s28, s28, 4")
    k("v_add3_u32 v45, v45, v%d, s28", VI)
    k("v_lshlrev_b32 v45, 4, v45")
    k("v_lshl_add_u32 v32, v47, 3, v45")
    k("v_cndmask_b32 v33, v%d, v32, s[44:45]", VOOB)
    k("s_lshl_b32 s28, s25, 1")
    k("s_lshr_b32 s29, s26, 1")
    k("s_add_u32 s28, s28, s29")
    k("s_mul_i32 s49, s28, 36864")
    k("s_add_u32 s50, s49, 4096")
    k("v_mov_b32 v34, 0")
    k("v_mov_b32 v39, 0")
    k("v_mov_b32 v44, 0x3f803f80")
    for d in range(3):
        k("s_waitcnt lgkmcnt(%d)", 10 - 5 * d)
        for j in range(20):
            k("v_add_f32 v%d, v%d, v%d", VS + j, VS + j, VR + d * 20 + j)
    for mu in range(5):
        b = VS + mu * 4
        k("v_cvt_pk_bf16_f32 v40, v%d, v%d", b, b + 1)
        k("v_cvt_pk_bf16_f32 v41, v%d, v%d", b + 2, b + 3)
        k("v_lshlrev_b32 v%d, 16, v40", b)
        k("v_and_b32 v%d, 0xffff0000, v40", b + 1)
        k("v_lshlrev_b32 v%d, 16, v41", b + 2)
        k("v_and_b32 v%d, 0xffff0000, v41", b + 3)
        x = VX + mu * 2
        k("v_lshlrev_b32 v40, 16, v%d", x)
        k("v_and_b32 v41, 0xffff0000, v%d", x)
        k("v_lshlrev_b32 v42, 16, v%d", x + 1)
        k("v_and_b32 v43, 0xffff0000, v%d", x + 1)
        for j in range(4):
            k("v_add_f32 v%d, v%d, v%d", b + j, b + j, 40 + j)
        k("v_cvt_pk_bf16_f32 v%d, v%d, v%d", x, b, b + 1)
        k("v_cvt_pk_bf16_f32 v%d, v%d, v%d", x + 1, b + 2, b + 3)
        k("buffer_store_dwordx2 %s, v%d, s[64:67], s48 offen offset:%d sc1", vr(x, 2), VL8, mu * 512)
        k("buffer_store_dwordx2 %s, v%d, s[68:71], s%d offen offset:%d sc1", vr(x, 2), 32 if mu < 4 else 33,
          49 if mu < 4 else 50, (mu % 4) * 1024)
        if mu == 4:
            k("v_cndmask_b32 v40, 0, v%d, s[44:45]", x)
            k("v_cndmask_b32 v41, 0, v%d, s[44:45]", x + 1)
            src = (40, 41)
        else:
            src = (x, x + 1)
        for sreg_ in src:
            k("v_dot2_f32_bf16 v34, v%d, v44, v34", sreg_)
            k("v_dot2_f32_bf16 v39, v%d, v%d, v39", sreg_, sreg_)
    for xr in (16, 32):
        k("v_xor_b32 v40, %d, v0", xr)
        k("v_lshlrev_b32 v40, 2, v40")
        k("ds_bpermute_b32 v41, v40, v34")
        k("ds_bpermute_b32 v42, v40, v39")
        k("s_waitcnt lgkmcnt(0)")
        k("v_add_f32 v34, v34, v41")
        k("v_add_f32 v39, v39, v42")
    k("v_mov_b32 v35, v39")
    k("s_lshl_b32 s28, s24, 14")
    k("s_lshl_b32 s29, s25, 9")
    k("s_add_u32 s28, s28, s29")
    k("s_lshl_b32 s29, s26, 7")
    k("s_add_u32 s28, s28, s29")
    k("buffer_store_dwordx2 v[34:35], v%d, s[72:75], s28 offen sc1", VPB)
    if G.STAMP:
        G.stamp(k)
        k("s_waitcnt vmcnt(0)")
        G.stamp(k)
        G.stamp_dump(k, 4, 5, 26)
    k("s_endpgm")

    k.label(lprep)
    k.vm.ops = []
    k.lg.ops = []
    if G.STAMP:
        k.nstamp = 0
    k("s_sub_u32 s27, s26, 4")
    VPD = 17
    k("s_mov_b32 s28, 0x%x", (1 << 32) // 18 + 1)
    for i in range(9):
        k("v_add_u32 v40, %d, v0", 64 * i)
        k("v_mul_hi_u32 v41, v40, s28")
        k("v_mul_u32_u24 v42, 18, v41")
        k("v_sub_u32 v42, v40, v42")
        k("v_mul_u32_u24 v41, 9216, v41")
        k("v_lshl_add_u32 v%d, v42, 4, v41", VPD + i)
    k("s_waitcnt lgkmcnt(0)")
    k("s_cmp_eq_u32 s22, 0")
    k("s_cselect_b32 s84, s12, s14")
    k("s_cselect_b32 s85, s13, s15")
    k("s_mov_b32 s86, 0x%x", G.D * G.F * 2)
    k("s_mov_b32 s87, 0x20000")
    k.srd(64, 4, 5, G.SZ_WF, G.WS_WF)
    k.srd(68, 4, 5, G.SZ_CS, G.WS_CS)
    G.stamp(k)
    k("s_mul_i32 s58, s23, 144")
    k("s_lshl_b32 s29, s27, 5")
    k("s_add_u32 s58, s58, s29")
    k("s_mul_i32 s58, s58, 9216")
    k("s_mul_i32 s29, s21, 288")
    k("s_add_u32 s58, s58, s29")
    k("s_mul_i32 s59, s27, %d", 32 * 288)
    k("s_add_u32 s59, s59, %d", PREP)
    for i in range(9):
        k("s_add_u32 m0, s59, %d", i * 1024)
        k("buffer_load_dwordx4 v%d, s[84:87], s58 offen lds", VPD + i)
    lab = k.newlabel("noextra")
    k("s_cmp_lg_u32 s27, 3")
    k("s_cbranch_scc1 %s", lab)
    k("s_add_u32 s60, s58, %d", 32 * 9216)
    for i in range(5):
        k("s_add_u32 m0, s59, %d", 9216 + i * 1024)
        if i == 4:
            k("s_mov_b32 exec_hi, 0")
        k("buffer_load_dwordx4 v%d, s[84:87], s60 offen lds", VPD + i)
        if i == 4:
            k("s_mov_b64 exec, -1")
    k.label(lab)
    k("v_lshrrev_b32 v40, 1, v%d", VG)
    k("v_and_b32 v41, 1, v%d", VG)
    k("v_lshl_add_u32 v42, v41, 3, v%d", VI4)
    k("v_mul_u32_u24 v42, 288, v42")
    k("v_lshl_add_u32 v42, v%d, 3, v42", VIM)
    k("v_add_u32 v42, s59, v42")
    k("v_lshl_add_u32 v44, v40, 5, v42")
    k("s_lshl_b32 s28, s22, 4")
    k("v_lshl_add_u32 v43, v41, 5, v%d", VI)
    k("v_add_u32 v43, s28, v43")
    k("v_lshlrev_b32 v43, 4, v43")
    k("v_mul_u32_u24 v46, 36864, v40")
    k("v_add_u32 v46, v46, v43")
    k("v_cmp_eq_u32 vcc, 0, v40")
    k("v_cndmask_b32 v45, v%d, v43, vcc", VOOB)
    k("s_mul_i32 s28, s21, 324")
    k("s_mul_i32 s29, s23, 9")
    k("s_add_u32 s28, s28, s29")
    k("s_lshl_b32 s29, s27, 1")
    k("s_add_u32 s28, s28, s29")
    k("s_lshl_b32 s51, s28, 10")
    k("v_mov_b32 v10, 0x3f803f80")
    k("v_cmp_eq_u32 s[46:47], v40, v%d", VI)
    for j in range(4):
        k("v_cndmask_b32 v%d, 0, v10, s[46:47]", 48 + j)
    CA = 52
    PB = 72

    def sigma(sg, first):
        for cp in range(5):
            b = PB + (sg * 5 + cp) * 4
            ad = 44 if cp < 4 else 42
            off = sg * 16 * 288 + cp * 64
            k("ds_read_b64_tr_b16 %s, v%d offset:%d", vr(b, 2), ad, off)
            k("ds_read_b64_tr_b16 %s, v%d offset:%d", vr(b + 2, 2), ad, off + 1152)
        for cp in range(5):
            b = PB + (sg * 5 + cp) * 4
            k("s_waitcnt lgkmcnt(%d)", 8 - 2 * cp)
            k("s_add_u32 s%d, s51, %d", 60 + cp % 2, sg * 1024 + cp * 2 * 36864)
            k("buffer_store_dwordx4 %s, v%d, s[64:67], s%d offen sc1", vr(b, 4), 46 if cp < 4 else 45, 60 + cp % 2)
            a = vr(CA + cp * 4, 4)
            k("v_mfma_f32_16x16x32_bf16 %s, %s, v[48:51], %s", a, vr(b, 4), "0" if first else a)

    k("s_waitcnt vmcnt(0)")
    G.stamp(k)
    sigma(0, True)
    sigma(1, False)
    lab = k.newlabel("noextra2")
    k("s_cmp_lg_u32 s27, 3")
    k("s_cbranch_scc1 %s", lab)
    sigma(2, False)
    k.label(lab)
    k("s_mul_i32 s28, s27, 1152")
    k("s_add_u32 s28, s28, %d", CSW)
    k("v_lshlrev_b32 v9, 4, v40")
    k("v_lshl_add_u32 v9, v41, 5, v9")
    k("v_lshl_add_u32 v9, v%d, 6, v9", VI)
    k("v_add_u32 v9, s28, v9")
    k("v_cmp_gt_u32 vcc, 2, v%d", VI)
    k("s_and_saveexec_b64 s[30:31], vcc")
    for cp in range(5):
        k("ds_write_b128 v9, %s offset:%d", vr(CA + cp * 4, 4), cp * 128)
    k("s_mov_b64 exec, s[30:31]")
    k("v_lshl_add_u32 v10, v0, 2, s28")
    k("s_waitcnt lgkmcnt(0)")
    for r in range(3):
        k("ds_read_b32 v%d, v10 offset:%d", 12 + r, r * 256)
    k("v_bfe_u32 v9, v0, 3, 1")
    k("v_and_b32 v11, 7, v0")
    k("v_lshl_add_u32 v9, v9, 4, v11")
    k("s_lshl_b32 s29, s22, 3")
    k("v_add_u32 v9, s29, v9")
    k("v_lshl_add_u32 v9, v%d, 5, v9", VG)
    k("v_lshlrev_b32 v9, 2, v9")
    k("v_cmp_gt_u32 vcc, 16, v0")
    k("v_cndmask_b32 v11, v%d, v9, vcc", VOOB)
    k("s_mul_i32 s28, s21, 1152")
    k("s_waitcnt lgkmcnt(0)")
    for r in range(3):
        k("buffer_atomic_add_f32 v%d, v%d, s[68:71], s28 offen offset:%d", 12 + r, 9 if r < 2 else 11, r * 512)
    k("s_load_dwordx2 s[72:73], s[0:1], %d", G.KA_WD)
    k("s_lshl_b32 s29, s27, 6")
    k("v_add_u32 v9, s29, v0")
    k("v_cmp_gt_u32 vcc, 162, v9")
    k("v_lshlrev_b32 v9, 7, v9")
    k("v_cndmask_b32 v9, v%d, v9, vcc", VOOB)
    k("s_mul_i32 s28, s2, 20736")
    k("s_waitcnt lgkmcnt(0)")
    k("s_mov_b32 s74, 0x%x", G.F * G.D * 2)
    k("s_mov_b32 s75, 0x20000")
    k("buffer_load_dword v11, v9, s[72:75], s28 offen")
    if G.STAMP:
        G.stamp(k)
        k("s_waitcnt vmcnt(0)")
        G.stamp(k)
        G.stamp_dump(k, 4, 5, 26)
    k.label(end)
    k("s_endpgm")
    return k.finish(200, 48, 102), "k2_kernel grid=(256,1,1) block=(512,1,1) lds=%d" % LDS_TOTAL
```

```python
from asmfw import K, vr, ar, sr
import gen as G

SLOT = 36864
CSOFF = 4 * SLOT


def gen():
    k = K("k3_kernel")
    end = G.prologue_exit(k, 256, 1, (238, 239), 6)
    k("s_load_dwordx2 s[4:5], s[0:1], %d", G.KA_WS)
    k("s_load_dwordx2 s[36:37], s[0:1], %d", G.KA_WD)
    k("s_and_b32 s20, s2, 7")
    k("s_lshr_b32 s21, s2, 3")
    k("s_and_b32 s21, s21, 3")
    k("s_lshl_b32 s21, s21, 3")
    k("s_add_u32 s24, s20, s21")
    k("s_lshr_b32 s25, s2, 5")
    k("v_lshrrev_b32 v1, 6, v0")
    k("v_and_b32 v0, 63, v0")
    k("v_readfirstlane_b32 s26, v1")
    VL16, VST, VNM, VC1, VRS2, VCSA, VSB = 1, 2, 4, 6, 8, 10, 11
    VSTAT = 15
    k("v_lshlrev_b32 v%d, 4, v0", VL16)
    for sl in range(4):
        k("v_add_u32 v%d, %d, v%d", VSB + sl, sl * SLOT, VL16)
    k("v_bfe_u32 v16, v0, 4, 1")
    k("v_lshrrev_b32 v17, 5, v0")
    k("v_and_b32 v18, 15, v0")
    k("v_mul_u32_u24 v16, 147456, v16")
    k("v_lshl_add_u32 v16, v17, 8, v16")
    k("v_lshl_add_u32 v%d, v18, 4, v16", VST)
    k("v_lshlrev_b32 v16, 6, v17")
    k("v_add_u32 v%d, %d, v16", VCSA, CSOFF)
    k("v_and_b32 v16, 31, v0")
    k("v_lshlrev_b32 v%d, 3, v16", VSTAT)
    k("s_mov_b32 s27, 0x%x", (1 << 32) // 9 + 1)
    for i in range(6):
        k("v_add_u32 v16, %d, v0", 64 * i)
        k("v_mul_hi_u32 v17, v16, s27")
        k("v_mul_u32_u24 v18, 9, v17")
        k("v_sub_u32 v18, v16, v18")
        k("v_mul_u32_u24 v17, 1152, v17")
        k("v_lshl_add_u32 v%d, v18, 4, v17", 240 + i)
    k("v_lshrrev_b32 v16, 2, v0")
    k("v_mul_u32_u24 v16, 144, v16")
    k("v_and_b32 v17, 3, v0")
    k("v_lshl_add_u32 v16, v17, 3, v16")
    k("v_add_u32 v246, %d, v16", SLOT)
    k("v_bfe_u32 v16, v0, 4, 1")
    k("v_lshrrev_b32 v17, 5, v0")
    k("v_and_b32 v18, 15, v0")
    k("v_lshl_add_u32 v19, v16, 4, v18")
    k("v_lshlrev_b32 v19, 4, v19")
    k("v_lshl_add_u32 v247, v17, 3, v19")
    k("v_lshl_add_u32 v19, v16, 3, v18")
    k("v_lshlrev_b32 v19, 4, v19")
    k("v_lshl_add_u32 v19, v17, 3, v19")
    k("v_mov_b32 v16, 0x7f000000")
    k("v_cmp_gt_u32 vcc, 8, v18")
    k("v_cndmask_b32 v248, v16, v19, vcc")
    k("s_waitcnt lgkmcnt(0)")
    k.srd(8, 4, 5, G.SZ_H, G.WS_HF)
    k.srd(12, 4, 5, G.SZ_WF, G.WS_WF)
    k.srd(16, 4, 5, G.SZ_ACT, G.WS_ACT)
    k.srd(40, 4, 5, G.SZ_STAT, G.WS_STAT)
    k.srd(44, 4, 5, G.SZ_CS, G.WS_CS)
    k.srd(80, 36, 37, G.F * G.D * 2)
    k.srd(84, 4, 5, G.SZ_WDF, G.WS_WDF)
    G.stamp(k)
    G.stamp(k, True)
    k("s_lshl_b32 s28, s25, 3")
    k("s_lshl_b32 s29, s26, 1")
    k("s_add_u32 s28, s28, s29")
    k("s_mul_i32 s30, s28, 36864")
    k("s_mul_i32 s31, s24, %d", 9 * SLOT)
    k("s_lshl_b32 s29, s26, 10")
    k("s_add_u32 s31, s31, s29")
    k("s_mov_b32 s32, s29")
    k("s_lshl_b32 s28, s25, 4")
    k("s_lshl_b32 s33, s26, 2")
    k("s_add_u32 s28, s28, s33")
    k("s_mul_i32 s33, s28, 147456")
    k("s_mul_i32 s28, s24, 4608")
    k("s_add_u32 s33, s33, s28")
    k("s_lshl_b32 s34, s25, 11")
    k("s_lshl_b32 s28, s26, 9")
    k("s_add_u32 s34, s34, s28")
    k("s_mul_i32 s35, s24, 1152")
    k("s_add_u32 s35, s35, s32")

    VAO = 16
    ACC = 48
    VW = 176
    NWB = 8
    VCS = 208
    VT = 224

    def afrag(t, s):
        if s < 32:
            return ar((s * 2 + t) * 4, 4)
        return vr(VAO + ((s - 32) * 2 + t) * 4, 4)

    GP = 3
    steps = [(c, s) for s in range(36) for c in range(GP)] + [(c, s) for c in range(GP, 9) for s in range(36)]
    NS = len(steps)
    tstep = {cs: i for i, cs in enumerate(steps)}
    AH = 5
    bars = sorted(set([0] + [12 * g + 6 for g in range(9)] + [108 + 36 * i + o for i in range(6) for o in (6, 24)]))
    bars = [b for b in bars if b < NS - AH]

    def last_read_step(c, g):
        return max(tstep[(c, s)] for s in range(4 * g, 4 * g + 4))

    ops = []
    sreg_rr = [0]

    def mk_dma(c, g):
        def f():
            sreg = 48 + sreg_rr[0] % 4
            sreg_rr[0] += 1
            k("s_add_u32 s%d, s31, %d", sreg, c * SLOT + g * 4096)
            k("s_add_u32 m0, s32, %d", (c % 4) * SLOT + g * 4096)
            k.vmem(("D", c, g), "buffer_load_dwordx4 v%d, s[12:15], s%d offen lds", VL16, sreg)
        if c >= 4:
            lr = last_read_step(c - 4, g)
            eb = min(b for b in bars if b > lr)
        else:
            eb = -1
        return (f, eb)

    def mk_a(t, s):
        def f():
            sreg = 48 + sreg_rr[0] % 4
            sreg_rr[0] += 1
            k("s_add_u32 s%d, s30, %d", sreg, t * 36864 + s * 1024)
            k.vmem(("A", s), "buffer_load_dwordx4 %s, v%d, s[8:11], s%d offen", afrag(t, s), VL16, sreg)
        return (f, -1)

    def mk_stat(t, p):
        def f():
            sreg = 48 + sreg_rr[0] % 4
            sreg_rr[0] += 1
            k("s_add_u32 s%d, s34, %d", sreg, p * 16384 + t * 256)
            k.vmem("S", "buffer_load_dwordx2 %s, v%d, s[40:43], s%d offen", vr(ACC + 96 + (t * 8 + p) * 2, 2), VSTAT, sreg)
        return (f, -1)

    def mk_cs():
        def f():
            lab = k.newlabel("nocs")
            k("s_cmp_ge_u32 s26, 2")
            k("s_cbranch_scc1 %s", lab)
            k("s_add_u32 m0, s32, %d", CSOFF)
            k("buffer_load_dwordx4 v%d, s[44:47], s35 offen lds", VL16)
            k.label(lab)
            k.vm.issue("CS")
        return (f, -1)

    for g in range(9):
        for s in range(4 * g, 4 * g + 4):
            ops.append(mk_a(0, s))
            ops.append(mk_a(1, s))
            if s % 4 < GP:
                ops.append(mk_dma(s % 4, g))
        if g == 3:
            for t in range(2):
                for p in range(8):
                    ops.append(mk_stat(t, p))
    for c in range(GP, 9):
        for g in range(9):
            ops.append(mk_dma(c, g))

    VWD = 240

    def mk_wd(i):
        def f():
            if i == 0:
                k("s_mul_i32 s54, s24, 144")
                k("s_mul_i32 s55, s26, 36")
                k("s_add_u32 s54, s54, s55")
                k("s_mul_i32 s54, s54, 1152")
                k("s_mul_i32 s55, s25, 144")
                k("s_add_u32 s54, s54, s55")
                k("s_mul_i32 s55, s26, %d", 36 * 144)
            k("s_add_u32 m0, s55, %d", SLOT + i * 1024)
            if i == 5:
                k("s_mov_b64 exec, 15")
            k.vmem("WD", "buffer_load_dwordx4 v%d, s[80:83], s54 offen lds", VWD + i)
            if i == 5:
                k("s_mov_b64 exec, -1")
        eb = min(b for b in bars if b > tstep[(5, 35)])
        return (f, eb)
    for i in range(6):
        ops.append(mk_wd(i))

    lab = k.newlabel("nocs")
    k("s_cmp_ge_u32 s26, 2")
    k("s_cbranch_scc1 %s", lab)
    k("s_add_u32 m0, s32, %d", CSOFF)
    k("buffer_load_dwordx4 v%d, s[44:47], s35 offen lds", VL16)
    k.label(lab)

    side = []

    def S(cost, fmt, *a):
        side.append((cost, lambda: k(fmt, *a)))

    def stats_block():
        base = ACC + 96
        side.append((4, lambda: k.wait_vm(["S"])))
        for t in range(2):
            b = base + t * 16
            for p in range(1, 8):
                S(4, "v_add_f32 v%d, v%d, v%d", b, b, b + 2 * p)
                S(4, "v_add_f32 v%d, v%d, v%d", b + 1, b + 1, b + 2 * p + 1)
            S(4, "v_mul_f32 v%d, 0x%08x, v%d", b, G.f32bits(1.0 / 576), b)
            S(4, "v_mul_f32 v%d, 0x%08x, v%d", b + 1, G.f32bits(1.0 / 576), b + 1)
            S(4, "v_fma_f32 v%d, -v%d, v%d, v%d", b + 1, b, b, b + 1)
            S(4, "v_max_f32 v%d, 0, v%d", b + 1, b + 1)
            S(4, "v_cvt_pk_bf16_f32 v%d, v%d, v%d", b + 2, b, b + 1)
            S(4, "v_lshlrev_b32 v%d, 16, v%d", b, b + 2)
            S(4, "v_and_b32 v%d, 0xffff0000, v%d", b + 1, b + 2)
            S(4, "v_add_f32 v%d, 0x%08x, v%d", b + 1, G.f32bits(1e-5), b + 1)
            S(4, "v_cvt_pk_bf16_f32 v%d, v%d, v%d", b + 2, b + 1, b + 1)
            S(4, "v_lshlrev_b32 v%d, 16, v%d", b + 1, b + 2)
            S(8, "v_sqrt_f32 v%d, v%d", b + 1, b + 1)
            S(4, "v_sub_f32 v%d, 0, v%d", VNM + t, b)
            S(4, "v_cvt_pk_bf16_f32 v%d, v%d, v%d", b + 2, b + 1, b + 1)
            S(4, "v_lshlrev_b32 v%d, 16, v%d", b + 1, b + 2)
            S(4, "v_mul_f32 v%d, v%d, v%d", VRS2 + t, b + 1, b + 1)
            S(8, "v_rcp_f32 v%d, v%d", b + 1, b + 1)
            S(4, "s_nop 0")
            S(4, "v_mul_f32 v%d, 0x%08x, v%d", VC1 + t, G.f32bits(-1.4426950408889634), b + 1)

    def epilogue(c):
        a0 = ACC + (c % 4) * 32
        for q in range(4):
            side.append((4, lambda q=q: k.lds(("C", c), "ds_read_b128 %s, v%d offset:%d", vr(VCS + 4 * q, 4), VCSA,
                                              c * 128 + q * 16)))
        side.append((4, lambda: k.wait_lg([("C", c)])))
        for t in range(2):
            a = a0 + 16 * t
            for h in range(2):
                rs = range(4 * h, 4 * h + 4)
                for r in rs:
                    S(4, "v_fmac_f32 v%d, v%d, v%d", a + r, VCS + r, VNM + t)
                for r in rs:
                    S(4, "v_mul_f32 v%d, v%d, v%d", VT + r, a + r, VC1 + t)
                for r in rs:
                    S(4, "v_fmac_f32 v%d, v%d, v%d", a + 8 + r, VCS + 8 + r, VNM + t)
                for r in rs:
                    S(8, "v_exp_f32 v%d, v%d", VT + r, VT + r)
                for r in rs:
                    S(4, "v_mul_f32 v%d, v%d, v%d", a + r, a + r, a + 8 + r)
                for r in rs:
                    S(4, "v_fma_f32 v%d, v%d, v%d, v%d", VT + r, VT + r, VRS2 + t, VRS2 + t)
                for r in rs:
                    S(8, "v_rcp_f32 v%d, v%d", VT + r, VT + r)
                for r in rs:
                    S(4, "v_mul_f32 v%d, v%d, v%d", a + r, a + r, VT + r)
            o = VT + 8 + 4 * t
            for q in range(4):
                S(4, "v_cvt_pk_bf16_f32 v%d, v%d, v%d", o + q, a + 2 * q, a + 2 * q + 1)

            def st(t=t, o=o):
                k("s_add_u32 s%d, s33, %d", 52 + t, 2 * t * 147456 + c * 512)
                k.vmem(("O", c), "buffer_store_dwordx4 %s, v%d, s[16:19], s%d offen" + G.STMOD, vr(o, 4), VST, 52 + t)
            side.append((8, st))

    def wd_stream():
        for rnd in range(3):
            def pre(rnd=rnd):
                if rnd < 2:
                    k("s_add_u32 s57, s26, %d", 4 * rnd)
                else:
                    k("s_cmp_eq_u32 s26, 0")
                    k("s_cselect_b32 s57, 8, s26")
                k("s_mul_i32 s59, s57, 2304")
                k("v_add_u32 v249, s59, v246")
                k("s_mul_i32 s56, s24, 9")
                k("s_add_u32 s56, s56, s57")
                k("s_lshr_b32 s57, s56, 1")
                k("s_and_b32 s56, s56, 1")
                k("s_mul_i32 s59, s25, 144")
                k("s_add_u32 s57, s57, s59")
                k("s_mul_i32 s57, s57, 4608")
                k("s_lshl_b32 s59, s56, 9")
                k("s_add_u32 s88, s57, s59")
                k("s_lshl_b32 s59, s56, 8")
                k("s_add_u32 s89, s57, s59")
                k("s_add_u32 s89, s89, 4096")
            side.append((16, pre))
            for grp in ((0, 1, 2), (3, 4)):
                for ct in grp:
                    side.append((4, lambda ct=ct, rnd=rnd: k.lds(("WT", rnd, ct), "ds_read_b64_tr_b16 %s, v249 offset:%d",
                                                              vr(250 + 2 * (ct % 3), 2), ct * 32)))
                for ct in grp:
                    def stw(ct=ct, rnd=rnd):
                        k.wait_lg([("WT", rnd, ct)])
                        if ct < 4:
                            k.vmem("WS", "buffer_store_dwordx2 %s, v247, s[84:87], s88 offen offset:%d sc1",
                                   vr(250 + 2 * (ct % 3), 2), ct * 1024)
                        else:
                            k.vmem("WS", "buffer_store_dwordx2 %s, v248, s[84:87], s89 offen sc1", vr(250 + 2 * (ct % 3), 2))
                    side.append((8, stw))

    issued = set()
    oi = 0

    def do_op():
        nonlocal oi
        ops[oi][0]()
        issued.add(k.vm.ops[-1])
        oi += 1

    def nstores_pending():
        return sum(1 for (cst, f) in side if getattr(f, "__name__", "") == "st")

    BUD = (16, 12)
    PRO = 36
    while oi < PRO:
        do_op()
    WDBAR = min(b for b in bars if b > tstep[(7, 0)])
    nread = 0
    visible = set()
    cur_bar = -1
    ep_done = 0
    stats_added = False
    for T, (c, s) in enumerate(steps):
        if T in bars:
            nb = min([b for b in bars if b > T] + [NS])
            need = set()
            for T2 in range(nread, min(nb + AH, NS)):
                c2, s2 = steps[T2]
                if (c2, s2 // 4) not in visible:
                    need.add((c2, s2 // 4))
            guard = 0
            for u in sorted(need):
                while ("D",) + u not in issued:
                    assert ops[oi][1] <= cur_bar, ("WAR", u, ops[oi][1], T)
                    do_op()
                    guard += 1
            if guard:
                print("k3: forced %d early loads at step %d" % (guard, T))
            wd_now = (T == WDBAR)
            if wd_now:
                assert oi == len(ops)
            k.wait_vm([("D",) + u for u in need] + (["WD"] if wd_now else []))
            k("s_barrier")
            if wd_now:
                wd_stream()
            visible |= need
            cur_bar = T
            if T in (0, 102, 114, 222):
                G.stamp(k)
        while nread <= min(T + AH, NS - 1) and (steps[nread][0], steps[nread][1] // 4) in visible:
            c2, s2 = steps[nread]
            k.lds(("W", nread), "ds_read_b128 %s, v%d offset:%d", vr(VW + (nread % NWB) * 4, 4), VSB + c2 % 4, s2 * 1024)
            nread += 1
        assert nread > T
        if T < 108 and c == 0:
            assert ("A", s) in issued
            k.wait_vm([("A", s)])
        k.wait_lg([("W", T)])
        if T == 60 and not stats_added:
            stats_block()
            stats_added = True
        if T >= 110:
            while ep_done < 9 and tstep[(ep_done, 35)] + 2 <= T and (len(side) < 40):
                epilogue(ep_done)
                ep_done += 1
        if s == 0 and c >= 3:
            if c == 3:
                while side:
                    side.pop(0)[1]()
            else:
                assert ep_done > c - 4, (c, ep_done)
                queued_after = ep_done - 1 - (c - 4)
                nf = 0
                while side and (nstores_pending() + 1) // 2 > queued_after:
                    side.pop(0)[1]()
                    nf += 1
                if nf:
                    print("k3: flushed %d side ops before chunk %d" % (nf, c))
        w = vr(VW + (T % NWB) * 4, 4)
        for t in range(2):
            a = ACC + (c % 4) * 32 + 16 * t
            cc = "0" if s == 0 else vr(a, 16)
            k("v_mfma_f32_32x32x16_bf16 %s, %s, %s, %s", vr(a, 16), w, afrag(t, s), cc)
            budget = BUD[t]
            if t == 0 and oi < len(ops) and ops[oi][1] <= cur_bar:
                do_op()
                budget -= 8
            while side and budget >= side[0][0]:
                cst, f = side.pop(0)
                f()
                budget -= cst
    G.stamp(k)
    while ep_done < 9:
        epilogue(ep_done)
        ep_done += 1
    while side:
        side.pop(0)[1]()
    assert oi == len(ops)
    if G.STAMP:
        k("s_waitcnt vmcnt(0)")
        G.stamp(k)
        G.stamp(k, True)
        G.stamp_dump(k, 4, 5, 26)
    k.label(end)
    k("s_endpgm")
    return k.finish(256, 256, 102), "k3_kernel grid=(256,1,1) block=(256,1,1) lds=%d" % (CSOFF + 2048)
```

```python
from asmfw import K, vr, ar, sr
import gen as G

OOB = 0x7f000000
RSTR = 240
XS = 16384
SL = XS + 64 * RSTR
PREPD = 4 * SL
XCH = 0
XST = 73728
KVX = 77824
KVS = 48 * 208
CSA = KVX + 8 * KVS
STB = CSA + 640
LDS_TOTAL = STB + 1024
LOG2E = 1.4426950408889634


def gen():
    k = K("k1_kernel")
    k.sbase = 88
    end = G.prologue_exit(k, 256, 1, (146, 147), 16)
    k("s_load_dwordx2 s[4:5], s[0:1], %d", G.KA_WS)
    k("s_load_dwordx4 s[8:11], s[0:1], %d", G.KA_X)
    k("s_load_dwordx2 s[14:15], s[0:1], %d", G.KA_DBG)
    k("s_load_dwordx2 s[12:13], s[0:1], %d", G.KA_WO)
    k("s_load_dwordx4 s[72:75], s[0:1], %d", G.KA_WG)
    k("s_and_b32 s25, s2, 3")
    k("s_lshl_b32 s25, s25, 2")
    k("s_bfe_u32 s24, s2, 0x20003")
    k("s_add_u32 s25, s25, s24")
    k("s_bfe_u32 s24, s2, 0x10002")
    k("s_lshl_b32 s24, s24, 3")
    k("s_lshr_b32 s22, s2, 5")
    k("s_add_u32 s24, s24, s22")
    k("s_lshr_b32 s22, s2, 2")
    k("s_and_b32 s23, s2, 3")
    VTID = 1
    k("v_mov_b32 v%d, v0", VTID)
    k("v_lshrrev_b32 v2, 6, v0")
    k("v_and_b32 v0, 63, v0")
    k("v_readfirstlane_b32 s26, v2")
    k("s_and_b32 s20, s26, 3")
    k("s_lshr_b32 s21, s26, 2")
    VG, VI, VI4, VIM, VL16, VOOB = 2, 3, 4, 5, 6, 7
    k("v_lshrrev_b32 v%d, 4, v0", VG)
    k("v_and_b32 v%d, 15, v0", VI)
    k("v_bfe_u32 v%d, v0, 2, 2", VI4)
    k("v_and_b32 v%d, 3, v0", VIM)
    k("v_lshlrev_b32 v%d, 4, v0", VL16)
    k("v_mov_b32 v%d, 0x%x", VOOB, OOB)
    k("v_cmp_eq_u32 s[30:31], 0, v%d", VG)
    for r in (12, 13, 14, 15):
        k("v_mov_b32 v%d, 0", r)
    k("v_lshlrev_b32 v9, 2, v%d", VTID)
    k("v_add_u32 v9, %d, v9", CSA)
    k("v_cmp_gt_u32 vcc, 144, v%d", VTID)
    k("s_and_saveexec_b64 s[28:29], vcc")
    k("ds_write_b32 v9, v12")
    k("s_mov_b64 exec, s[28:29]")
    VXD, VWD, VPD = 16, 18, 20
    k("s_mov_b32 s28, 0x%x", (1 << 32) // 15 + 1)
    k("s_mov_b32 s29, 0x%x", (1 << 32) // 5 + 1)
    k("s_mov_b32 s32, 0x%x", (1 << 32) // 18 + 1)
    for i in range(2):
        k("v_add_u32 v9, %d, v0", 64 * i)
        if i < 2:
            k("v_lshrrev_b32 v10, 3, v9")
            k("v_xor_b32 v11, v9, v10")
            k("v_and_b32 v11, 7, v11")
            k("v_mul_u32_u24 v10, 1152, v10")
            k("v_lshl_add_u32 v%d, v11, 4, v10", VXD + i)
            k("v_mul_hi_u32 v10, v9, s28")
            k("v_mul_u32_u24 v11, 15, v10")
            k("v_sub_u32 v11, v9, v11")
            k("v_mul_hi_u32 v8, v11, s29")
            k("v_mul_u32_u24 v23, 5, v8")
            k("v_sub_u32 v23, v11, v23")
            k("v_mul_u32_u24 v10, 3456, v10")
            k("v_mul_u32_u24 v8, 1152, v8")
            k("v_lshlrev_b32 v23, 4, v23")
            k("v_add3_u32 v%d, v10, v8, v23", VWD + i)
    VTB = 24
    k("v_lshl_add_u32 v11, v%d, 3, v%d", VG, VI4)
    k("v_mul_u32_u24 v11, %d, v11", RSTR)
    k("v_lshl_add_u32 v11, v%d, 3, v11", VIM)
    k("s_and_b32 s27, s24, 1")
    k("s_lshl_b32 s27, s27, 3")
    k("s_add_u32 s27, s27, %d", XS)
    k("s_mul_i32 s28, s21, %d", 32 * RSTR)
    k("s_add_u32 s27, s27, s28")
    k("v_add_u32 v%d, s27, v11", VTB)
    k("v_add_u32 v%d, %d, v%d", VTB + 1, 2 * SL, VTB)
    VXA = 26
    k("s_lshl_b32 s34, s26, 11")
    k("s_lshl_b32 s27, s21, 2")
    k("s_lshl_b32 s28, s20, 12")
    k("s_lshl_b32 s29, s21, 11")
    k("s_add_u32 s28, s28, s29")
    k("v_add_u32 v9, s27, v%d", VG)
    k("v_xor_b32 v9, v9, v%d", VI)
    k("v_and_b32 v9, 7, v9")
    k("v_lshlrev_b32 v9, 4, v9")
    k("v_lshl_add_u32 v9, v%d, 7, v9", VI)
    k("v_add_u32 v%d, s28, v9", VXA)
    k("v_xor_b32 v%d, 0x800, v%d", VXA + 1, VXA)
    k("v_add_u32 v%d, %d, v%d", VXA + 2, 2 * SL, VXA)
    k("v_add_u32 v%d, %d, v%d", VXA + 3, 2 * SL, VXA + 1)
    k("s_waitcnt lgkmcnt(0)")
    k.srd(64, 8, 9, G.SZ_H)
    k.srd(68, 10, 11, G.D * 3 * G.D * 2)
    k.srd(76, 14, 15, 256)
    k.srd(80, 4, 5, G.SZ_KV, G.WS_KV)
    k.srd(84, 4, 5, G.SZ_CS, G.WS_CS)
    G.stamp(k)
    k("s_lshl_b32 s32, s25, 7")
    k("s_lshl_b32 s33, s26, 4")
    k("s_add_u32 s32, s32, s33")
    k("s_mul_i32 s32, s32, 1152")
    k("s_mul_i32 s33, s26, %d", 8 * 3456)
    k("s_mul_i32 s35, s24, 72")
    k("s_and_b32 s35, s35, 0xfffffff0")
    k("s_add_u32 s33, s33, s35")
    k("s_mul_i32 s35, s26, %d", 8 * RSTR)
    k("s_add_u32 s35, s35, %d", XS)

    def slice_ops(j):
        if j >= 9 or "nodma" in G.OPT:
            return []
        ops = []
        slot = (j % 4) * SL
        for i in range(2):
            def fx(i=i):
                if i == 0:
                    k("s_add_u32 s36, s32, %d", j * 128)
                k("s_add_u32 m0, s34, %d", slot + i * 1024)
                k.vmem(("S", j), "buffer_load_dwordx4 v%d, s[64:67], s36 offen lds", VXD + i)

            def fw(i=i):
                if i == 0:
                    k("s_add_u32 s37, s33, %d", j * 64 * 3456)
                k("s_add_u32 m0, s35, %d", slot + i * 1024)
                if i == 1:
                    k("s_mov_b32 exec_hi, 0xffffff")
                k.vmem(("S", j), "buffer_load_dwordx4 v%d, s[68:71], s37 offen lds", VWD + i)
                if i == 1:
                    k("s_mov_b64 exec, -1")
            ops += [fw, fx]
        return ops

    def prep_ops():
        ops = []
        for i in range(3):
            def f(i=i):
                if i == 0:
                    k("s_mul_i32 s38, s22, 72")
                    k("s_mul_i32 s39, s26, 9")
                    k("s_add_u32 s38, s38, s39")
                    k("s_mul_i32 s38, s38, 1152")
                    k("s_mul_i32 s39, s23, 288")
                    k("s_add_u32 s38, s38, s39")
                    k("s_mul_i32 s39, s26, %d", 9 * 288)
                k("s_add_u32 m0, s39, %d", PREPD + i * 1024)
                if i == 2:
                    k("s_mov_b32 exec_hi, 3")
                k.vmem("P", "buffer_load_dwordx4 v%d, s[72:75], s38 offen lds", VPD + i)
                if i == 2:
                    k("s_mov_b64 exec, -1")
            ops.append(f)
        return ops

    for f in slice_ops(0):
        f()
    for f in slice_ops(1) + slice_ops(2):
        f()
    VT = 11
    k("v_mov_b32 v%d, 1", VT)
    k("s_lshl_b32 s29, s24, 2")
    lab = k.newlabel("notk")
    k("s_cmp_lg_u32 s26, 0")
    k("s_cbranch_scc1 %s", lab)
    k("v_lshlrev_b32 v9, 2, v0")
    k("v_cmp_gt_u32 vcc, 36, v0")
    k("v_cndmask_b32 v9, v%d, v9, vcc", VOOB)
    k("s_mul_i32 s38, s2, 144")
    k("buffer_store_dword v12, v9, s[84:87], s38 offen")
    k("s_cmp_lg_u32 s25, 0")
    k("s_cbranch_scc1 %s", lab)
    k("s_mov_b64 exec, 1")
    k("buffer_atomic_add v%d, v12, s[76:79], s29 offen sc0 sc1", VT)
    k("s_mov_b64 exec, -1")
    k.label(lab)

    def zero_stores():
        k("s_mul_i32 s41, s24, 7168")
        k("s_add_u32 s42, s41, 4096")
        for r in range(7):
            k("buffer_store_dwordx4 v[12:15], v%d, s[80:83], s%d offen offset:%d sc0 sc1", VL16, 41 + r // 4, (r % 4) * 1024)

    def flag_store():
        k("v_mov_b32 v31, 1")
        k("s_mov_b64 exec, 1")
        k("buffer_store_dword v31, v12, s[76:79], s29 offen offset:64 sc0 sc1")
        k("s_mov_b64 exec, -1")

    def zero_kv():
        zero_stores()
        k("s_waitcnt vmcnt(0)")
        flag_store()

    k("s_mov_b32 s40, 1")

    for j in range(12):
        k("v_accvgpr_write_b32 a%d, 0", j)
    VONE = 32
    for j in range(4):
        k("v_mov_b32 v%d, 0x3f803f80", VONE + j)
    VS = 36
    XF = 40
    ACC = 56
    PT = 128
    WB, NWB, AH = 28, 18, 6

    side = []

    def S(fmt, *a):
        side.append(lambda: k(fmt, *a))

    def prep_stream():
        S("s_lshl_b32 s41, s26, 2")
        S("v_add_u32 v8, s41, v%d", VG)
        S("v_mul_u32_u24 v9, 288, v%d", VI4)
        S("v_lshl_add_u32 v9, v%d, 3, v9", VIM)
        S("v_add_u32 v9, %d, v9", PREPD)
        S("s_mov_b32 s41, 0x%x", (1 << 32) // 9 + 1)
        S("s_mul_i32 s42, s22, 72")
        S("s_lshl_b32 s43, s23, 1")
        for it in range(6):
            b = PT + (it % 2) * 8
            S("v_add_u32 v10, %d, v8", it * 32)
            S("v_min_u32 v30, 161, v10")
            S("v_mul_hi_u32 v%d, v30, s41", b + 2)
            S("v_mul_u32_u24 v%d, 9, v%d", b + 3, b + 2)
            S("v_sub_u32 v%d, v30, v%d", b + 3, b + 3)
            S("v_mul_u32_u24 v%d, 1152, v%d", b + 4, b + 2)
            S("v_lshl_add_u32 v%d, v%d, 5, v%d", b + 4, b + 3, b + 4)
            S("v_add_u32 v%d, v%d, v9", b + 4, b + 4)
            side.append(lambda b=b, it=it: k.lds(("PT", it), "ds_read_b64_tr_b16 %s, v%d", vr(b, 2), b + 4))
            S("v_lshl_add_u32 v%d, v%d, 2, s42", b + 2, b + 2)
            S("v_lshl_add_u32 v%d, v%d, 4, v%d", b + 3, b + 3, VI)
            S("v_cmp_le_u32 vcc, 72, v%d", b + 3)
            S("v_cndmask_b32 v%d, 0, 1, vcc", b + 5)
            S("v_mul_u32_u24 v%d, 72, v%d", b + 6, b + 5)
            S("v_sub_u32 v%d, v%d, v%d", b + 3, b + 3, b + 6)
            S("v_add_u32 v%d, s43, v%d", b + 5, b + 5)
            S("v_mul_u32_u24 v%d, 144, v%d", b + 5, b + 5)
            S("v_lshrrev_b32 v%d, 5, v%d", b + 6, b + 2)
            S("v_add_u32 v%d, v%d, v%d", b + 5, b + 5, b + 6)
            S("v_mul_u32_u24 v%d, 4608, v%d", b + 5, b + 5)
            S("v_bfe_u32 v%d, v%d, 4, 1", b + 6, b + 2)
            S("v_bfe_u32 v%d, v%d, 2, 1", b + 7, b + 2)
            S("v_lshl_add_u32 v%d, v%d, 1, v%d", b + 6, b + 6, b + 7)
            S("v_bfe_u32 v%d, v%d, 3, 1", b + 7, b + 2)
            S("v_lshl_add_u32 v%d, v%d, 3, v%d", b + 5, b + 7, b + 5)
            S("v_and_b32 v%d, 15, v%d", b + 7, b + 3)
            S("v_lshrrev_b32 v%d, 4, v%d", b + 2, b + 3)
            S("v_lshl_add_u32 v30, v%d, 4, v%d", b + 6, b + 7)
            S("v_lshl_add_u32 v%d, v%d, 3, v%d", b + 7, b + 6, b + 7)
            S("v_cmp_gt_u32 vcc, 4, v%d", b + 2)
            S("v_cndmask_b32 v%d, v%d, v30, vcc", b + 7, b + 7)
            S("v_lshlrev_b32 v%d, 4, v%d", b + 7, b + 7)
            S("v_lshl_add_u32 v%d, v%d, 10, v%d", b + 7, b + 2, b + 7)
            S("v_add_u32 v%d, v%d, v%d", b + 5, b + 5, b + 7)
            if it == 5:
                S("v_cmp_gt_u32 vcc, 162, v10")
                S("v_cndmask_b32 v%d, v%d, v%d, vcc", b + 5, VOOB, b + 5)
            side.append(lambda it=it: k.wait_lg([("PT", it)]))
            side.append(lambda b=b: k.vmem("PS", "buffer_store_dwordx2 %s, v%d, s[44:47], 0 offen sc1", vr(b, 2), b + 5))

    def wo_load():
        k.srd(48, 12, 13, G.D * G.D * 2)
        k("s_mul_i32 s38, s2, 162")
        k("v_add_u32 v20, s38, v%d", VTID)
        k("s_mov_b32 s38, 0x%x", (1 << 32) // 72 + 1)
        k("s_mov_b32 s39, 0x%x", (1 << 32) // 9 + 1)
        k("v_mul_hi_u32 v21, v20, s38")
        k("v_mul_u32_u24 v22, 72, v21")
        k("v_sub_u32 v22, v20, v22")
        k("v_mul_hi_u32 v23, v22, s39")
        k("v_mul_u32_u24 v30, 9, v23")
        k("v_sub_u32 v22, v22, v30")
        k("v_mul_u32_u24 v23, 576, v23")
        k("v_add_u32 v23, v23, v21")
        k("v_mul_u32_u24 v23, 144, v23")
        k("v_lshl_add_u32 v23, v22, 4, v23")
        k("v_lshlrev_b32 v20, 4, v20")
        k("v_cmp_gt_u32 vcc, 162, v%d", VTID)
        k("v_cndmask_b32 v20, v%d, v20, vcc", VOOB)
        k("v_cndmask_b32 v146, v%d, v23, vcc", VOOB)
        k.vmem("WOC", "buffer_load_dwordx4 v[128:131], v20, s[48:51], 0 offen")

    def l2_warm():
        k("s_mov_b32 s38, 0x%x", (1 << 32) // 9 + 1)
        k("s_mov_b32 s39, 0x%x", (1 << 32) // 5 + 1)
        k("v_mul_hi_u32 v20, v%d, s38", VTID)
        k("v_mul_u32_u24 v21, 9, v20")
        k("v_sub_u32 v21, v%d, v21", VTID)
        k("v_mul_u32_u24 v20, 1152, v20")
        k("v_lshl_add_u32 v20, v21, 7, v20")
        k("v_cmp_gt_u32 vcc, 144, v%d", VTID)
        k("v_cndmask_b32 v20, v%d, v20, vcc", VOOB)
        k("s_and_b32 s41, s2, 3")
        k("s_lshl_b32 s41, s41, 9")
        k("s_lshr_b32 s42, s2, 3")
        k("s_lshl_b32 s43, s42, 4")
        k("s_add_u32 s41, s41, s43")
        k("s_mul_i32 s41, s41, 1152")
        k.vmem("PF", "buffer_load_dword v147, v20, s[64:67], s41 offen")
        k("v_subrev_u32 v20, 144, v%d", VTID)
        k("v_mul_hi_u32 v21, v20, s39")
        k("v_mul_u32_u24 v23, 5, v21")
        k("v_sub_u32 v23, v20, v23")
        k("v_mul_u32_u24 v21, 1152, v21")
        k("v_lshl_add_u32 v21, v23, 7, v21")
        k("v_cmp_gt_u32 vcc, 270, v20")
        k("v_cndmask_b32 v21, v%d, v21, vcc", VOOB)
        k("s_mul_i32 s41, s42, %d", 18 * 3456)
        k("s_bfe_u32 s43, s2, 0x10002")
        k("s_lshl_b32 s43, s43, 9")
        k("s_add_u32 s41, s41, s43")
        k.vmem("PF", "buffer_load_dword v147, v21, s[68:71], s41 offen")

    AH = 7
    visible = -1
    nr = 0
    pend = []
    stq = []

    def xread(j):
        xb = XF + (j % 2) * 8
        for t in range(2):
            k.lds(("X", j), "ds_read_b128 %s, v%d offset:%d", vr(xb + t * 4, 4), VXA + 2 * ((j % 4) // 2) + t, (j % 2) * SL)

    def barrier(jn):
        nonlocal visible, pend
        tags = [("S", jn)]
        for f in pend:
            f()
        pend = []
        k.wait_vm(tags)
        if jn == 3:
            lab = k.newlabel("nozero")
            k("s_or_b32 s41, s26, s25")
            k("s_cmp_lg_u32 s41, 0")
            k("s_cbranch_scc1 %s", lab)
            k("v_readfirstlane_b32 s40, v%d", VT)
            k("s_cmp_lg_u32 s40, 0")
            k("s_cbranch_scc1 %s", lab)
            zero_stores()
            k.label(lab)
        if jn == 6:
            lab = k.newlabel("noflag")
            k("s_cmp_lg_u32 s40, 0")
            k("s_cbranch_scc1 %s", lab)
            flag_store()
            k.label(lab)
        k("s_barrier")
        visible = jn
        xread(jn)

    k("s_waitcnt lgkmcnt(0)")
    barrier(0)
    G.stamp(k)
    pend = [l2_warm] + slice_ops(3) + [wo_load]
    for n in range(81):
        j, c = divmod(n, 9)
        if c == 2 and j < 8:
            barrier(j + 1)
            if j >= 1:
                pend = slice_ops(j + 3)
            if j in (3,):
                G.stamp(k)
        xb = XF + (j % 2) * 8
        while nr <= min(n + AH, 80) and nr // 9 <= visible:
            j2, c2 = divmod(nr, 9)
            b = WB + (nr % NWB) * 4
            off = (j2 % 2) * SL + (c2 // 3) * 80 + (c2 % 3) * 32
            k.lds(("W", nr), "ds_read_b64_tr_b16 %s, v%d offset:%d", ar(b, 2), VTB + (j2 % 4) // 2, off)
            k.lds(("W", nr), "ds_read_b64_tr_b16 %s, v%d offset:%d", ar(b + 2, 2), VTB + (j2 % 4) // 2, off + 4 * RSTR)
            nr += 1
        k.wait_lg([("W", n), ("X", j)])
        w = ar(WB + (n % NWB) * 4, 4)
        for t in range(2):
            a = vr(ACC + (c * 2 + t) * 4, 4)
            cc = "0" if j == 0 else a
            x = vr(xb + t * 4, 4)
            if c < 3:
                k("v_mfma_f32_16x16x32_bf16 %s, %s, %s, %s", a, w, x, cc)
            else:
                k("v_mfma_f32_16x16x32_bf16 %s, %s, %s, %s", a, x, w, cc)
        if c in (0, 1):
            x = vr(xb + c * 4, 4)
            sa, ga = ar(12 + c * 8, 4), ar(16 + c * 8, 4)
            k("v_mfma_f32_16x16x32_bf16 %s, %s, %s, %s", sa, vr(VONE, 4), x, "0" if j == 0 else sa)
            k("v_mfma_f32_16x16x32_bf16 %s, %s, %s, %s", ga, x, x, "0" if j == 0 else ga)
        if pend:
            pend.pop(0)()
        for _ in range(6):
            if side:
                side.pop(0)()
        if c % 3 == 2:
            lab = k.newlabel("nocs")
            k("s_cmp_lg_u32 s20, %d", c // 3)
            k("s_cbranch_scc1 %s", lab)
            for c2 in range(3):
                w2 = ar(WB + ((n - 2 + c2) % NWB) * 4, 4)
                k("v_mfma_f32_16x16x32_bf16 %s, %s, %s, %s", ar(c2 * 4, 4), vr(VONE, 4), w2, ar(c2 * 4, 4))
            k.label(lab)
    while side:
        side.pop(0)()
    G.stamp(k)
    lab = k.newlabel("nopoll0")
    k("s_cmp_lg_u32 s26, 0")
    k("s_cbranch_scc1 %s", lab)
    k("buffer_load_dword v10, v12, s[76:79], s29 offen offset:64 sc0 sc1")
    k.label(lab)
    if "nopf2" not in G.OPT:
        k("s_bfe_u32 s38, s2, 0x10002")
        k("s_cmp_eq_u32 s38, 0")
        k("s_cselect_b32 s44, s72, s74")
        k("s_cselect_b32 s45, s73, s75")
        k("s_mov_b32 s46, 0x%x", G.D * G.F * 2)
        k("s_mov_b32 s47, 0x20000")
        k("s_and_b32 s38, s2, 3")
        k("s_mul_i32 s38, s38, %d", 144 * 9216)
        k("s_lshr_b32 s39, s2, 3")
        k("s_mul_i32 s41, s39, 288")
        k("s_add_u32 s38, s38, s41")
        k("v_lshrrev_b32 v20, 2, v%d", VTID)
        k("v_and_b32 v21, 3, v%d", VTID)
        k("v_lshlrev_b32 v21, 7, v21")
        k("v_min_u32 v21, 284, v21")
        k("v_mul_u32_u24 v20, 9216, v20")
        k("v_add_u32 v20, v20, v21")
        k("buffer_load_dword v147, v20, s[44:47], s38 offen")
        k("v_cmp_gt_u32 vcc, 64, v%d", VTID)
        k("v_cndmask_b32 v20, v%d, v20, vcc", VOOB)
        k("s_add_u32 s38, s38, %d", 128 * 9216)
        k("buffer_load_dword v147, v20, s[44:47], s38 offen")
    k.srd(48, 4, 5, G.SZ_WOC, G.WS_WOC)
    k("buffer_store_dwordx4 v[128:131], v146, s[48:51], 0 offen sc1")
    lab = k.newlabel("nocsadd")
    k("s_cmp_eq_u32 s20, 3")
    k("s_cbranch_scc1 %s", lab)
    k("s_mul_i32 s38, s20, 192")
    k("s_add_u32 s38, s38, %d", CSA)
    k("v_lshl_add_u32 v8, v%d, 2, s38", VI)
    k("s_mov_b64 exec, s[30:31]")
    for c in range(3):
        k("ds_add_f32 v8, a%d offset:%d", c * 4, c * 64)
    k("s_mov_b64 exec, -1")
    k.label(lab)
    k("v_cmp_eq_u32 s[44:45], 1, v%d", VIM)
    k("v_cmp_eq_u32 s[46:47], 2, v%d", VIM)
    k("v_cmp_eq_u32 s[48:49], 3, v%d", VIM)
    for t in range(2):
        k("v_accvgpr_read_b32 v%d, a%d", VS + 2 * t, 12 + t * 8)
        for jj in range(4):
            k("v_accvgpr_read_b32 v%d, a%d", 16 + jj, 16 + t * 8 + jj)
        k("v_cndmask_b32 v16, v16, v17, s[44:45]")
        k("v_cndmask_b32 v16, v16, v18, s[46:47]")
        k("v_cndmask_b32 v%d, v16, v19, s[48:49]", VS + 2 * t + 1)
    k("s_waitcnt lgkmcnt(0)")
    k.lg.ops = []
    k("s_barrier")
    k("s_mul_i32 s38, s26, 9216")
    k("v_add_u32 v8, s38, v%d", VL16)
    k("s_lshl_b32 s38, s26, 9")
    k("s_add_u32 s38, s38, %d", XST)
    k("v_lshl_add_u32 v9, v0, 3, s38")
    k("ds_write_b64 v9, %s", vr(VS + 2, 2))
    for c in range(9):
        k("ds_write_b128 v8, %s offset:%d", vr(ACC + (c * 2 + 1) * 4, 4), XCH + c * 1024)
    CQ = 128
    CK = 140
    RS = 48
    k("v_lshlrev_b32 v16, 4, v%d", VG)
    k("v_add_u32 v16, %d, v16", CSA)
    k("v_lshlrev_b32 v17, 2, v%d", VI)
    k("v_add_u32 v17, %d, v17", CSA)
    for c in range(3):
        k("ds_read_b128 %s, v16 offset:%d", vr(CQ + c * 4, 4), c * 64)
    for c in range(3, 9):
        k("ds_read_b32 v%d, v17 offset:%d", CK + c - 3, c * 64)
    k("s_xor_b32 s38, s26, 4")
    k("s_mul_i32 s39, s38, 9216")
    k("v_add_u32 v8, s39, v%d", VL16)
    k("s_lshl_b32 s38, s38, 9")
    k("s_add_u32 s38, s38, %d", XST)
    k("v_lshl_add_u32 v9, v0, 3, s38")
    k("s_waitcnt lgkmcnt(0)")
    k("s_barrier")
    G.stamp(k)
    k("ds_read_b64 %s, v9", vr(VS + 2, 2))
    for c in range(9):
        k("ds_read_b128 %s, v8 offset:%d", vr(ACC + c * 8 + 4, 4), XCH + c * 1024)
    k("s_waitcnt lgkmcnt(9)")
    k("v_add_f32 v%d, v%d, v%d", VS, VS, VS + 2)
    k("v_add_f32 v%d, v%d, v%d", VS + 2, VS + 1, VS + 3)
    k("v_lshl_add_u32 v8, v%d, 4, v%d", VI4, VI)
    k("v_lshlrev_b32 v8, 2, v8")
    k("ds_bpermute_b32 v%d, v8, v%d", VS + 2, VS + 2)
    k("s_waitcnt lgkmcnt(0)")
    b = VS
    k("v_mul_f32 v%d, 0x%08x, v%d", b, G.f32bits(1.0 / 576), b)
    k("v_mul_f32 v%d, 0x%08x, v%d", b + 2, G.f32bits(1.0 / 576), b + 2)
    k("v_fma_f32 v%d, -v%d, v%d, v%d", b + 2, b, b, b + 2)
    k("v_max_f32 v%d, 0, v%d", b + 2, b + 2)
    k("v_cvt_pk_bf16_f32 v%d, v%d, v%d", b + 3, b, b + 2)
    k("v_lshlrev_b32 v%d, 16, v%d", b, b + 3)
    k("v_and_b32 v%d, 0xffff0000, v%d", b + 2, b + 3)
    k("v_add_f32 v%d, 0x%08x, v%d", b + 2, G.f32bits(1e-5), b + 2)
    k("v_cvt_pk_bf16_f32 v%d, v%d, v%d", b + 3, b + 2, b + 2)
    k("v_lshlrev_b32 v%d, 16, v%d", b + 2, b + 3)
    k("v_sqrt_f32 v%d, v%d", b + 2, b + 2)
    k("v_sub_f32 v%d, 0, v%d", b, b)
    k("v_cvt_pk_bf16_f32 v%d, v%d, v%d", b + 3, b + 2, b + 2)
    k("v_lshlrev_b32 v%d, 16, v%d", b + 2, b + 3)
    k("v_rcp_f32 v%d, v%d", b + 1, b + 2)
    k("s_lshl_b32 s38, s26, 7")
    k("s_add_u32 s38, s38, %d", STB)
    k("v_lshl_add_u32 v8, v%d, 3, s38", VI)
    k("s_mov_b64 exec, s[30:31]")
    k("ds_write_b64 v8, %s", vr(VS, 2))
    k("s_mov_b64 exec, -1")
    for c in range(9):
        for jj in range(4):
            k("v_add_f32 v%d, v%d, v%d", ACC + c * 8 + jj, ACC + c * 8 + jj, ACC + c * 8 + 4 + jj)
    k("v_lshl_add_u32 v8, v%d, 5, s38", VG)
    k("s_waitcnt lgkmcnt(0)")
    k("ds_read_b128 %s, v8", vr(RS, 4))
    k("ds_read_b128 %s, v8 offset:16", vr(RS + 4, 4))

    T0 = 16

    def bf16round4(regs):
        k("v_cvt_pk_bf16_f32 v%d, v%d, v%d", T0, regs[0], regs[1])
        k("v_cvt_pk_bf16_f32 v%d, v%d, v%d", T0 + 1, regs[2], regs[3])
        k("v_lshlrev_b32 v%d, 16, v%d", regs[0], T0)
        k("v_and_b32 v%d, 0xffff0000, v%d", regs[1], T0)
        k("v_lshlrev_b32 v%d, 16, v%d", regs[2], T0 + 1)
        k("v_and_b32 v%d, 0xffff0000, v%d", regs[3], T0 + 1)

    def phi4(regs):
        for j, r in enumerate(regs):
            k("v_min_f32 v%d, 0, v%d", T0 + 4 + j, r)
        for j, r in enumerate(regs):
            k("v_mul_f32 v%d, 0x%08x, v%d", T0 + 4 + j, G.f32bits(LOG2E), T0 + 4 + j)
        for j, r in enumerate(regs):
            k("v_exp_f32 v%d, v%d", T0 + 4 + j, T0 + 4 + j)
        for j, r in enumerate(regs):
            k("v_max_f32 v%d, 0, v%d", r, r)
        for j, r in enumerate(regs):
            k("v_add_f32 v%d, v%d, v%d", r, r, T0 + 4 + j)
        for j, r in enumerate(regs):
            k("v_add_f32 v%d, 0x%08x, v%d", r, G.f32bits(1e-6), r)

    k.srd(64, 4, 5, G.SZ_PQA, G.WS_PQA)
    k.srd(68, 4, 5, G.SZ_PQB, G.WS_PQB)
    k("s_lshl_b32 s38, s25, 3")
    k("s_lshl_b32 s39, s20, 1")
    k("s_add_u32 s38, s38, s39")
    k("s_add_u32 s38, s38, s21")
    k("s_lshl_b32 s38, s38, 4")
    k("s_add_u32 s38, s38, s24")
    k("s_lshl_b32 s39, s38, 7")
    k("s_lshl_b32 s38, s38, 10")
    k("v_lshlrev_b32 v9, 3, v%d", VI)
    k("v_cndmask_b32 v9, v%d, v9, s[30:31]", VOOB)
    PK = 40
    KF = 128
    for c in range(3):
        regs = [ACC + c * 8 + j for j in range(4)]
        for j, r in enumerate(regs):
            k("v_fma_f32 v%d, v%d, v%d, v%d", r, CQ + c * 4 + j, VS, r)
        for r in regs:
            k("v_mul_f32 v%d, v%d, v%d", r, r, VS + 1)
        bf16round4(regs)
        phi4(regs)
        k("v_cvt_pk_bf16_f32 v%d, v%d, v%d", PK + c * 2, regs[0], regs[1])
        k("v_cvt_pk_bf16_f32 v%d, v%d, v%d", PK + c * 2 + 1, regs[2], regs[3])
    k("buffer_store_dwordx4 %s, v%d, s[64:67], s38 offen sc1", vr(PK, 4), VL16)
    k("buffer_store_dwordx2 %s, v9, s[68:71], s39 offen sc1", vr(PK + 4, 2))
    k("s_waitcnt lgkmcnt(0)")
    k("v_cmp_eq_u32 s[52:53], 4, v%d", VI)
    for c in range(3, 9):
        regs = [ACC + c * 8 + j for j in range(4)]
        for j, r in enumerate(regs):
            k("v_fma_f32 v%d, v%d, v%d, v%d", r, CK + c - 3, RS + 2 * j, r)
        for j, r in enumerate(regs):
            k("v_mul_f32 v%d, v%d, v%d", r, r, RS + 2 * j + 1)
        if c < 6:
            bf16round4(regs)
            phi4(regs)
        if c == 8:
            for r in regs:
                k("v_cndmask_b32 v%d, v%d, 1.0, s[52:53]", r, r)
        d = KF + (c - 3) * 2
        k("v_cvt_pk_bf16_f32 v%d, v%d, v%d", d, regs[0], regs[1])
        k("v_cvt_pk_bf16_f32 v%d, v%d, v%d", d + 1, regs[2], regs[3])
    KVD = ACC
    for a in range(3):
        for b in range(3):
            k("v_mfma_f32_16x16x16_bf16 %s, %s, %s, 0", vr(KVD + (a * 3 + b) * 4, 4), vr(KF + a * 2, 2),
              vr(KF + 6 + b * 2, 2))
    k("s_mul_i32 s43, s26, %d", KVS)
    k("s_add_u32 s43, s43, %d", KVX)
    k("v_mul_u32_u24 v8, 208, v%d", VI)
    k("v_lshl_add_u32 v8, v%d, 4, v8", VG)
    k("v_add_u32 v8, s43, v8")
    for a in range(3):
        for b in range(3):
            k("ds_write_b128 v8, %s offset:%d", vr(KVD + (a * 3 + b) * 4, 4), b * 16 * 208 + a * 64)
    VJ, VII, VIO, VGA = 16, 17, 18, 19
    k("v_and_b32 v%d, 3, v0", VJ)
    k("v_lshrrev_b32 v%d, 2, v0", VII)
    k("v_and_b32 v%d, 3, v%d", VIO, VII)
    k("v_lshrrev_b32 v%d, 2, v%d", VGA, VII)
    k("s_and_b32 s27, s26, 3")
    k("s_lshl_b32 s38, s27, 2")
    k("s_and_b32 s39, s24, 3")
    k("s_and_b32 s41, s24, 1")
    k("s_lshl_b32 s41, s41, 1")
    k("s_add_u32 s42, s41, 1")
    k("v_cmp_gt_u32 s[44:45], 2, v%d", VJ)
    k("v_cmp_gt_u32 s[46:47], 2, v%d", VIO)
    k("v_cmp_eq_u32 s[48:49], s41, v%d", VGA)
    k("v_cmp_eq_u32 s[50:51], s42, v%d", VGA)
    k("v_cmp_eq_u32 s[52:53], 2, v%d", VIO)
    k("v_cmp_eq_u32 s[54:55], 3, v%d", VIO)
    k("s_and_b64 s[48:49], s[48:49], s[46:47]")
    k("s_and_b64 s[50:51], s[50:51], s[46:47]")
    k("s_or_b64 s[48:49], s[48:49], s[52:53]")
    k("s_or_b64 s[50:51], s[50:51], s[54:55]")
    k("s_cmp_eq_u32 s27, 0")
    k("s_cselect_b64 s[56:57], -1, 0")
    k("s_cmp_eq_u32 s27, s39")
    k("s_cselect_b64 s[58:59], -1, 0")
    k("v_add_u32 v20, s38, v%d", VJ)
    k("v_add_u32 v21, 16, v20")
    k("v_add_u32 v22, 32, v%d", VJ)
    k("v_cmp_le_u32 s[60:61], 18, v21")
    k("v_add_u32 v23, 18, v%d", VII)
    k("v_add_u32 v24, 16, v%d", VIO)
    k("v_cndmask_b32 v24, 36, v24, s[46:47]")
    k("v_add_u32 v25, 34, v%d", VIO)
    k("v_cndmask_b32 v25, 36, v25, s[46:47]")
    k("v_cndmask_b32 v26, v25, v24, s[48:49]")
    k("s_and_b64 s[62:63], s[56:57], s[44:45]")
    k("s_mov_b64 s[64:65], -1")
    k("s_mov_b64 s[66:67], s[62:63]")
    k("s_mov_b64 s[68:69], s[60:61]")
    k("s_mov_b64 s[70:71], s[58:59]")
    k("s_mov_b64 s[72:73], s[48:49]")
    k("s_and_b64 s[74:75], s[48:49], s[62:63]")
    k("s_and_b64 s[44:45], s[50:51], s[60:61]")
    k("s_or_b64 s[74:75], s[74:75], s[44:45]")
    k("s_and_b64 s[46:47], s[50:51], s[58:59]")
    k("v_and_b32 v27, 255, v%d", VTID)
    k("v_lshlrev_b32 v27, 2, v27")
    k("s_mul_i32 s38, s24, 7168")
    k("s_add_u32 s39, s38, 4096")
    poll = k.newlabel("poll")
    pd = k.newlabel("polldone")
    k("s_cmp_lg_u32 s26, 0")
    k("s_cbranch_scc1 %s", pd)
    k("s_waitcnt vmcnt(%d)", 3 if "nopf2" in G.OPT else 5)
    k("v_readfirstlane_b32 s41, v10")
    k("s_cmp_eq_u32 s41, 1")
    k("s_cbranch_scc1 %s", pd)
    k("s_cmp_eq_u32 s25, 0")
    k("s_cbranch_scc1 %s", poll)
    k("v_mov_b32 v%d, 1", VT)
    k("s_mov_b64 exec, 1")
    k("buffer_atomic_add v%d, v12, s[76:79], s29 offen sc0 sc1", VT)
    k("s_mov_b64 exec, -1")
    k("s_waitcnt vmcnt(0)")
    k("v_readfirstlane_b32 s41, v%d", VT)
    k("s_cmp_lg_u32 s41, 0")
    k("s_cbranch_scc1 %s", poll)
    zero_kv()
    k.label(poll)
    k("buffer_load_dword v10, v12, s[76:79], s29 offen offset:64 sc0 sc1")
    k("s_waitcnt vmcnt(0)")
    k("v_readfirstlane_b32 s41, v10")
    k("s_cmp_eq_u32 s41, 1")
    k("s_cbranch_scc1 %s", pd)
    k("s_sleep 2")
    k("s_branch %s", poll)
    k.label(pd)
    k("s_waitcnt lgkmcnt(0)")
    k("s_barrier")
    G.stamp(k)
    blocks = [(VII, 20), (VII, 21), (23, 21), (23, 22), (24, 20), (26, 21), (25, 22)]
    masks = ["s[64:65]", "s[66:67]", "s[68:69]", "s[70:71]", "s[72:73]", "s[74:75]", "s[46:47]"]
    other = k.newlabel("half1")
    fin = k.newlabel("fin")
    k("s_cmp_ge_u32 s26, 4")
    k("s_cbranch_scc1 %s", other)
    for half in range(2):
        rs = [0, 3, 4, 6] if half == 0 else [2, 1, 5]
        for n, r in enumerate(rs):
            ve, vd = blocks[r]
            b = 56 + n * 12
            k("v_mul_u32_u24 v%d, 52, v%d", b, ve)
            k("v_add_lshl_u32 v%d, v%d, v%d, 2", b, b, vd)
            k("v_add_u32 v%d, %d, v%d", b, KVX, b)
            k("v_add_u32 v%d, %d, v%d", b + 2, 4 * KVS, b)
            k("v_cndmask_b32 v%d, v%d, v27, %s", b + 1, VOOB, masks[r])
            for w in range(8):
                k("ds_read_b32 v%d, v%d offset:%d", b + 4 + w, b + (2 if w >= 4 else 0), (w % 4) * KVS)
            k("s_waitcnt lgkmcnt(8)" if n else "s_nop 0")
            if n:
                bb = 56 + (n - 1) * 12
                rr = rs[n - 1]
                for (x, y) in ((4, 5), (6, 7), (8, 9), (10, 11), (4, 6), (8, 10), (4, 8)):
                    k("v_add_f32 v%d, v%d, v%d", bb + x, bb + x, bb + y)
                k("buffer_atomic_add_f32 v%d, v%d, s[80:83], s%d offen offset:%d", bb + 4, bb + 1, 38 + rr // 4, (rr % 4) * 1024)
        k("s_waitcnt lgkmcnt(0)")
        bb = 56 + (len(rs) - 1) * 12
        rr = rs[-1]
        for (x, y) in ((4, 5), (6, 7), (8, 9), (10, 11), (4, 6), (8, 10), (4, 8)):
            k("v_add_f32 v%d, v%d, v%d", bb + x, bb + x, bb + y)
        k("buffer_atomic_add_f32 v%d, v%d, s[80:83], s%d offen offset:%d", bb + 4, bb + 1, 38 + rr // 4, (rr % 4) * 1024)
        if half == 0:
            k("s_branch %s", fin)
            k.label(other)
    k.label(fin)
    if G.STAMP:
        k("s_waitcnt vmcnt(0)")
        G.stamp(k)
        G.stamp_dump(k, 4, 5, 26)
    k.label(end)
    k("s_endpgm")
    return k.finish(148, 100, 102), "k1_kernel grid=(256,1,1) block=(512,1,1) lds=%d" % LDS_TOTAL
```

```python
from asmfw import K, vr, ar, sr
import gen as G

OOB = 0x7f000000
WOW = 20736
PREP = 84992
XL = 129024
CNT = XL + 4 * 2304
CSW = CNT + 64
LDS_TOTAL = CSW + 4 * 1152


def gen():
    k = K("k2_kernel")
    k.sbase = 88
    end = G.prologue_exit(k, 256, 1, (198, 199), 16)
    k("s_load_dwordx2 s[4:5], s[0:1], %d", G.KA_WS)
    k("s_load_dwordx2 s[6:7], s[0:1], %d", G.KA_X)
    k("s_load_dwordx2 s[8:9], s[0:1], %d", G.KA_WO)
    k("s_load_dwordx4 s[12:15], s[0:1], %d", G.KA_WG)
    k("s_lshr_b32 s21, s2, 3")
    k("s_and_b32 s24, s21, 7")
    k("s_and_b32 s25, s2, 7")
    k("s_lshl_b32 s25, s25, 2")
    k("s_lshr_b32 s20, s2, 6")
    k("s_add_u32 s25, s25, s20")
    k("s_bfe_u32 s22, s2, 0x10002")
    k("s_and_b32 s23, s2, 3")
    k("v_lshrrev_b32 v1, 6, v0")
    k("v_and_b32 v0, 63, v0")
    k("v_readfirstlane_b32 s26, v1")
    VG, VI, VI4, VIM, VL16, VOOB = 1, 2, 3, 4, 5, 6
    k("v_lshrrev_b32 v%d, 4, v0", VG)
    k("v_and_b32 v%d, 15, v0", VI)
    k("v_bfe_u32 v%d, v0, 2, 2", VI4)
    k("v_and_b32 v%d, 3, v0", VIM)
    k("v_lshlrev_b32 v%d, 4, v0", VL16)
    k("v_mov_b32 v%d, 0x%x", VOOB, OOB)
    k("v_mov_b32 v7, %d", CNT)
    k("v_mov_b32 v8, 0")
    k("ds_write_b32 v7, v8")
    k("s_waitcnt lgkmcnt(0)")
    k("s_barrier")
    lprep = k.newlabel("prep")
    k("s_cmp_ge_u32 s26, 4")
    k("s_cbranch_scc1 %s", lprep)

    k("v_cmp_eq_u32 s[30:31], 0, v%d", VG)
    VPB, VL8 = 16, 8
    k("v_lshlrev_b32 v17, 3, v%d", VI)
    k("v_cndmask_b32 v%d, v%d, v17, s[30:31]", VPB, VOOB)
    k("v_lshlrev_b32 v%d, 3, v0", VL8)
    k("v_and_b32 v17, 1, v%d", VG)
    k("v_cmp_eq_u32 s[42:43], 1, v17")
    VWD = 17
    k("s_mov_b32 s27, 0x%x", (1 << 32) // 9 + 1)
    for q in range(4):
        k("v_cmp_eq_u32 vcc, %d, v%d", q, VG)
        k("v_cndmask_b32 v%d, v%d, v%d, vcc", 20 + q, VOOB, VL16)
    for i in range(3):
        k("v_add_u32 v40, %d, v0", 64 * i)
        k("v_mul_hi_u32 v41, v40, s27")
        k("v_mul_u32_u24 v42, 9, v41")
        k("v_sub_u32 v42, v40, v42")
        k("v_mul_u32_u24 v41, 1152, v41")
        k("v_lshl_add_u32 v%d, v42, 4, v41", VWD + i)
    VTB, VTB2, VXR = 35, 36, 37
    k("s_mul_i32 s27, s26, %d", WOW)
    k("v_lshl_add_u32 v40, v%d, 2, v%d", VG, VI4)
    k("v_mul_u32_u24 v40, 144, v40")
    k("v_lshl_add_u32 v40, v%d, 3, v40", VIM)
    k("v_add_u32 v%d, s27, v40", VTB)
    k("v_mul_u32_u24 v40, 18, v%d", VG)
    k("v_and_b32 v41, 1, v%d", VI4)
    k("v_lshrrev_b32 v42, 1, v%d", VI4)
    k("v_mul_u32_u24 v42, 72, v42")
    k("v_add3_u32 v40, v40, v41, v42")
    k("v_add_u32 v40, 16, v40")
    k("v_mul_u32_u24 v40, 144, v40")
    k("v_lshl_add_u32 v40, v%d, 3, v40", VIM)
    k("v_add_u32 v%d, s27, v40", VTB2)
    k("v_cmp_gt_u32 s[44:45], 32, v0")
    k("s_mul_i32 s53, s26, 2304")
    k("s_add_u32 s53, s53, %d", XL)
    k("v_mul_u32_u24 v40, 144, v%d", VI)
    k("v_lshl_add_u32 v40, v%d, 3, v40", VG)
    k("v_add_u32 v%d, s53, v40", VXR)
    k("s_waitcnt lgkmcnt(0)")
    k.srd(64, 4, 5, G.SZ_KV, G.WS_KV)
    k.srd(68, 4, 5, G.SZ_PQA, G.WS_PQA)
    k.srd(72, 4, 5, G.SZ_PQB, G.WS_PQB)
    k.srd(76, 4, 5, G.SZ_WOC, G.WS_WOC)
    k.srd(80, 6, 7, G.SZ_H)
    G.stamp(k)
    KVR = 48
    PQ = 104
    PB2 = 168
    DT = 176
    k("s_mul_i32 s54, s26, %d", 4 * 7168)
    k("s_lshl_b32 s28, s25, 6")
    k("s_lshl_b32 s29, s26, 2")
    k("s_add_u32 s28, s28, s29")
    k("s_lshl_b32 s55, s28, 10")
    k("s_lshl_b32 s56, s28, 7")
    k("s_lshl_b32 s57, s24, 2")
    k("s_add_u32 s57, s57, s26")
    k("s_mul_i32 s57, s57, %d", WOW)
    k("s_lshl_b32 s28, s25, 6")
    k("s_lshl_b32 s29, s26, 4")
    k("s_add_u32 s28, s28, s29")
    k("s_mul_i32 s28, s28, 1152")
    k("s_mul_i32 s29, s24, 144")
    k("s_add_u32 s48, s28, s29")
    rr = [0]

    def sreg():
        rr[0] += 1
        return 60 + rr[0] % 4

    def kv_ops(q):
        ops = []
        for n in range(7):
            def f(n=n):
                r = sreg()
                k("s_add_u32 s%d, s54, %d", r, q * 7168 + n * 1024)
                k.vmem(("KV", q), "buffer_load_dwordx4 %s, v%d, s[64:67], s%d offen", vr(KVR + (q % 2) * 28 + 4 * n, 4),
                       20 if n == 1 else (20 + q if n in (3, 6) else VL16), r)
            ops.append(f)
        return ops

    def pqa_ops(q):
        ops = []
        for t in range(4):
            def f(t=t):
                r = sreg()
                k("s_add_u32 s%d, s55, %d", r, (t * 16 + q) * 1024)
                k.vmem(("PQ", q), "buffer_load_dwordx4 %s, v%d, s[68:71], s%d offen", vr(PQ + (q * 4 + t) * 4, 4), VL16, r)
            ops.append(f)
        return ops

    def pqb_ops():
        ops = []
        for t in range(4):
            def f(t=t):
                r = sreg()
                k("s_add_u32 s%d, s56, %d", r, t * 2048)
                k.vmem(("PQ", 0), "buffer_load_dwordx2 %s, v%d, s[72:75], s%d offen", vr(PB2 + t * 2, 2), VL8, r)
            ops.append(f)
        return ops

    def wo_ops():
        ops = []
        for i in range(21):
            def f(i=i):
                r = sreg()
                k("s_add_u32 s%d, s57, %d", r, i * 1024)
                k("s_add_u32 m0, s27, %d", i * 1024)
                if i == 20:
                    k("s_mov_b64 exec, 0xffff")
                k.vmem("WO", "buffer_load_dwordx4 v%d, s[76:79], s%d offen lds", VL16, r)
                if i == 20:
                    k("s_mov_b64 exec, -1")
            ops.append(f)
        return ops

    def x_ops():
        ops = []
        for i in range(3):
            def f(i=i):
                k("s_add_u32 m0, s53, %d", i * 1024)
                if i == 2:
                    k("s_mov_b64 exec, 0xffff")
                k.vmem("X", "buffer_load_dwordx4 v%d, s[80:83], s48 offen lds", VWD + i)
                if i == 2:
                    k("s_mov_b64 exec, -1")
            ops.append(f)
        return ops

    for f in kv_ops(0) + pqb_ops() + pqa_ops(0) + kv_ops(1) + pqa_ops(1):
        f()
    wo_l = wo_ops() + x_ops()
    pend = pqa_ops(2) + pqa_ops(3) + wo_l[:8]

    def tick(n=1):
        for _ in range(n):
            if pend:
                pend.pop(0)()

    G.stamp(k)

    def dregs(n):
        return (DT + 12 * n, DT + 12 * n + 4, DT + 12 * n + 8)

    LR = [9, 10, 11, 12, 13, 14, 15, 38, 39, 40, 41, 42, 43, 44, 45, 46]

    def lreg(t, j):
        return LR[t * 4 + j]

    def cvt_kv(q):
        b = KVR + (q % 2) * 28
        k.wait_vm([("KV", q)])
        cv = lambda d, s_: k("v_cvt_pk_bf16_f32 v%d, v%d, v%d", d, s_, s_ + 1)
        cv(b + 0, b + 0); cv(b + 1, b + 2); cv(b + 2, b + 4); cv(b + 3, b + 6)
        cv(b + 6, b + 8); cv(b + 7, b + 10)
        k("v_mov_b32 v%d, 0", b + 4)
        k("v_mov_b32 v%d, 0", b + 5)
        tick()
        cv(b + 8, b + 12); cv(b + 9, b + 14)
        cv(b + 12, b + 16); cv(b + 13, b + 18); cv(b + 14, b + 20); cv(b + 15, b + 22)
        cv(b + 16, b + 24); cv(b + 17, b + 26)
        tick()
        k.wait_vm([("PQ", q)])

    def mf(u):
        q, t = divmod(u, 4)
        b = KVR + (q % 2) * 28
        p = PQ + u * 4
        pb = PB2 + t * 2
        d0, d1, d2 = dregs(u % 2)
        return [
            lambda: k("v_mfma_f32_16x16x32_bf16 %s, %s, %s, 0", vr(d2, 4), vr(b + 12, 4), vr(p, 4)),
            lambda: k("v_mfma_f32_16x16x32_bf16 %s, %s, %s, 0", vr(d1, 4), vr(b + 4, 4), vr(p, 4)),
            lambda: k("v_mfma_f32_16x16x32_bf16 %s, %s, %s, 0", vr(d0, 4), vr(b, 4), vr(p, 4)),
            lambda: k("v_mfma_f32_16x16x16_bf16 %s, %s, %s, %s", vr(d2, 4), vr(b + 16, 2), vr(pb, 2), vr(d2, 4)),
            lambda: k("v_mfma_f32_16x16x16_bf16 %s, %s, %s, %s", vr(d1, 4), vr(b + 8, 2), vr(pb, 2), vr(d1, 4)),
        ]

    def va(u):
        q, t = divmod(u, 4)
        p = PQ + u * 4
        d0, d1, d2 = dregs(u % 2)
        l0, l1 = lreg(t, 2 * (q // 2)), lreg(t, 2 * (q // 2) + 1)
        L = []
        A = lambda fmt, *a_: L.append(lambda: k(fmt, *a_))
        A("v_add_f32 v26, 0x%08x, v%d", G.f32bits(1e-6), d2 + 2)
        A("v_add_f32 v27, 0x%08x, v%d", G.f32bits(1e-6), d2 + 3)
        A("v_rcp_f32 v26, v26")
        A("v_rcp_f32 v27, v27")
        for j in range(4):
            A("v_mul_f32 v%d, v%d, v26", d0 + j, d0 + j)
        A("v_cndmask_b32 v28, v26, v27, s[42:43]")
        for j in range(4):
            A("v_mul_f32 v%d, v%d, v27", d1 + j, d1 + j)
        if q % 2 == 0:
            A("v_mul_f32 v%d, v%d, v28", l0, d2)
            A("v_mul_f32 v%d, v%d, v28", l1, d2 + 1)
        else:
            A("v_fmac_f32 v%d, v%d, v28", l0, d2)
            A("v_fmac_f32 v%d, v%d, v28", l1, d2 + 1)
        A("v_cvt_pk_bf16_f32 v%d, v%d, v%d", p, d0, d0 + 1)
        A("v_cvt_pk_bf16_f32 v%d, v%d, v%d", p + 1, d0 + 2, d0 + 3)
        A("v_cvt_pk_bf16_f32 v%d, v%d, v%d", p + 2, d1, d1 + 1)
        A("v_cvt_pk_bf16_f32 v%d, v%d, v%d", p + 3, d1 + 2, d1 + 3)
        return L

    cvt_kv(0)
    for f in mf(0):
        f()
    for u in range(16):
        nxt = []
        if u + 1 < 16:
            if (u + 1) % 4 == 0:
                cvt_kv((u + 1) // 4)
            nxt = mf(u + 1)
        L = va(u)
        tick(2)
        while nxt or L:
            if nxt:
                nxt.pop(0)()
            for _ in range(4):
                if L:
                    L.pop(0)()
        q1, t1 = divmod(u + 1, 4)
        if t1 == 3 and q1 < 2:
            pend[0:0] = kv_ops(q1 + 2)
            tick(7)
        else:
            tick(2)
        if u == 2:
            pend += wo_l[8:16]
        if u == 6:
            pend += wo_l[16:]
    tick(100)
    for t in range(4):
        p = PB2 + t * 2
        k("v_cvt_pk_bf16_f32 v%d, v%d, v%d", p, lreg(t, 0), lreg(t, 1))
        k("v_cvt_pk_bf16_f32 v%d, v%d, v%d", p + 1, lreg(t, 2), lreg(t, 3))
    G.stamp(k)
    def accr(mu, t):
        n = mu * 4 + t
        return KVR + n * 4 if n < 14 else DT + (n - 14) * 4
    k.wait_vm(["WO"])
    fr = [(mu, kap) for mu in range(5) for kap in range(5)]
    NB, NWB = 6, 12

    def rd(n):
        mu, kap = fr[n]
        b = (n % NWB) * 4
        if kap < 4:
            k.lds(("W", n), "ds_read_b64_tr_b16 %s, v%d offset:%d", ar(b, 2), VTB, kap * 5184 + mu * 32)
            k.lds(("W", n), "ds_read_b64_tr_b16 %s, v%d offset:%d", ar(b + 2, 2), VTB, kap * 5184 + mu * 32 + 2592)
        else:
            k.lds(("W", n), "ds_read_b64_tr_b16 %s, v%d offset:%d", ar(b, 2), VTB2, mu * 32)
    nr = 0
    for n, (mu, kap) in enumerate(fr):
        while nr <= min(n + NB, len(fr) - 1):
            rd(nr)
            nr += 1
        k.wait_lg([("W", n)])
        b = (n % NWB) * 4
        for t in range(4):
            a = vr(accr(mu, t), 4)
            if kap < 4:
                k("v_mfma_f32_16x16x32_bf16 %s, %s, %s, %s", a, ar(b, 4), vr(PQ + (kap * 4 + t) * 4, 4), "0" if kap == 0 else a)
            else:
                k("v_mfma_f32_16x16x16_bf16 %s, %s, %s, %s", a, ar(b, 2), vr(PB2 + t * 2, 2), a)
    G.stamp(k)
    VS = 104
    done = k.newlabel("own_done")
    for t in range(4):
        lab = k.newlabel("skipw")
        lab2 = k.newlabel("next")
        k("s_cmp_eq_u32 s26, %d", t)
        k("s_cbranch_scc1 %s", lab)
        k("s_sub_u32 s28, %d, s26", t + 3)
        k("s_and_b32 s28, s28, 3")
        k("s_mul_i32 s28, s28, 5120")
        k("s_add_u32 s28, s28, s27")
        k("v_add_u32 v28, s28, v%d", VL16)
        for mu in range(5):
            k("ds_write_b128 v28, %s offset:%d", vr(accr(mu, t), 4), mu * 1024)
        k("s_branch %s", lab2)
        k.label(lab)
        for mu in range(5):
            for j in range(4):
                k("v_mov_b32 v%d, v%d", VS + mu * 4 + j, accr(mu, t) + j)
        k.label(lab2)
    k.wait_vm(["X"])
    k("s_waitcnt lgkmcnt(0)")
    k.lg.ops = []
    k("v_mov_b32 v28, 1")
    k("s_mov_b64 exec, 1")
    k("ds_add_u32 v7, v28")
    k("s_mov_b64 exec, -1")
    spin = k.newlabel("spin")
    k.label(spin)
    k("ds_read_b32 v28, v7")
    k("s_waitcnt lgkmcnt(0)")
    k("v_readfirstlane_b32 s28, v28")
    k("s_cmp_lt_u32 s28, 4")
    k("s_cbranch_scc1 %s", spin)
    G.stamp(k)
    VR = 124
    VX = 18
    for mu in range(5):
        k("ds_read_b64 %s, v%d offset:%d", vr(VX + 2 * mu, 2), VXR, mu * 32)
    for d in range(1, 4):
        k("s_add_u32 s28, s26, %d", d)
        k("s_and_b32 s28, s28, 3")
        k("s_mul_i32 s28, s28, %d", WOW)
        k("v_add_u32 v%d, s28, v%d", 28 + d, VL16)
        for mu in range(5):
            k("ds_read_b128 %s, v%d offset:%d", vr(VR + ((d - 1) * 5 + mu) * 4, 4), 28 + d, (3 - d) * 5120 + mu * 1024)
    k.srd(64, 4, 5, G.SZ_HT, G.WS_HT)
    k.srd(68, 4, 5, G.SZ_H, G.WS_HF)
    k.srd(72, 4, 5, G.SZ_STAT, G.WS_STAT)
    k("s_lshl_b32 s28, s25, 3")
    k("s_add_u32 s28, s28, s24")
    k("s_lshl_b32 s28, s28, 2")
    k("s_add_u32 s28, s28, s26")
    k("s_mul_i32 s48, s28, 2560")
    k("s_mul_i32 s28, s24, 72")
    k("v_lshl_add_u32 v44, v%d, 2, s28", VG)
    k("v_lshrrev_b32 v45, 4, v44")
    k("v_bfe_u32 v46, v44, 3, 1")
    k("v_bfe_u32 v47, v44, 2, 1")
    k("v_lshlrev_b32 v45, 6, v45")
    k("v_lshl_add_u32 v45, v46, 5, v45")
    k("s_and_b32 s28, s26, 1")
    k("s_lshl_b32 s28, s28, 4")
    k("v_add3_u32 v45, v45, v%d, s28", VI)
    k("v_lshlrev_b32 v45, 4, v45")
    k("v_lshl_add_u32 v32, v47, 3, v45")
    k("v_cndmask_b32 v33, v%d, v32, s[44:45]", VOOB)
    k("s_lshl_b32 s28, s25, 1")
    k("s_lshr_b32 s29, s26, 1")
    k("s_add_u32 s28, s28, s29")
    k("s_mul_i32 s49, s28, 36864")
    k("s_add_u32 s50, s49, 4096")
    k("v_mov_b32 v34, 0")
    k("v_mov_b32 v39, 0")
    k("v_mov_b32 v44, 0x3f803f80")
    for d in range(3):
        k("s_waitcnt lgkmcnt(%d)", 10 - 5 * d)
        for j in range(20):
            k("v_add_f32 v%d, v%d, v%d", VS + j, VS + j, VR + d * 20 + j)
    for mu in range(5):
        b = VS + mu * 4
        k("v_cvt_pk_bf16_f32 v40, v%d, v%d", b, b + 1)
        k("v_cvt_pk_bf16_f32 v41, v%d, v%d", b + 2, b + 3)
        k("v_lshlrev_b32 v%d, 16, v40", b)
        k("v_and_b32 v%d, 0xffff0000, v40", b + 1)
        k("v_lshlrev_b32 v%d, 16, v41", b + 2)
        k("v_and_b32 v%d, 0xffff0000, v41", b + 3)
        x = VX + mu * 2
        k("v_lshlrev_b32 v40, 16, v%d", x)
        k("v_and_b32 v41, 0xffff0000, v%d", x)
        k("v_lshlrev_b32 v42, 16, v%d", x + 1)
        k("v_and_b32 v43, 0xffff0000, v%d", x + 1)
        for j in range(4):
            k("v_add_f32 v%d, v%d, v%d", b + j, b + j, 40 + j)
        k("v_cvt_pk_bf16_f32 v%d, v%d, v%d", x, b, b + 1)
        k("v_cvt_pk_bf16_f32 v%d, v%d, v%d", x + 1, b + 2, b + 3)
        if "ht" in G.OPT:
            k("buffer_store_dwordx2 %s, v%d, s[64:67], s48 offen offset:%d sc1", vr(x, 2), VL8, mu * 512)
        k("buffer_store_dwordx2 %s, v%d, s[68:71], s%d offen offset:%d sc1", vr(x, 2), 32 if mu < 4 else 33,
          49 if mu < 4 else 50, (mu % 4) * 1024)
        if mu == 4:
            k("v_cndmask_b32 v40, 0, v%d, s[44:45]", x)
            k("v_cndmask_b32 v41, 0, v%d, s[44:45]", x + 1)
            src = (40, 41)
        else:
            src = (x, x + 1)
        for sreg_ in src:
            k("v_dot2_f32_bf16 v34, v%d, v44, v34", sreg_)
            k("v_dot2_f32_bf16 v39, v%d, v%d, v39", sreg_, sreg_)
    for xr in (16, 32):
        k("v_xor_b32 v40, %d, v0", xr)
        k("v_lshlrev_b32 v40, 2, v40")
        k("ds_bpermute_b32 v41, v40, v34")
        k("ds_bpermute_b32 v42, v40, v39")
        k("s_waitcnt lgkmcnt(0)")
        k("v_add_f32 v34, v34, v41")
        k("v_add_f32 v39, v39, v42")
    k("v_mov_b32 v35, v39")
    k("s_lshl_b32 s28, s24, 14")
    k("s_lshl_b32 s29, s25, 9")
    k("s_add_u32 s28, s28, s29")
    k("s_lshl_b32 s29, s26, 7")
    k("s_add_u32 s28, s28, s29")
    k("buffer_store_dwordx2 v[34:35], v%d, s[72:75], s28 offen sc1", VPB)
    if G.STAMP:
        G.stamp(k)
        k("s_waitcnt vmcnt(0)")
        G.stamp(k)
        G.stamp_dump(k, 4, 5, 26)
    k("s_endpgm")

    k.label(lprep)
    k.vm.ops = []
    k.lg.ops = []
    if G.STAMP:
        k.nstamp = 0
    k("s_sub_u32 s27, s26, 4")
    VPD = 17
    k("s_mov_b32 s28, 0x%x", (1 << 32) // 18 + 1)
    for i in range(9):
        k("v_add_u32 v40, %d, v0", 64 * i)
        k("v_mul_hi_u32 v41, v40, s28")
        k("v_mul_u32_u24 v42, 18, v41")
        k("v_sub_u32 v42, v40, v42")
        k("v_mul_u32_u24 v41, 9216, v41")
        k("v_lshl_add_u32 v%d, v42, 4, v41", VPD + i)
    k("s_waitcnt lgkmcnt(0)")
    k("s_cmp_eq_u32 s22, 0")
    k("s_cselect_b32 s84, s12, s14")
    k("s_cselect_b32 s85, s13, s15")
    k("s_mov_b32 s86, 0x%x", G.D * G.F * 2)
    k("s_mov_b32 s87, 0x20000")
    k.srd(64, 4, 5, G.SZ_WF, G.WS_WF)
    k.srd(68, 4, 5, G.SZ_CS, G.WS_CS)
    G.stamp(k)
    k("s_mul_i32 s58, s23, 144")
    k("s_lshl_b32 s29, s27, 5")
    k("s_add_u32 s58, s58, s29")
    k("s_mul_i32 s58, s58, 9216")
    k("s_mul_i32 s29, s21, 288")
    k("s_add_u32 s58, s58, s29")
    k("s_mul_i32 s59, s27, %d", 32 * 288)
    k("s_add_u32 s59, s59, %d", PREP)
    for i in range(9):
        k("s_add_u32 m0, s59, %d", i * 1024)
        k("buffer_load_dwordx4 v%d, s[84:87], s58 offen lds", VPD + i)
    lab = k.newlabel("noextra")
    k("s_cmp_lg_u32 s27, 3")
    k("s_cbranch_scc1 %s", lab)
    k("s_add_u32 s60, s58, %d", 32 * 9216)
    for i in range(5):
        k("s_add_u32 m0, s59, %d", 9216 + i * 1024)
        if i == 4:
            k("s_mov_b32 exec_hi, 0")
        k("buffer_load_dwordx4 v%d, s[84:87], s60 offen lds", VPD + i)
        if i == 4:
            k("s_mov_b64 exec, -1")
    k.label(lab)
    k("v_lshrrev_b32 v40, 1, v%d", VG)
    k("v_and_b32 v41, 1, v%d", VG)
    k("v_lshl_add_u32 v42, v41, 3, v%d", VI4)
    k("v_mul_u32_u24 v42, 288, v42")
    k("v_lshl_add_u32 v42, v%d, 3, v42", VIM)
    k("v_add_u32 v42, s59, v42")
    k("v_lshl_add_u32 v44, v40, 5, v42")
    k("s_lshl_b32 s28, s22, 4")
    k("v_lshl_add_u32 v43, v41, 5, v%d", VI)
    k("v_add_u32 v43, s28, v43")
    k("v_lshlrev_b32 v43, 4, v43")
    k("v_mul_u32_u24 v46, 36864, v40")
    k("v_add_u32 v46, v46, v43")
    k("v_cmp_eq_u32 vcc, 0, v40")
    k("v_cndmask_b32 v45, v%d, v43, vcc", VOOB)
    k("s_mul_i32 s28, s21, 324")
    k("s_mul_i32 s29, s23, 9")
    k("s_add_u32 s28, s28, s29")
    k("s_lshl_b32 s29, s27, 1")
    k("s_add_u32 s28, s28, s29")
    k("s_lshl_b32 s51, s28, 10")
    k("v_mov_b32 v10, 0x3f803f80")
    k("v_cmp_eq_u32 s[46:47], v40, v%d", VI)
    for j in range(4):
        k("v_cndmask_b32 v%d, 0, v10, s[46:47]", 48 + j)
    CA = 52
    PB = 72

    def sigma(sg, first):
        for cp in range(5):
            b = PB + (sg * 5 + cp) * 4
            ad = 44 if cp < 4 else 42
            off = sg * 16 * 288 + cp * 64
            k("ds_read_b64_tr_b16 %s, v%d offset:%d", vr(b, 2), ad, off)
            k("ds_read_b64_tr_b16 %s, v%d offset:%d", vr(b + 2, 2), ad, off + 1152)
        for cp in range(5):
            b = PB + (sg * 5 + cp) * 4
            k("s_waitcnt lgkmcnt(%d)", 8 - 2 * cp)
            k("s_add_u32 s%d, s51, %d", 60 + cp % 2, sg * 1024 + cp * 2 * 36864)
            k("buffer_store_dwordx4 %s, v%d, s[64:67], s%d offen sc1", vr(b, 4), 46 if cp < 4 else 45, 60 + cp % 2)
            a = vr(CA + cp * 4, 4)
            k("v_mfma_f32_16x16x32_bf16 %s, %s, v[48:51], %s", a, vr(b, 4), "0" if first else a)

    k("s_waitcnt vmcnt(0)")
    G.stamp(k)
    sigma(0, True)
    sigma(1, False)
    lab = k.newlabel("noextra2")
    k("s_cmp_lg_u32 s27, 3")
    k("s_cbranch_scc1 %s", lab)
    sigma(2, False)
    k.label(lab)
    k("s_mul_i32 s28, s27, 1152")
    k("s_add_u32 s28, s28, %d", CSW)
    k("v_lshlrev_b32 v9, 4, v40")
    k("v_lshl_add_u32 v9, v41, 5, v9")
    k("v_lshl_add_u32 v9, v%d, 6, v9", VI)
    k("v_add_u32 v9, s28, v9")
    k("v_cmp_gt_u32 vcc, 2, v%d", VI)
    k("s_and_saveexec_b64 s[30:31], vcc")
    for cp in range(5):
        k("ds_write_b128 v9, %s offset:%d", vr(CA + cp * 4, 4), cp * 128)
    k("s_mov_b64 exec, s[30:31]")
    k("v_lshl_add_u32 v10, v0, 2, s28")
    k("s_waitcnt lgkmcnt(0)")
    for r in range(3):
        k("ds_read_b32 v%d, v10 offset:%d", 12 + r, r * 256)
    k("v_bfe_u32 v9, v0, 3, 1")
    k("v_and_b32 v11, 7, v0")
    k("v_lshl_add_u32 v9, v9, 4, v11")
    k("s_lshl_b32 s29, s22, 3")
    k("v_add_u32 v9, s29, v9")
    k("v_lshl_add_u32 v9, v%d, 5, v9", VG)
    k("v_lshlrev_b32 v9, 2, v9")
    k("v_cmp_gt_u32 vcc, 16, v0")
    k("v_cndmask_b32 v11, v%d, v9, vcc", VOOB)
    k("s_mul_i32 s28, s21, 1152")
    k("s_waitcnt lgkmcnt(0)")
    for r in range(3):
        k("buffer_atomic_add_f32 v%d, v%d, s[68:71], s28 offen offset:%d", 12 + r, 9 if r < 2 else 11, r * 512)
    k("s_load_dwordx2 s[72:73], s[0:1], %d", G.KA_WD)
    k("s_lshl_b32 s29, s27, 6")
    k("v_add_u32 v9, s29, v0")
    k("v_cmp_gt_u32 vcc, 162, v9")
    k("v_lshlrev_b32 v9, 7, v9")
    k("v_cndmask_b32 v9, v%d, v9, vcc", VOOB)
    k("s_mul_i32 s28, s2, 20736")
    k("s_waitcnt lgkmcnt(0)")
    k("s_mov_b32 s74, 0x%x", G.F * G.D * 2)
    k("s_mov_b32 s75, 0x20000")
    k("buffer_load_dword v11, v9, s[72:75], s28 offen")
    if G.STAMP:
        G.stamp(k)
        k("s_waitcnt vmcnt(0)")
        G.stamp(k)
        G.stamp_dump(k, 4, 5, 26)
    k.label(end)
    k("s_endpgm")
    return k.finish(200, 48, 102), "k2_kernel grid=(256,1,1) block=(512,1,1) lds=%d" % LDS_TOTAL
```

```python
from asmfw import K, vr, ar, sr
import gen as G

SLOT = 36864
CSOFF = 4 * SLOT


def gen():
    k = K("k3_kernel")
    end = G.prologue_exit(k, 256, 1, (238, 239), 6)
    k("s_load_dwordx2 s[4:5], s[0:1], %d", G.KA_WS)
    k("s_load_dwordx2 s[36:37], s[0:1], %d", G.KA_WD)
    k("s_and_b32 s20, s2, 7")
    k("s_lshr_b32 s21, s2, 3")
    k("s_and_b32 s21, s21, 3")
    k("s_lshl_b32 s21, s21, 3")
    k("s_add_u32 s24, s20, s21")
    k("s_lshr_b32 s25, s2, 5")
    k("v_lshrrev_b32 v1, 6, v0")
    k("v_and_b32 v0, 63, v0")
    k("v_readfirstlane_b32 s26, v1")
    VL16, VST, VNM, VC1, VRS2, VCSA, VSB = 1, 2, 4, 6, 8, 10, 11
    VSTAT = 15
    k("v_lshlrev_b32 v%d, 4, v0", VL16)
    for sl in range(4):
        k("v_add_u32 v%d, %d, v%d", VSB + sl, sl * SLOT, VL16)
    k("v_bfe_u32 v16, v0, 4, 1")
    k("v_lshrrev_b32 v17, 5, v0")
    k("v_and_b32 v18, 15, v0")
    k("v_mul_u32_u24 v16, 147456, v16")
    k("v_lshl_add_u32 v16, v17, 8, v16")
    k("v_lshl_add_u32 v%d, v18, 4, v16", VST)
    k("v_lshlrev_b32 v16, 6, v17")
    k("v_add_u32 v%d, %d, v16", VCSA, CSOFF)
    k("v_and_b32 v16, 31, v0")
    k("v_lshlrev_b32 v%d, 3, v16", VSTAT)
    k("s_mov_b32 s27, 0x%x", (1 << 32) // 9 + 1)
    for i in range(6):
        k("v_add_u32 v16, %d, v0", 64 * i)
        k("v_mul_hi_u32 v17, v16, s27")
        k("v_mul_u32_u24 v18, 9, v17")
        k("v_sub_u32 v18, v16, v18")
        k("v_mul_u32_u24 v17, 1152, v17")
        k("v_lshl_add_u32 v%d, v18, 4, v17", 240 + i)
    k("v_lshrrev_b32 v16, 2, v0")
    k("v_mul_u32_u24 v16, 144, v16")
    k("v_and_b32 v17, 3, v0")
    k("v_lshl_add_u32 v16, v17, 3, v16")
    k("v_add_u32 v246, %d, v16", SLOT)
    k("v_bfe_u32 v16, v0, 4, 1")
    k("v_lshrrev_b32 v17, 5, v0")
    k("v_and_b32 v18, 15, v0")
    k("v_lshl_add_u32 v19, v16, 4, v18")
    k("v_lshlrev_b32 v19, 4, v19")
    k("v_lshl_add_u32 v247, v17, 3, v19")
    k("v_lshl_add_u32 v19, v16, 3, v18")
    k("v_lshlrev_b32 v19, 4, v19")
    k("v_lshl_add_u32 v19, v17, 3, v19")
    k("v_mov_b32 v16, 0x7f000000")
    k("v_cmp_gt_u32 vcc, 8, v18")
    k("v_cndmask_b32 v248, v16, v19, vcc")
    k("s_waitcnt lgkmcnt(0)")
    k.srd(8, 4, 5, G.SZ_H, G.WS_HF)
    k.srd(12, 4, 5, G.SZ_WF, G.WS_WF)
    k.srd(16, 4, 5, G.SZ_ACT, G.WS_ACT)
    k.srd(40, 4, 5, G.SZ_STAT, G.WS_STAT)
    k.srd(44, 4, 5, G.SZ_CS, G.WS_CS)
    k.srd(80, 36, 37, G.F * G.D * 2)
    k.srd(84, 4, 5, G.SZ_WDF, G.WS_WDF)
    G.stamp(k)
    G.stamp(k, True)
    k("s_lshl_b32 s28, s25, 3")
    k("s_lshl_b32 s29, s26, 1")
    k("s_add_u32 s28, s28, s29")
    k("s_mul_i32 s30, s28, 36864")
    k("s_mul_i32 s31, s24, %d", 9 * SLOT)
    k("s_lshl_b32 s29, s26, 10")
    k("s_add_u32 s31, s31, s29")
    k("s_mov_b32 s32, s29")
    k("s_lshl_b32 s28, s25, 4")
    k("s_lshl_b32 s33, s26, 2")
    k("s_add_u32 s28, s28, s33")
    k("s_mul_i32 s33, s28, 147456")
    k("s_mul_i32 s28, s24, 4608")
    k("s_add_u32 s33, s33, s28")
    k("s_lshl_b32 s34, s25, 11")
    k("s_lshl_b32 s28, s26, 9")
    k("s_add_u32 s34, s34, s28")
    k("s_mul_i32 s35, s24, 1152")
    k("s_add_u32 s35, s35, s32")

    VAO = 16
    ACC = 48
    VW = 176
    NWB = 8
    VCS = 208
    VT = 224

    def afrag(t, s):
        if s < 32:
            return ar((s * 2 + t) * 4, 4)
        return vr(VAO + ((s - 32) * 2 + t) * 4, 4)

    GP = 3
    steps = [(c, s) for s in range(36) for c in range(GP)] + [(c, s) for c in range(GP, 9) for s in range(36)]
    NS = len(steps)
    tstep = {cs: i for i, cs in enumerate(steps)}
    AH = 5
    bars = sorted(set([0] + [12 * g + 6 for g in range(9)] + [108 + 36 * i + o for i in range(6) for o in (6, 24)]))
    bars = [b for b in bars if b < NS - AH]

    def last_read_step(c, g):
        return max(tstep[(c, s)] for s in range(4 * g, 4 * g + 4))

    ops = []
    sreg_rr = [0]

    def mk_dma(c, g):
        def f():
            sreg = 48 + sreg_rr[0] % 4
            sreg_rr[0] += 1
            k("s_add_u32 s%d, s31, %d", sreg, c * SLOT + g * 4096)
            k("s_add_u32 m0, s32, %d", (c % 4) * SLOT + g * 4096)
            if "nodma2" in G.OPT and c >= 4:
                k.vm.issue(("D", c, g))
                k.vm.ops.pop()
                issued.add(("D", c, g))
                k.vm.ops.append(("D", c, g))
                return
            k.vmem(("D", c, g), "buffer_load_dwordx4 v%d, s[12:15], s%d offen lds", VL16, sreg)
        if c >= 4:
            lr = last_read_step(c - 4, g)
            eb = min(b for b in bars if b > lr)
        else:
            eb = -1
        return (f, eb)

    def mk_a(t, s):
        def f():
            sreg = 48 + sreg_rr[0] % 4
            sreg_rr[0] += 1
            k("s_add_u32 s%d, s30, %d", sreg, t * 36864 + s * 1024)
            k.vmem(("A", s), "buffer_load_dwordx4 %s, v%d, s[8:11], s%d offen", afrag(t, s), VL16, sreg)
        return (f, -1)

    def mk_stat(t, p):
        def f():
            sreg = 48 + sreg_rr[0] % 4
            sreg_rr[0] += 1
            k("s_add_u32 s%d, s34, %d", sreg, p * 16384 + t * 256)
            k.vmem("S", "buffer_load_dwordx2 %s, v%d, s[40:43], s%d offen", vr(ACC + 96 + (t * 8 + p) * 2, 2), VSTAT, sreg)
        return (f, -1)

    def mk_cs():
        def f():
            lab = k.newlabel("nocs")
            k("s_cmp_ge_u32 s26, 2")
            k("s_cbranch_scc1 %s", lab)
            k("s_add_u32 m0, s32, %d", CSOFF)
            k("buffer_load_dwordx4 v%d, s[44:47], s35 offen lds", VL16)
            k.label(lab)
            k.vm.issue("CS")
        return (f, -1)

    for g in range(9):
        for s in range(4 * g, 4 * g + 4):
            ops.append(mk_a(0, s))
            ops.append(mk_a(1, s))
            if s % 4 < GP:
                ops.append(mk_dma(s % 4, g))
        if g == 3:
            for t in range(2):
                for p in range(8):
                    ops.append(mk_stat(t, p))
    for c in range(GP, 9):
        for g in range(9):
            ops.append(mk_dma(c, g))

    VWD = 240

    def mk_wd(i):
        def f():
            if i == 0:
                k("s_mul_i32 s54, s24, 144")
                k("s_mul_i32 s55, s26, 36")
                k("s_add_u32 s54, s54, s55")
                k("s_mul_i32 s54, s54, 1152")
                k("s_mul_i32 s55, s25, 144")
                k("s_add_u32 s54, s54, s55")
                k("s_mul_i32 s55, s26, %d", 36 * 144)
            k("s_add_u32 m0, s55, %d", SLOT + i * 1024)
            if i == 5:
                k("s_mov_b64 exec, 15")
            k.vmem("WD", "buffer_load_dwordx4 v%d, s[80:83], s54 offen lds", VWD + i)
            if i == 5:
                k("s_mov_b64 exec, -1")
        eb = min(b for b in bars if b > tstep[(5, 35)])
        return (f, eb)
    for i in range(6):
        ops.append(mk_wd(i))

    lab = k.newlabel("nocs")
    k("s_cmp_ge_u32 s26, 2")
    k("s_cbranch_scc1 %s", lab)
    k("s_add_u32 m0, s32, %d", CSOFF)
    k("buffer_load_dwordx4 v%d, s[44:47], s35 offen lds", VL16)
    k.label(lab)

    side = []

    def S(cost, fmt, *a):
        if "novalu" in G.OPT:
            return
        side.append((cost, lambda: k(fmt, *a)))

    def stats_block():
        base = ACC + 96
        side.append((4, lambda: k.wait_vm(["S"])))
        for t in range(2):
            b = base + t * 16
            for p in range(1, 8):
                S(4, "v_add_f32 v%d, v%d, v%d", b, b, b + 2 * p)
                S(4, "v_add_f32 v%d, v%d, v%d", b + 1, b + 1, b + 2 * p + 1)
            S(4, "v_mul_f32 v%d, 0x%08x, v%d", b, G.f32bits(1.0 / 576), b)
            S(4, "v_mul_f32 v%d, 0x%08x, v%d", b + 1, G.f32bits(1.0 / 576), b + 1)
            S(4, "v_fma_f32 v%d, -v%d, v%d, v%d", b + 1, b, b, b + 1)
            S(4, "v_max_f32 v%d, 0, v%d", b + 1, b + 1)
            S(4, "v_cvt_pk_bf16_f32 v%d, v%d, v%d", b + 2, b, b + 1)
            S(4, "v_lshlrev_b32 v%d, 16, v%d", b, b + 2)
            S(4, "v_and_b32 v%d, 0xffff0000, v%d", b + 1, b + 2)
            S(4, "v_add_f32 v%d, 0x%08x, v%d", b + 1, G.f32bits(1e-5), b + 1)
            S(4, "v_cvt_pk_bf16_f32 v%d, v%d, v%d", b + 2, b + 1, b + 1)
            S(4, "v_lshlrev_b32 v%d, 16, v%d", b + 1, b + 2)
            S(8, "v_sqrt_f32 v%d, v%d", b + 1, b + 1)
            S(4, "v_sub_f32 v%d, 0, v%d", VNM + t, b)
            S(4, "v_cvt_pk_bf16_f32 v%d, v%d, v%d", b + 2, b + 1, b + 1)
            S(4, "v_lshlrev_b32 v%d, 16, v%d", b + 1, b + 2)
            S(4, "v_mul_f32 v%d, v%d, v%d", VRS2 + t, b + 1, b + 1)
            S(8, "v_rcp_f32 v%d, v%d", b + 1, b + 1)
            S(4, "s_nop 0")
            S(4, "v_mul_f32 v%d, 0x%08x, v%d", VC1 + t, G.f32bits(-1.4426950408889634), b + 1)

    def epilogue(c):
        a0 = ACC + (c % 4) * 32
        for q in range(4):
            side.append((4, lambda q=q: k.lds(("C", c), "ds_read_b128 %s, v%d offset:%d", vr(VCS + 4 * q, 4), VCSA,
                                              c * 128 + q * 16)))
        side.append((4, lambda: k.wait_lg([("C", c)])))
        for t in range(2):
            a = a0 + 16 * t
            for h in range(2):
                rs = range(4 * h, 4 * h + 4)
                for r in rs:
                    S(4, "v_fmac_f32 v%d, v%d, v%d", a + r, VCS + r, VNM + t)
                for r in rs:
                    S(4, "v_mul_f32 v%d, v%d, v%d", VT + r, a + r, VC1 + t)
                for r in rs:
                    S(4, "v_fmac_f32 v%d, v%d, v%d", a + 8 + r, VCS + 8 + r, VNM + t)
                for r in rs:
                    S(8, "v_exp_f32 v%d, v%d", VT + r, VT + r)
                for r in rs:
                    S(4, "v_mul_f32 v%d, v%d, v%d", a + r, a + r, a + 8 + r)
                for r in rs:
                    S(4, "v_fma_f32 v%d, v%d, v%d, v%d", VT + r, VT + r, VRS2 + t, VRS2 + t)
                for r in rs:
                    S(8, "v_rcp_f32 v%d, v%d", VT + r, VT + r)
                for r in rs:
                    S(4, "v_mul_f32 v%d, v%d, v%d", a + r, a + r, VT + r)
            o = VT + 8 + 4 * t
            for q in range(4):
                S(4, "v_cvt_pk_bf16_f32 v%d, v%d, v%d", o + q, a + 2 * q, a + 2 * q + 1)

            def st(t=t, o=o):
                k("s_add_u32 s%d, s33, %d", 52 + t, 2 * t * 147456 + c * 512)
                k.vmem(("O", c), "buffer_store_dwordx4 %s, v%d, s[16:19], s%d offen" + G.STMOD, vr(o, 4), VST, 52 + t)
            side.append((8, st))

    def wd_stream():
        for rnd in range(3):
            def pre(rnd=rnd):
                if rnd < 2:
                    k("s_add_u32 s57, s26, %d", 4 * rnd)
                else:
                    k("s_cmp_eq_u32 s26, 0")
                    k("s_cselect_b32 s57, 8, s26")
                k("s_mul_i32 s59, s57, 2304")
                k("v_add_u32 v249, s59, v246")
                k("s_mul_i32 s56, s24, 9")
                k("s_add_u32 s56, s56, s57")
                k("s_lshr_b32 s57, s56, 1")
                k("s_and_b32 s56, s56, 1")
                k("s_mul_i32 s59, s25, 144")
                k("s_add_u32 s57, s57, s59")
                k("s_mul_i32 s57, s57, 4608")
                k("s_lshl_b32 s59, s56, 9")
                k("s_add_u32 s88, s57, s59")
                k("s_lshl_b32 s59, s56, 8")
                k("s_add_u32 s89, s57, s59")
                k("s_add_u32 s89, s89, 4096")
            side.append((16, pre))
            for grp in ((0, 1, 2), (3, 4)):
                for ct in grp:
                    side.append((4, lambda ct=ct, rnd=rnd: k.lds(("WT", rnd, ct), "ds_read_b64_tr_b16 %s, v249 offset:%d",
                                                              vr(250 + 2 * (ct % 3), 2), ct * 32)))
                for ct in grp:
                    def stw(ct=ct, rnd=rnd):
                        k.wait_lg([("WT", rnd, ct)])
                        if ct < 4:
                            k.vmem("WS", "buffer_store_dwordx2 %s, v247, s[84:87], s88 offen offset:%d sc1",
                                   vr(250 + 2 * (ct % 3), 2), ct * 1024)
                        else:
                            k.vmem("WS", "buffer_store_dwordx2 %s, v248, s[84:87], s89 offen sc1", vr(250 + 2 * (ct % 3), 2))
                    side.append((8, stw))

    issued = set()
    oi = 0

    def do_op():
        nonlocal oi
        ops[oi][0]()
        issued.add(k.vm.ops[-1])
        oi += 1

    def nstores_pending():
        return sum(1 for (cst, f) in side if getattr(f, "__name__", "") == "st")

    BUD = (16, 12)
    PRO = 36
    while oi < PRO:
        do_op()
    WDBAR = min(b for b in bars if b > tstep[(7, 0)])
    nread = 0
    visible = set()
    cur_bar = -1
    ep_done = 0
    stats_added = False
    for T, (c, s) in enumerate(steps):
        if T in bars:
            nb = min([b for b in bars if b > T] + [NS])
            need = set()
            for T2 in range(nread, min(nb + AH, NS)):
                c2, s2 = steps[T2]
                if (c2, s2 // 4) not in visible:
                    need.add((c2, s2 // 4))
            guard = 0
            for u in sorted(need):
                while ("D",) + u not in issued:
                    assert ops[oi][1] <= cur_bar, ("WAR", u, ops[oi][1], T)
                    do_op()
                    guard += 1
            if guard:
                print("k3: forced %d early loads at step %d" % (guard, T))
            wd_now = (T == WDBAR)
            if wd_now:
                assert oi == len(ops)
            k.wait_vm([("D",) + u for u in need] + (["WD"] if wd_now else []))
            k("s_barrier")
            if wd_now:
                wd_stream()
            visible |= need
            cur_bar = T
            if T in (0, 102, 114, 222):
                G.stamp(k)
        while nread <= min(T + AH, NS - 1) and (steps[nread][0], steps[nread][1] // 4) in visible:
            c2, s2 = steps[nread]
            k.lds(("W", nread), "ds_read_b128 %s, v%d offset:%d", vr(VW + (nread % NWB) * 4, 4), VSB + c2 % 4, s2 * 1024)
            nread += 1
        assert nread > T
        if T < 108 and c == 0:
            assert ("A", s) in issued
            k.wait_vm([("A", s)])
        k.wait_lg([("W", T)])
        if T == 60 and not stats_added:
            stats_block()
            stats_added = True
        if T >= 110:
            while ep_done < 9 and tstep[(ep_done, 35)] + 2 <= T and (len(side) < 40):
                epilogue(ep_done)
                ep_done += 1
        if s == 0 and c >= 3:
            if c == 3:
                while side:
                    side.pop(0)[1]()
            else:
                assert ep_done > c - 4, (c, ep_done)
                queued_after = ep_done - 1 - (c - 4)
                nf = 0
                while side and (nstores_pending() + 1) // 2 > queued_after:
                    side.pop(0)[1]()
                    nf += 1
                if nf:
                    print("k3: flushed %d side ops before chunk %d" % (nf, c))
        w = vr(VW + (T % NWB) * 4, 4)
        for t in range(2):
            a = ACC + (c % 4) * 32 + 16 * t
            cc = "0" if s == 0 else vr(a, 16)
            k("v_mfma_f32_32x32x16_bf16 %s, %s, %s, %s", vr(a, 16), w, afrag(t, s), cc)
            budget = BUD[t]
            if t == 0 and oi < len(ops) and ops[oi][1] <= cur_bar:
                do_op()
                budget -= 8
            while side and budget >= side[0][0]:
                cst, f = side.pop(0)
                f()
                budget -= cst
    G.stamp(k)
    while ep_done < 9:
        epilogue(ep_done)
        ep_done += 1
    while side:
        side.pop(0)[1]()
    assert oi == len(ops)
    if G.STAMP:
        k("s_waitcnt vmcnt(0)")
        G.stamp(k)
        G.stamp(k, True)
        G.stamp_dump(k, 4, 5, 26)
    k.label(end)
    k("s_endpgm")
    return k.finish(256, 256, 102), "k3_kernel grid=(256,1,1) block=(256,1,1) lds=%d" % (CSOFF + 2048)
```

```python
import sys
from asmfw import K, vr, ar, sr

S, D, F = 2048, 576, 4608
WS_KV = 0x3100000
WS_CS = 0x010000
WS_STAT = 0x020000
WS_PQA = 0x040000
WS_PQB = 0x240000
WS_H = 0x280000
WS_HF = 0x4C0000
WS_WF = 0x700000
WS_ACT = 0x1200000
WS_PART = 0x2400000
WS_WDF = 0x2400000
WS_XCH = 0x3800000
WS_FLAG = 0x3000000
WS_HT = 0x3200000
SZ_HT = 256 * 4 * 2560
WS_WOC = 0x2A00000
SZ_WOC = 576 * 576 * 2
SZ_WDF = 4 * 144 * 9216
SZ_XCH = 64 * 4 * 3 * 18432
SZ_FLAG = 4096
SZ_KV = 16 * 7168
SZ_CS = 288 * 32 * 4
SZ_STAT = 8 * 2048 * 2 * 4
SZ_PQA = 128 * 16 * 1024
SZ_PQB = 128 * 16 * 128
SZ_H = S * D * 2
SZ_WF = 288 * 36 * 1024
SZ_ACT = 128 * 144 * 1024
SZ_PART = 4 * S * D * 4

KA_X, KA_WQKV, KA_WO, KA_BX, KA_WG, KA_WU, KA_WD, KA_OUT, KA_DBG, KA_WS = [8 * i for i in range(10)]


import struct


def f32bits(x):
    return struct.unpack("<I", struct.pack("<f", x))[0]


STAMP = False
OPT = set()
STMOD = ""
WS_DBG = 0x3600000


def stamp(k, real=False):
    if not STAMP:
        return
    n = getattr(k, "nstamp", 0)
    sb = getattr(k, "sbase", 60)
    k("%s s[%d:%d]", "s_memrealtime" if real else "s_memtime", sb + 2 * n, sb + 1 + 2 * n)
    k("s_waitcnt lgkmcnt(0)")
    k.lg.ops = []
    k.nstamp = n + 1


def stamp_dump(k, ws_lo, ws_hi, swave):
    if not STAMP:
        return
    n = k.nstamp
    k.srd(56, ws_lo, ws_hi, 0x80000, WS_DBG + 0x80000 * (int(k.name[1]) - 1))
    k("s_lshl_b32 s55, s2, 4")
    k("s_add_u32 s55, s55, s%d", swave)
    k("s_lshl_b32 s55, s55, 7")
    k("v_mov_b32 v1, 0")
    for i in range(n):
        k("v_mov_b32 v2, s%d", getattr(k, "sbase", 60) + 2 * i)
        k("buffer_store_dword v2, v1, s[56:59], s55 offen offset:%d", 4 * i)


def prologue_exit(k, nwg, code_kb=0, vtmp=(250, 251), stmp=16):
    end = k.name + "_end"
    k("s_cmp_ge_u32 s2, %d", nwg)
    k("s_cbranch_scc1 %s", end)
    if code_kb and "nocodepf" not in OPT:
        k("s_getpc_b64 s[%d:%d]", stmp, stmp + 1)
        k.label(k.name + "_pc")
        k("v_lshlrev_b32 v%d, 7, v0", vtmp[0])
        k("v_min_u32 v%d, %s-%s_pc, v%d", vtmp[0], end, k.name, vtmp[0])
        k("global_load_dword v%d, v%d, s[%d:%d]", vtmp[1], vtmp[0], stmp, stmp + 1)
    return end


def gen_k5():
    k = K("k5_kernel")
    end = prologue_exit(k, 576)
    k("s_load_dwordx2 s[4:5], s[0:1], %d", KA_WS)
    k("s_load_dwordx2 s[6:7], s[0:1], %d", KA_OUT)
    k("s_lshl_b32 s3, s2, 8")
    k("v_add_u32 v1, s3, v0")
    k("v_lshlrev_b32 v2, 5, v1")
    k("v_lshlrev_b32 v3, 4, v1")
    k("s_waitcnt lgkmcnt(0)")
    k.srd(8, 4, 5, SZ_PART, WS_PART)
    k.srd(12, 4, 5, SZ_H, WS_H)
    k.srd(16, 6, 7, SZ_H)
    k("s_mov_b32 s20, %d", S * D * 4)
    k("s_mov_b32 s21, %d", 2 * S * D * 4)
    k("s_mov_b32 s22, %d", 3 * S * D * 4)
    k("buffer_load_dwordx4 v[4:7], v2, s[8:11], 0 offen")
    k("buffer_load_dwordx4 v[8:11], v2, s[8:11], 0 offen offset:16")
    k("buffer_load_dwordx4 v[12:15], v2, s[8:11], s20 offen")
    k("buffer_load_dwordx4 v[16:19], v2, s[8:11], s20 offen offset:16")
    k("buffer_load_dwordx4 v[20:23], v2, s[8:11], s21 offen")
    k("buffer_load_dwordx4 v[24:27], v2, s[8:11], s21 offen offset:16")
    k("buffer_load_dwordx4 v[28:31], v2, s[8:11], s22 offen")
    k("buffer_load_dwordx4 v[32:35], v2, s[8:11], s22 offen offset:16")
    k("buffer_load_dwordx4 v[36:39], v3, s[12:15], 0 offen")
    k("s_waitcnt vmcnt(5)")
    for j in range(8):
        k("v_add_f32 v%d, v%d, v%d", 4 + j, 4 + j, 12 + j)
    k("s_waitcnt vmcnt(1)")
    for j in range(8):
        k("v_add_f32 v%d, v%d, v%d", 20 + j, 20 + j, 28 + j)
    for j in range(8):
        k("v_add_f32 v%d, v%d, v%d", 4 + j, 4 + j, 20 + j)
    for j in range(4):
        k("v_cvt_pk_bf16_f32 v%d, v%d, v%d", 12 + j, 4 + 2 * j, 5 + 2 * j)
    k("s_waitcnt vmcnt(0)")
    for j in range(4):
        k("v_lshlrev_b32 v%d, 16, v%d", 4 + 2 * j, 12 + j)
        k("v_and_b32 v%d, 0xffff0000, v%d", 5 + 2 * j, 12 + j)
        k("v_lshlrev_b32 v%d, 16, v%d", 20 + 2 * j, 36 + j)
        k("v_and_b32 v%d, 0xffff0000, v%d", 21 + 2 * j, 36 + j)
    for j in range(8):
        k("v_add_f32 v%d, v%d, v%d", 4 + j, 4 + j, 20 + j)
    for j in range(4):
        k("v_cvt_pk_bf16_f32 v%d, v%d, v%d", 12 + j, 4 + 2 * j, 5 + 2 * j)
    k("buffer_store_dwordx4 v[12:15], v3, s[16:19], 0 offen")
    k.label(end)
    k("s_endpgm")
    return k.finish(40, 0, 32), "k5_kernel grid=(576,1,1) block=(256,1,1) lds=0"


def gen_k4old():
    k = K("k4_kernel")
    end = prologue_exit(k, 256)
    SLOT = 36864
    k("s_load_dwordx2 s[4:5], s[0:1], %d", KA_WS)
    k("s_load_dwordx2 s[6:7], s[0:1], %d", KA_WD)
    k("s_and_b32 s20, s2, 7")
    k("s_lshr_b32 s21, s2, 3")
    k("s_and_b32 s22, s20, 3")
    k("s_lshr_b32 s23, s20, 2")
    k("s_and_b32 s24, s21, 3")
    k("s_lshr_b32 s25, s21, 2")
    k("s_lshl_b32 s23, s23, 3")
    k("s_add_u32 s25, s25, s23")
    k("v_lshrrev_b32 v1, 6, v0")
    k("v_and_b32 v0, 63, v0")
    k("v_readfirstlane_b32 s26, v1")
    VD = 8
    k("s_mov_b32 s27, 0x%x", (1 << 32) // 18 + 1)
    for i in range(9):
        k("v_add_u32 v2, %d, v0", 64 * i)
        k("v_mul_hi_u32 v3, v2, s27")
        k("v_mul_u32_u24 v4, 18, v3")
        k("v_sub_u32 v4, v2, v4")
        k("v_mul_u32_u24 v3, 1152, v3")
        k("v_lshl_add_u32 v%d, v4, 4, v3", VD + i)
    VTB = 17
    k("v_lshrrev_b32 v2, 5, v0")
    k("v_bfe_u32 v3, v0, 4, 1")
    k("v_bfe_u32 v4, v0, 2, 2")
    k("v_and_b32 v5, 3, v0")
    k("v_lshlrev_b32 v2, 4, v2")
    k("v_lshl_add_u32 v2, v3, 2, v2")
    k("v_add_u32 v2, v2, v4")
    k("v_mul_u32_u24 v2, 288, v2")
    k("v_lshl_add_u32 v%d, v5, 3, v2", VTB)
    for sl in range(1, 4):
        k("v_add_u32 v%d, %d, v%d", VTB + sl, sl * SLOT, VTB)
    VLANE16 = 21
    k("v_lshlrev_b32 v%d, 4, v0", VLANE16)
    VST = 22
    k("v_and_b32 v2, 15, v0")
    k("v_lshrrev_b32 v3, 4, v0")
    k("v_mul_u32_u24 v2, 2304, v2")
    k("v_lshl_add_u32 v%d, v3, 4, v2", VST)
    k("s_waitcnt lgkmcnt(0)")
    k.srd(8, 4, 5, SZ_ACT, WS_ACT)
    k.srd(12, 6, 7, F * D * 2)
    k.srd(16, 4, 5, SZ_PART, WS_PART)
    k("s_lshl_b32 s28, s25, 3")
    k("s_lshl_b32 s29, s26, 1")
    k("s_add_u32 s28, s28, s29")
    k("s_mul_i32 s28, s28, 144")
    k("s_mul_i32 s29, s22, 36")
    k("s_add_u32 s28, s28, s29")
    k("s_lshl_b32 s28, s28, 10")
    k("s_add_u32 s29, s28, %d", 144 * 1024)
    k("s_mul_i32 s30, s22, 1152")
    k("s_lshl_b32 s31, s26, 5")
    k("s_add_u32 s30, s30, s31")
    k("s_mul_i32 s30, s30, 1152")
    k("s_mul_i32 s31, s24, 288")
    k("s_add_u32 s30, s30, s31")
    k("s_mul_i32 s31, s26, 9216")

    VA = 32
    VW = 128
    NWB = 8
    ACC = 160

    def dma_ops(st):
        if "nodma" in OPT or st >= 9:
            return []
        slot = st % 4
        sreg = 36 + (st % 2)
        ops = []
        for i in range(9):
            def f(i=i):
                if i == 0:
                    k("s_add_u32 s%d, s30, %d", sreg, st * 128 * 1152)
                k("s_add_u32 m0, s31, %d", slot * SLOT + i * 1024)
                k.vmem(("D", st), "buffer_load_dwordx4 v%d, s[12:15], s%d offen lds", VD + i, sreg)
            ops.append(f)
        return ops

    def act_ops(st):
        if "noact" in OPT or st >= 9:
            return []
        base = VA + (st % 3) * 32
        ops = []
        for s in range(4):
            for t in range(2):
                def f(s=s, t=t):
                    if s == 0 and t == 0:
                        k("s_add_u32 s33, s28, %d", st * 4096)
                        k("s_add_u32 s34, s29, %d", st * 4096)
                    k.vmem(("A", st), "buffer_load_dwordx4 %s, v%d, s[8:11], s%d offen offset:%d",
                           vr(base + (s * 2 + t) * 4, 4), VLANE16, 33 + t, s * 1024)
                ops.append(f)
        return ops

    stamp(k)
    stamp(k, True)
    for f in dma_ops(0) + act_ops(0) + dma_ops(1) + act_ops(1) + dma_ops(2):
        f()
    for j in range(72):
        k("v_mov_b32 v%d, 0", ACC + j)

    frags = [(st, s, mu) for st in range(9) for s in range(4) for mu in range(9)]
    AHEAD = 6

    def issue_tr(fi):
        st, s, mu = frags[fi]
        b = VW + (fi % NWB) * 4
        off = s * 9216 + mu * 32
        k.lds(("W", fi), "ds_read_b64_tr_b16 %s, v%d offset:%d", vr(b, 2), VTB + st % 4, off)
        k.lds(("W", fi), "ds_read_b64_tr_b16 %s, v%d offset:%d", vr(b + 2, 2), VTB + st % 4, off + 2304)

    nissued = 0
    pend = []
    for fi, (st, s, mu) in enumerate(frags):
        if s == 0 and mu == 0:
            k.comment("stage %d" % st)
            k.wait_vm([("D", st), ("A", st)])
            k("s_barrier")
            stamp(k)
            d, a = dma_ops(st + 3), act_ops(st + 2)
            pend = []
            while d or a:
                if d:
                    pend.append(d.pop(0))
                if a:
                    pend.append(a.pop(0))
        if "nomfma" in OPT:
            for f in pend:
                f()
            pend = []
            continue
        lim = min(fi + AHEAD, (st + 1) * 36 - 1)
        while nissued <= lim:
            issue_tr(nissued)
            nissued += 1
        k.wait_lg([("W", fi)])
        b = VW + (fi % NWB) * 4
        abase = VA + (st % 3) * 32
        for t in range(2):
            a = ACC + (mu * 2 + t) * 4
            k("v_mfma_f32_16x16x32_bf16 %s, %s, %s, %s", vr(a, 4), vr(b, 4), vr(abase + (s * 2 + t) * 4, 4), vr(a, 4))
        if pend and (fi % 2 == 1):
            pend.pop(0)()
    stamp(k)
    k("s_lshl_b32 s32, s22, 11")
    k("s_lshl_b32 s33, s25, 7")
    k("s_add_u32 s32, s32, s33")
    k("s_lshl_b32 s33, s26, 5")
    k("s_add_u32 s32, s32, s33")
    k("s_mul_i32 s32, s32, 2304")
    k("s_mul_i32 s33, s24, 576")
    k("s_add_u32 s32, s32, s33")
    k("s_add_u32 s33, s32, %d", 16 * 2304)
    for mu in range(9):
        for t in range(2):
            a = ACC + (mu * 2 + t) * 4
            k("buffer_store_dwordx4 %s, v%d, s[16:19], s%d offen offset:%d", vr(a, 4), VST, 32 + t, mu * 64)
    if STAMP:
        k("s_waitcnt vmcnt(0)")
        stamp(k)
        stamp(k, True)
        stamp_dump(k, 4, 5, 26)
    k.label(end)
    k("s_endpgm")
    return k.finish(232, 0, 102), "k4_kernel grid=(256,1,1) block=(256,1,1) lds=%d" % (4 * SLOT)


HEADER = """; Kernarg layout for this problem (80 bytes, ptrs only, base s[0:1]):
"""


def build(kernels):
    texts, descs, launches = [], [], []
    for g in kernels:
        (t, d, nn), l = g()
        texts.append(t)
        descs.append(d)
        launches.append(l)
    out = HEADER
    for l in launches:
        out += "; @launch kernel=%s\n" % l
    out += '.amdgcn_target "amdgcn-amd-amdhsa--gfx950"\n.text\n'
    out += "\n".join(texts) + "\n"
    out += '.section .rodata,"a"\n'
    for d in descs:
        out += ".p2align 6\n" + d + "\n"
    return out


ALL = {}


def main():
    import gen_k1, gen_k2, gen_k3, gen_k4
    global STAMP
    args = sys.argv[2:]
    if "stamp" in args:
        args.remove("stamp")
        STAMP = True
        import gen as _g
        _g.STAMP = True
    for a in list(args):
        if a.startswith("-"):
            args.remove(a)
            OPT.add(a[1:])
            import gen as _g
            _g.OPT.add(a[1:])
            if a[1:] in ("sc1", "nt", "sc0sc1"):
                _g.STMOD = " " + a[1:].replace("sc0sc1", "sc0 sc1")
    names = args if args else ["k1", "k2", "k3", "k4"]
    table = {"k4old": gen_k4old, "k5": gen_k5}
    for mod, nm in ((gen_k1, "k1"), (gen_k2, "k2"), (gen_k3, "k3"), (gen_k4, "k4")):
        if hasattr(mod, "gen"):
            table[nm] = mod.gen
    s = build([table[n] for n in names])
    open(sys.argv[1], "w").write(s)
    print("wrote", sys.argv[1], len(s), "bytes")


if __name__ == "__main__":
    main()
```

```python
from asmfw import K, vr, ar, sr
import gen as G

SLOT = 36864
CSOFF = 4 * SLOT


def gen():
    k = K("k3_kernel")
    end = G.prologue_exit(k, 256, 1, (238, 239), 6)
    k("s_load_dwordx2 s[4:5], s[0:1], %d", G.KA_WS)
    k("s_load_dwordx2 s[36:37], s[0:1], %d", G.KA_WD)
    k("s_and_b32 s20, s2, 7")
    k("s_lshr_b32 s21, s2, 3")
    k("s_and_b32 s21, s21, 3")
    k("s_lshl_b32 s21, s21, 3")
    k("s_add_u32 s24, s20, s21")
    k("s_lshr_b32 s25, s2, 5")
    k("v_lshrrev_b32 v1, 6, v0")
    k("v_and_b32 v0, 63, v0")
    k("v_readfirstlane_b32 s26, v1")
    VL16, VST, VNM, VC1, VRS2, VCSA, VSB = 1, 2, 4, 6, 8, 10, 11
    VSTAT = 15
    k("v_lshlrev_b32 v%d, 4, v0", VL16)
    for sl in range(4):
        k("v_add_u32 v%d, %d, v%d", VSB + sl, sl * SLOT, VL16)
    k("v_bfe_u32 v16, v0, 4, 1")
    k("v_lshrrev_b32 v17, 5, v0")
    k("v_and_b32 v18, 15, v0")
    k("v_mul_u32_u24 v16, 147456, v16")
    k("v_lshl_add_u32 v16, v17, 8, v16")
    k("v_lshl_add_u32 v%d, v18, 4, v16", VST)
    k("v_lshlrev_b32 v16, 6, v17")
    k("v_add_u32 v%d, %d, v16", VCSA, CSOFF)
    k("v_and_b32 v16, 31, v0")
    k("v_lshlrev_b32 v%d, 3, v16", VSTAT)
    k("s_mov_b32 s27, 0x%x", (1 << 32) // 9 + 1)
    for i in range(6):
        k("v_add_u32 v16, %d, v0", 64 * i)
        k("v_mul_hi_u32 v17, v16, s27")
        k("v_mul_u32_u24 v18, 9, v17")
        k("v_sub_u32 v18, v16, v18")
        k("v_mul_u32_u24 v17, 1152, v17")
        k("v_lshl_add_u32 v%d, v18, 4, v17", 240 + i)
    k("v_lshrrev_b32 v16, 2, v0")
    k("v_mul_u32_u24 v16, 144, v16")
    k("v_and_b32 v17, 3, v0")
    k("v_lshl_add_u32 v16, v17, 3, v16")
    k("v_add_u32 v246, %d, v16", SLOT)
    k("v_bfe_u32 v16, v0, 4, 1")
    k("v_lshrrev_b32 v17, 5, v0")
    k("v_and_b32 v18, 15, v0")
    k("v_lshl_add_u32 v19, v16, 4, v18")
    k("v_lshlrev_b32 v19, 4, v19")
    k("v_lshl_add_u32 v247, v17, 3, v19")
    k("v_lshl_add_u32 v19, v16, 3, v18")
    k("v_lshlrev_b32 v19, 4, v19")
    k("v_lshl_add_u32 v19, v17, 3, v19")
    k("v_mov_b32 v16, 0x7f000000")
    k("v_cmp_gt_u32 vcc, 8, v18")
    k("v_cndmask_b32 v248, v16, v19, vcc")
    k("s_waitcnt lgkmcnt(0)")
    k.srd(8, 4, 5, G.SZ_H, G.WS_HF)
    k.srd(12, 4, 5, G.SZ_WF, G.WS_WF)
    k.srd(16, 4, 5, G.SZ_ACT, G.WS_ACT)
    k.srd(40, 4, 5, G.SZ_STAT, G.WS_STAT)
    k.srd(44, 4, 5, G.SZ_CS, G.WS_CS)
    k.srd(80, 36, 37, G.F * G.D * 2)
    k.srd(84, 4, 5, G.SZ_WDF, G.WS_WDF)
    G.stamp(k)
    G.stamp(k, True)
    k("s_lshl_b32 s28, s25, 3")
    k("s_lshl_b32 s29, s26, 1")
    k("s_add_u32 s28, s28, s29")
    k("s_mul_i32 s30, s28, 36864")
    k("s_mul_i32 s31, s24, %d", 9 * SLOT)
    k("s_lshl_b32 s29, s26, 10")
    k("s_add_u32 s31, s31, s29")
    k("s_mov_b32 s32, s29")
    k("s_lshl_b32 s28, s25, 4")
    k("s_lshl_b32 s33, s26, 2")
    k("s_add_u32 s28, s28, s33")
    k("s_mul_i32 s33, s28, 147456")
    k("s_mul_i32 s28, s24, 4608")
    k("s_add_u32 s33, s33, s28")
    k("s_lshl_b32 s34, s25, 11")
    k("s_lshl_b32 s28, s26, 9")
    k("s_add_u32 s34, s34, s28")
    k("s_mul_i32 s35, s24, 1152")
    k("s_add_u32 s35, s35, s32")

    VAO = 16
    ACC = 48
    VW = 176
    NWB = 8
    VCS = 208
    VT = 224

    def afrag(t, s):
        if s < 32:
            return ar((s * 2 + t) * 4, 4)
        return vr(VAO + ((s - 32) * 2 + t) * 4, 4)

    GP = 3
    steps = [(c, s) for s in range(36) for c in range(GP)] + [(c, s) for c in range(GP, 9) for s in range(36)]
    NS = len(steps)
    tstep = {cs: i for i, cs in enumerate(steps)}
    AH = 5
    bars = sorted(set([0] + [12 * g + 6 for g in range(9)] + [108 + 36 * i + o for i in range(6) for o in (6, 24)]))
    bars = [b for b in bars if b < NS - AH]

    def last_read_step(c, g):
        return max(tstep[(c, s)] for s in range(4 * g, 4 * g + 4))

    ops = []
    sreg_rr = [0]

    def mk_dma(c, g):
        def f():
            sreg = 48 + sreg_rr[0] % 4
            sreg_rr[0] += 1
            k("s_add_u32 s%d, s31, %d", sreg, c * SLOT + g * 4096)
            k("s_add_u32 m0, s32, %d", (c % 4) * SLOT + g * 4096)
            if "nodma2" in G.OPT and c >= 4:
                k.vm.issue(("D", c, g))
                k.vm.ops.pop()
                issued.add(("D", c, g))
                k.vm.ops.append(("D", c, g))
                return
            k.vmem(("D", c, g), "buffer_load_dwordx4 v%d, s[12:15], s%d offen lds", VL16, sreg)
        if c >= 4:
            lr = last_read_step(c - 4, g)
            eb = min(b for b in bars if b > lr)
        else:
            eb = -1
        return (f, eb)

    def mk_a(t, s):
        def f():
            sreg = 48 + sreg_rr[0] % 4
            sreg_rr[0] += 1
            k("s_add_u32 s%d, s30, %d", sreg, t * 36864 + s * 1024)
            k.vmem(("A", s), "buffer_load_dwordx4 %s, v%d, s[8:11], s%d offen", afrag(t, s), VL16, sreg)
        return (f, -1)

    def mk_stat(t, p):
        def f():
            sreg = 48 + sreg_rr[0] % 4
            sreg_rr[0] += 1
            k("s_add_u32 s%d, s34, %d", sreg, p * 16384 + t * 256)
            k.vmem("S", "buffer_load_dwordx2 %s, v%d, s[40:43], s%d offen", vr(ACC + 96 + (t * 8 + p) * 2, 2), VSTAT, sreg)
        return (f, -1)

    def mk_cs():
        def f():
            lab = k.newlabel("nocs")
            k("s_cmp_ge_u32 s26, 2")
            k("s_cbranch_scc1 %s", lab)
            k("s_add_u32 m0, s32, %d", CSOFF)
            k("buffer_load_dwordx4 v%d, s[44:47], s35 offen lds", VL16)
            k.label(lab)
            k.vm.issue("CS")
        return (f, -1)

    for g in range(9):
        for s in range(4 * g, 4 * g + 4):
            ops.append(mk_a(0, s))
            ops.append(mk_a(1, s))
            if s % 4 < GP:
                ops.append(mk_dma(s % 4, g))
        if g == 3:
            for t in range(2):
                for p in range(8):
                    ops.append(mk_stat(t, p))
    for c in range(GP, 9):
        for g in range(9):
            ops.append(mk_dma(c, g))

    VWD = 240

    def mk_wd(i):
        def f():
            if i == 0:
                k("s_mul_i32 s54, s24, 144")
                k("s_mul_i32 s55, s26, 36")
                k("s_add_u32 s54, s54, s55")
                k("s_mul_i32 s54, s54, 1152")
                k("s_mul_i32 s55, s25, 144")
                k("s_add_u32 s54, s54, s55")
                k("s_mul_i32 s55, s26, %d", 36 * 144)
            k("s_add_u32 m0, s55, %d", SLOT + i * 1024)
            if i == 5:
                k("s_mov_b64 exec, 15")
            k.vmem("WD", "buffer_load_dwordx4 v%d, s[80:83], s54 offen lds", VWD + i)
            if i == 5:
                k("s_mov_b64 exec, -1")
        eb = min(b for b in bars if b > tstep[(5, 35)])
        return (f, eb)
    for i in range(6):
        ops.append(mk_wd(i))

    lab = k.newlabel("nocs")
    k("s_cmp_ge_u32 s26, 2")
    k("s_cbranch_scc1 %s", lab)
    k("s_add_u32 m0, s32, %d", CSOFF)
    k("buffer_load_dwordx4 v%d, s[44:47], s35 offen lds", VL16)
    k.label(lab)

    side = []

    def S(cost, fmt, *a):
        if "novalu" in G.OPT:
            return
        side.append((cost, lambda: k(fmt, *a)))

    def stats_block():
        base = ACC + 96
        side.append((4, lambda: k.wait_vm(["S"])))
        for t in range(2):
            b = base + t * 16
            for p in range(1, 8):
                S(4, "v_add_f32 v%d, v%d, v%d", b, b, b + 2 * p)
                S(4, "v_add_f32 v%d, v%d, v%d", b + 1, b + 1, b + 2 * p + 1)
            S(4, "v_mul_f32 v%d, 0x%08x, v%d", b, G.f32bits(1.0 / 576), b)
            S(4, "v_mul_f32 v%d, 0x%08x, v%d", b + 1, G.f32bits(1.0 / 576), b + 1)
            S(4, "v_fma_f32 v%d, -v%d, v%d, v%d", b + 1, b, b, b + 1)
            S(4, "v_max_f32 v%d, 0, v%d", b + 1, b + 1)
            S(4, "v_cvt_pk_bf16_f32 v%d, v%d, v%d", b + 2, b, b + 1)
            S(4, "v_lshlrev_b32 v%d, 16, v%d", b, b + 2)
            S(4, "v_and_b32 v%d, 0xffff0000, v%d", b + 1, b + 2)
            S(4, "v_add_f32 v%d, 0x%08x, v%d", b + 1, G.f32bits(1e-5), b + 1)
            S(4, "v_cvt_pk_bf16_f32 v%d, v%d, v%d", b + 2, b + 1, b + 1)
            S(4, "v_lshlrev_b32 v%d, 16, v%d", b + 1, b + 2)
            S(8, "v_sqrt_f32 v%d, v%d", b + 1, b + 1)
            S(4, "v_sub_f32 v%d, 0, v%d", VNM + t, b)
            S(4, "v_cvt_pk_bf16_f32 v%d, v%d, v%d", b + 2, b + 1, b + 1)
            S(4, "v_lshlrev_b32 v%d, 16, v%d", b + 1, b + 2)
            S(4, "v_mul_f32 v%d, v%d, v%d", VRS2 + t, b + 1, b + 1)
            S(8, "v_rcp_f32 v%d, v%d", b + 1, b + 1)
            S(4, "s_nop 0")
            S(4, "v_mul_f32 v%d, 0x%08x, v%d", VC1 + t, G.f32bits(-1.4426950408889634), b + 1)

    def epilogue(c):
        a0 = ACC + (c % 4) * 32
        for q in range(4):
            side.append((4, lambda q=q: k.lds(("C", c), "ds_read_b128 %s, v%d offset:%d", vr(VCS + 4 * q, 4), VCSA,
                                              c * 128 + q * 16)))
        side.append((4, lambda: k.wait_lg([("C", c)])))
        for t in range(2):
            a = a0 + 16 * t
            for h in range(2):
                rs = range(4 * h, 4 * h + 4)
                for r in rs:
                    S(4, "v_fmac_f32 v%d, v%d, v%d", a + r, VCS + r, VNM + t)
                for r in rs:
                    S(4, "v_mul_f32 v%d, v%d, v%d", VT + r, a + r, VC1 + t)
                for r in rs:
                    S(4, "v_fmac_f32 v%d, v%d, v%d", a + 8 + r, VCS + 8 + r, VNM + t)
                for r in rs:
                    S(8, "v_exp_f32 v%d, v%d", VT + r, VT + r)
                for r in rs:
                    S(4, "v_mul_f32 v%d, v%d, v%d", a + r, a + r, a + 8 + r)
                for r in rs:
                    S(4, "v_fma_f32 v%d, v%d, v%d, v%d", VT + r, VT + r, VRS2 + t, VRS2 + t)
                for r in rs:
                    S(8, "v_rcp_f32 v%d, v%d", VT + r, VT + r)
                for r in rs:
                    S(4, "v_mul_f32 v%d, v%d, v%d", a + r, a + r, VT + r)
            o = VT + 8 + 4 * t
            for q in range(4):
                S(4, "v_cvt_pk_bf16_f32 v%d, v%d, v%d", o + q, a + 2 * q, a + 2 * q + 1)

            def st(t=t, o=o):
                k("s_add_u32 s%d, s33, %d", 52 + t, 2 * t * 147456 + c * 512)
                k.vmem(("O", c), "buffer_store_dwordx4 %s, v%d, s[16:19], s%d offen" + G.STMOD, vr(o, 4), VST, 52 + t)
            side.append((8, st))

    def wd_stream():
        for rnd in range(3):
            def pre(rnd=rnd):
                if rnd < 2:
                    k("s_add_u32 s57, s26, %d", 4 * rnd)
                else:
                    k("s_cmp_eq_u32 s26, 0")
                    k("s_cselect_b32 s57, 8, s26")
                k("s_mul_i32 s59, s57, 2304")
                k("v_add_u32 v249, s59, v246")
                k("s_mul_i32 s56, s24, 9")
                k("s_add_u32 s56, s56, s57")
                k("s_lshr_b32 s57, s56, 1")
                k("s_and_b32 s56, s56, 1")
                k("s_mul_i32 s59, s25, 144")
                k("s_add_u32 s57, s57, s59")
                k("s_mul_i32 s57, s57, 4608")
                k("s_lshl_b32 s59, s56, 9")
                k("s_add_u32 s88, s57, s59")
                k("s_lshl_b32 s59, s56, 8")
                k("s_add_u32 s89, s57, s59")
                k("s_add_u32 s89, s89, 4096")
            side.append((16, pre))
            for grp in ((0, 1, 2), (3, 4)):
                for ct in grp:
                    side.append((4, lambda ct=ct, rnd=rnd: k.lds(("WT", rnd, ct), "ds_read_b64_tr_b16 %s, v249 offset:%d",
                                                              vr(250 + 2 * (ct % 3), 2), ct * 32)))
                for ct in grp:
                    def stw(ct=ct, rnd=rnd):
                        k.wait_lg([("WT", rnd, ct)])
                        if ct < 4:
                            k.vmem("WS", "buffer_store_dwordx2 %s, v247, s[84:87], s88 offen offset:%d sc1",
                                   vr(250 + 2 * (ct % 3), 2), ct * 1024)
                        else:
                            k.vmem("WS", "buffer_store_dwordx2 %s, v248, s[84:87], s89 offen sc1", vr(250 + 2 * (ct % 3), 2))
                    side.append((8, stw))

    issued = set()
    oi = 0

    def do_op():
        nonlocal oi
        ops[oi][0]()
        issued.add(k.vm.ops[-1])
        oi += 1

    def nstores_pending():
        return sum(1 for (cst, f) in side if getattr(f, "__name__", "") == "st")

    BUD = (16, 12)
    import os
    PRO = int(os.environ.get("K3PRO", 36))
    FASTT = int(os.environ.get("K3FAST", 0))
    while oi < PRO:
        do_op()
    WDBAR = min(b for b in bars if b > tstep[(7, 0)])
    nread = 0
    visible = set()
    cur_bar = -1
    ep_done = 0
    stats_added = False
    for T, (c, s) in enumerate(steps):
        if T in bars:
            nb = min([b for b in bars if b > T] + [NS])
            need = set()
            for T2 in range(nread, min(nb + AH, NS)):
                c2, s2 = steps[T2]
                if (c2, s2 // 4) not in visible:
                    need.add((c2, s2 // 4))
            guard = 0
            for u in sorted(need):
                while ("D",) + u not in issued:
                    assert ops[oi][1] <= cur_bar, ("WAR", u, ops[oi][1], T)
                    do_op()
                    guard += 1
            if guard:
                print("k3: forced %d early loads at step %d" % (guard, T))
            wd_now = (T == WDBAR)
            if wd_now:
                assert oi == len(ops)
            k.wait_vm([("D",) + u for u in need] + (["WD"] if wd_now else []))
            k("s_barrier")
            if wd_now:
                wd_stream()
            visible |= need
            cur_bar = T
            if T in (0, 102, 114, 222):
                G.stamp(k)
        while nread <= min(T + AH, NS - 1) and (steps[nread][0], steps[nread][1] // 4) in visible:
            c2, s2 = steps[nread]
            k.lds(("W", nread), "ds_read_b128 %s, v%d offset:%d", vr(VW + (nread % NWB) * 4, 4), VSB + c2 % 4, s2 * 1024)
            nread += 1
        assert nread > T
        if T < 108 and c == 0:
            assert ("A", s) in issued
            k.wait_vm([("A", s)])
        k.wait_lg([("W", T)])
        if T == 60 and not stats_added:
            stats_block()
            stats_added = True
        if T >= 110:
            while ep_done < 9 and tstep[(ep_done, 35)] + 2 <= T and (len(side) < 40):
                epilogue(ep_done)
                ep_done += 1
        if s == 0 and c >= 3:
            if c == 3:
                while side:
                    side.pop(0)[1]()
            else:
                assert ep_done > c - 4, (c, ep_done)
                queued_after = ep_done - 1 - (c - 4)
                nf = 0
                while side and (nstores_pending() + 1) // 2 > queued_after:
                    side.pop(0)[1]()
                    nf += 1
                if nf:
                    print("k3: flushed %d side ops before chunk %d" % (nf, c))
        w = vr(VW + (T % NWB) * 4, 4)
        for t in range(2):
            a = ACC + (c % 4) * 32 + 16 * t
            cc = "0" if s == 0 else vr(a, 16)
            k("v_mfma_f32_32x32x16_bf16 %s, %s, %s, %s", vr(a, 16), w, afrag(t, s), cc)
            budget = BUD[t]
            if (t == 0 or T < FASTT) and oi < len(ops) and ops[oi][1] <= cur_bar:
                do_op()
                budget -= 8
            while side and budget >= side[0][0]:
                cst, f = side.pop(0)
                f()
                budget -= cst
    G.stamp(k)
    while ep_done < 9:
        epilogue(ep_done)
        ep_done += 1
    while side:
        side.pop(0)[1]()
    assert oi == len(ops)
    if G.STAMP:
        k("s_waitcnt vmcnt(0)")
        G.stamp(k)
        G.stamp(k, True)
        G.stamp_dump(k, 4, 5, 26)
    k.label(end)
    k("s_endpgm")
    return k.finish(256, 256, 102), "k3_kernel grid=(256,1,1) block=(256,1,1) lds=%d" % (CSOFF + 2048)
```

```python
from asmfw import K, vr, ar, sr
import gen as G


def gen():
    k = K("k4_kernel")
    end = G.prologue_exit(k, 256, 1, (230, 231), 16)
    k("s_load_dwordx2 s[4:5], s[0:1], %d", G.KA_WS)
    k("s_load_dwordx2 s[6:7], s[0:1], %d", G.KA_OUT)
    k("s_and_b32 s20, s2, 7")
    k("s_lshr_b32 s21, s2, 3")
    k("s_and_b32 s24, s21, 7")
    k("s_lshr_b32 s25, s21, 3")
    k("s_lshl_b32 s20, s20, 2")
    k("s_add_u32 s25, s25, s20")
    k("v_lshrrev_b32 v1, 6, v0")
    k("v_and_b32 v0, 63, v0")
    k("v_readfirstlane_b32 s26, v1")
    VL16 = 2
    VHALF = 3
    k("v_lshlrev_b32 v%d, 4, v0", VL16)
    k("v_lshrrev_b32 v4, 4, v0")
    k("v_and_b32 v5, 15, v0")
    k("v_lshl_add_u32 v4, v4, 3, v5")
    k("v_lshlrev_b32 v4, 4, v4")
    k("v_mov_b32 v6, 0x7f000000")
    k("v_cmp_gt_u32 vcc, 8, v5")
    k("v_cndmask_b32 v%d, v6, v4, vcc", VHALF)
    k("s_waitcnt lgkmcnt(0)")
    k.srd(8, 4, 5, G.SZ_ACT, G.WS_ACT)
    k.srd(12, 4, 5, G.SZ_WDF, G.WS_WDF)
    k.srd(44, 4, 5, G.SZ_H, G.WS_HF)
    k.srd(48, 6, 7, G.SZ_H)
    G.stamp(k)
    G.stamp(k, True)
    k("s_mul_i32 s28, s25, %d", 4 * 144)
    k("s_mul_i32 s29, s26, 36")
    k("s_add_u32 s30, s28, s29")
    k("s_lshl_b32 s30, s30, 10")
    k("s_mul_i32 s31, s24, 144")
    k("s_add_u32 s31, s31, s29")
    k("s_mul_i32 s31, s31, 4608")

    NSET = 6
    PF = 5
    NK = 36
    VB = 16

    def wreg(ks, mu):
        return VB + (ks % NSET) * 36 + mu * 4

    def areg(ks, t):
        return VB + (ks % NSET) * 36 + 20 + t * 4

    def load_ops(ks):
        if ks >= NK:
            return []
        a, w = [], []
        sa = 32 + (ks % 2) * 4
        for t in range(4):
            def f(t=t):
                k("s_add_u32 s%d, s30, %d", sa + t, (t * 144 + ks) * 1024)
                k.vmem(("L", ks), "buffer_load_dwordx4 %s, v%d, s[8:11], s%d offen", vr(areg(ks, t), 4), VL16, sa + t)
            a.append(f)
        for mu in range(5):
            def f(mu=mu):
                sw = 52 + (ks % 2) * 2 + mu // 4
                if mu % 4 == 0:
                    k("s_add_u32 s%d, s31, %d", sw, ks * 4608 + (mu // 4) * 4096)
                k.vmem(("L", ks), "buffer_load_dwordx4 %s, v%d, s[12:15], s%d offen offset:%d",
                       vr(wreg(ks, mu), 4), VL16 if mu < 4 else VHALF, sw, (mu % 4) * 1024)
            w.append(f)
        return [a[0], w[0], a[1], a[2], a[3]] + w[1:]

    for ks in range(PF):
        for f in load_ops(ks):
            f()
    for ks in range(NK):
        pend = load_ops(ks + PF)
        k.wait_vm([("L", ks)])
        n = 0
        for mu in range(5):
            for t in range(4):
                a = (mu * 4 + t) * 4
                c = "0" if ks == 0 else ar(a, 4)
                k("v_mfma_f32_16x16x32_bf16 %s, %s, %s, %s", ar(a, 4), vr(wreg(ks, mu), 4), vr(areg(ks, t), 4), c)
                n += 1
                if pend and n % 2 == 0:
                    pend.pop(0)()
        for f in pend:
            f()
        if ks in (0, 17):
            G.stamp(k)
        if ks == NK - PF:
            VHO = 5
            k("v_and_b32 v6, 15, v0")
            k("v_lshrrev_b32 v7, 4, v0")
            k("v_mul_u32_u24 v6, 1152, v6")
            k("v_lshl_add_u32 v%d, v7, 3, v6", VHO)
            k("v_mov_b32 v6, 0x7f000000")
            k("v_cmp_gt_u32 vcc, 32, v0")
            k("v_cndmask_b32 v4, v6, v%d, vcc", VHO)
            k("s_lshl_b32 s28, s25, 6")
            k("s_lshl_b32 s29, s26, 4")
            k("s_add_u32 s28, s28, s29")
            k("s_mul_i32 s28, s28, 1152")
            k("s_mul_i32 s29, s24, 144")
            k("s_add_u32 s40, s28, s29")
            VH = 6
            k("s_mul_i32 s28, s24, 72")
            k("v_lshrrev_b32 v7, 4, v0")
            k("v_lshl_add_u32 v7, v7, 2, s28")
            k("v_lshrrev_b32 v8, 4, v7")
            k("v_bfe_u32 v9, v7, 3, 1")
            k("v_bfe_u32 v10, v7, 2, 1")
            k("v_lshlrev_b32 v8, 6, v8")
            k("v_lshl_add_u32 v8, v9, 5, v8")
            k("s_and_b32 s28, s26, 1")
            k("s_lshl_b32 s28, s28, 4")
            k("v_and_b32 v9, 15, v0")
            k("v_add3_u32 v8, v8, v9, s28")
            k("v_lshlrev_b32 v8, 4, v8")
            k("v_lshl_add_u32 v1, v10, 3, v8")
            k("s_lshl_b32 s28, s25, 1")
            k("s_lshr_b32 s29, s26, 1")
            k("s_add_u32 s28, s28, s29")
            k("s_mul_i32 s41, s28, 36864")
            k("s_add_u32 s42, s41, 4096")
            for mu in range(5):
                k.vmem("H", "buffer_load_dwordx2 %s, v1, s[44:47], s%d offen offset:%d", vr(VH + mu * 2, 2),
                       41 if mu < 4 else 42, (mu % 4) * 1024)
    G.stamp(k)
    for t in range(4):
        lab = k.newlabel("skipw")
        k("s_cmp_eq_u32 s26, %d", t)
        k("s_cbranch_scc1 %s", lab)
        k("s_sub_u32 s28, s26, %d", t + 1)
        k("s_and_b32 s28, s28, 3")
        k("s_add_u32 s28, s28, %d", t * 3)
        k("s_mul_i32 s28, s28, 5120")
        k("v_add_u32 v1, s28, v%d", VL16)
        for mu in range(5):
            k("ds_write_b128 v1, %s offset:%d", ar((mu * 4 + t) * 4, 4), mu * 1024)
        k.label(lab)
    VS = 40
    done = k.newlabel("own_done")
    for t in range(4):
        lab = k.newlabel("own")
        k("s_cmp_lg_u32 s26, %d", t)
        k("s_cbranch_scc1 %s", lab)
        for mu in range(5):
            for j in range(4):
                k("v_accvgpr_read_b32 v%d, a%d", VS + mu * 4 + j, (mu * 4 + t) * 4 + j)
        k("s_branch %s", done)
        k.label(lab)
    k.label(done)
    k("s_mul_i32 s28, s26, %d", 3 * 5120)
    k("v_add_u32 v1, s28, v%d", VL16)
    k("s_waitcnt lgkmcnt(0)")
    k("s_barrier")
    VR = 80
    for sl in range(3):
        for mu in range(5):
            k("ds_read_b128 %s, v1 offset:%d", vr(VR + (sl * 5 + mu) * 4, 4), sl * 5120 + mu * 1024)
    for sl in range(3):
        k("s_waitcnt lgkmcnt(%d)", 10 - 5 * sl)
        for j in range(20):
            k("v_add_f32 v%d, v%d, v%d", VS + j, VS + j, VR + sl * 20 + j)
    G.stamp(k)
    k("s_waitcnt vmcnt(0)")
    for mu in range(5):
        b = VS + mu * 4
        k("v_cvt_pk_bf16_f32 v60, v%d, v%d", b, b + 1)
        k("v_cvt_pk_bf16_f32 v61, v%d, v%d", b + 2, b + 3)
        k("v_lshlrev_b32 v%d, 16, v60", b)
        k("v_and_b32 v%d, 0xffff0000, v60", b + 1)
        k("v_lshlrev_b32 v%d, 16, v61", b + 2)
        k("v_and_b32 v%d, 0xffff0000, v61", b + 3)
        h = VH + mu * 2
        k("v_lshlrev_b32 v60, 16, v%d", h)
        k("v_and_b32 v61, 0xffff0000, v%d", h)
        k("v_lshlrev_b32 v62, 16, v%d", h + 1)
        k("v_and_b32 v63, 0xffff0000, v%d", h + 1)
        for j in range(4):
            k("v_add_f32 v%d, v%d, v%d", b + j, b + j, 60 + j)
        k("v_cvt_pk_bf16_f32 v%d, v%d, v%d", h, b, b + 1)
        k("v_cvt_pk_bf16_f32 v%d, v%d, v%d", h + 1, b + 2, b + 3)
        k("buffer_store_dwordx2 %s, v%d, s[48:51], s40 offen offset:%d", vr(h, 2), VHO if mu < 4 else 4, mu * 32)
    if G.STAMP:
        k("s_waitcnt vmcnt(0)")
        G.stamp(k)
        G.stamp(k, True)
        G.stamp_dump(k, 4, 5, 26)
    k.label(end)
    k("s_endpgm")
    return k.finish(16 + NSET * 36, 80, 102), "k4_kernel grid=(256,1,1) block=(256,1,1) lds=%d" % (61440)
```

```python
import sys
from asmfw import K, vr, ar, sr

S, D, F = 2048, 576, 4608
WS_KV = 0x3100000
WS_CS = 0x010000
WS_STAT = 0x020000
WS_PQA = 0x040000
WS_PQB = 0x240000
WS_H = 0x280000
WS_HF = 0x4C0000
WS_WF = 0x700000
WS_ACT = 0x1200000
WS_PART = 0x2400000
WS_WDF = 0x2400000
WS_XCH = 0x3800000
WS_FLAG = 0x3000000
WS_HT = 0x3200000
SZ_HT = 256 * 4 * 2560
WS_WOC = 0x2A00000
SZ_WOC = 576 * 576 * 2
SZ_WDF = 4 * 144 * 9216
SZ_XCH = 64 * 4 * 3 * 18432
SZ_FLAG = 4096
SZ_KV = 16 * 7168
SZ_CS = 288 * 32 * 4
SZ_STAT = 8 * 2048 * 2 * 4
SZ_PQA = 128 * 16 * 1024
SZ_PQB = 128 * 16 * 128
SZ_H = S * D * 2
SZ_WF = 288 * 36 * 1024
SZ_ACT = 128 * 144 * 1024
SZ_PART = 4 * S * D * 4

KA_X, KA_WQKV, KA_WO, KA_BX, KA_WG, KA_WU, KA_WD, KA_OUT, KA_DBG, KA_WS = [8 * i for i in range(10)]


import struct


def f32bits(x):
    return struct.unpack("<I", struct.pack("<f", x))[0]


STAMP = False
OPT = set()
STMOD = ""
WS_DBG = 0x3600000


def stamp(k, real=False):
    if not STAMP:
        return
    n = getattr(k, "nstamp", 0)
    sb = getattr(k, "sbase", 60)
    k("%s s[%d:%d]", "s_memrealtime" if real else "s_memtime", sb + 2 * n, sb + 1 + 2 * n)
    k("s_waitcnt lgkmcnt(0)")
    k.lg.ops = []
    k.nstamp = n + 1


def stamp_dump(k, ws_lo, ws_hi, swave):
    if not STAMP:
        return
    n = k.nstamp
    k.srd(56, ws_lo, ws_hi, 0x80000, WS_DBG + 0x80000 * (int(k.name[1]) - 1))
    k("s_lshl_b32 s55, s2, 4")
    k("s_add_u32 s55, s55, s%d", swave)
    k("s_lshl_b32 s55, s55, 7")
    k("v_mov_b32 v1, 0")
    for i in range(n):
        k("v_mov_b32 v2, s%d", getattr(k, "sbase", 60) + 2 * i)
        k("buffer_store_dword v2, v1, s[56:59], s55 offen offset:%d", 4 * i)


def prologue_exit(k, nwg, code_kb=0, vtmp=(250, 251), stmp=16):
    end = k.name + "_end"
    k("s_cmp_ge_u32 s2, %d", nwg)
    k("s_cbranch_scc1 %s", end)
    if code_kb and "nocodepf" not in OPT:
        k("s_getpc_b64 s[%d:%d]", stmp, stmp + 1)
        k.label(k.name + "_pc")
        k("v_lshlrev_b32 v%d, 7, v0", vtmp[0])
        k("v_min_u32 v%d, %s-%s_pc, v%d", vtmp[0], end, k.name, vtmp[0])
        k("global_load_dword v%d, v%d, s[%d:%d]", vtmp[1], vtmp[0], stmp, stmp + 1)
    return end


def gen_k5():
    k = K("k5_kernel")
    end = prologue_exit(k, 576)
    k("s_load_dwordx2 s[4:5], s[0:1], %d", KA_WS)
    k("s_load_dwordx2 s[6:7], s[0:1], %d", KA_OUT)
    k("s_lshl_b32 s3, s2, 8")
    k("v_add_u32 v1, s3, v0")
    k("v_lshlrev_b32 v3, 4, v1")
    k("s_waitcnt lgkmcnt(0)")
    k.srd(8, 4, 5, 4 * SZ_H, WS_XCH)
    k.srd(16, 6, 7, SZ_H)
    k("s_mov_b32 s20, %d", SZ_H)
    k("s_mov_b32 s21, %d", 2 * SZ_H)
    k("s_mov_b32 s22, %d", 3 * SZ_H)
    k("buffer_load_dwordx4 v[4:7], v3, s[8:11], 0 offen")
    k("buffer_load_dwordx4 v[8:11], v3, s[8:11], s20 offen")
    k("buffer_load_dwordx4 v[12:15], v3, s[8:11], s21 offen")
    k("buffer_load_dwordx4 v[16:19], v3, s[8:11], s22 offen")
    for p in range(4):
        k("s_waitcnt vmcnt(%d)", 3 - p)
        for j in range(4):
            d = 20 if p == 0 else 28
            k("v_lshlrev_b32 v%d, 16, v%d", d + 2 * j, 4 + 4 * p + j)
            k("v_and_b32 v%d, 0xffff0000, v%d", d + 2 * j + 1, 4 + 4 * p + j)
        if p:
            for j in range(8):
                k("v_add_f32 v%d, v%d, v%d", 20 + j, 20 + j, 28 + j)
    for j in range(4):
        k("v_cvt_pk_bf16_f32 v%d, v%d, v%d", 4 + j, 20 + 2 * j, 21 + 2 * j)
    k("buffer_store_dwordx4 v[4:7], v3, s[16:19], 0 offen")
    k.label(end)
    k("s_endpgm")
    return k.finish(40, 0, 32), "k5_kernel grid=(576,1,1) block=(256,1,1) lds=0"


def gen_k4old():
    k = K("k4_kernel")
    end = prologue_exit(k, 256)
    SLOT = 36864
    k("s_load_dwordx2 s[4:5], s[0:1], %d", KA_WS)
    k("s_load_dwordx2 s[6:7], s[0:1], %d", KA_WD)
    k("s_and_b32 s20, s2, 7")
    k("s_lshr_b32 s21, s2, 3")
    k("s_and_b32 s22, s20, 3")
    k("s_lshr_b32 s23, s20, 2")
    k("s_and_b32 s24, s21, 3")
    k("s_lshr_b32 s25, s21, 2")
    k("s_lshl_b32 s23, s23, 3")
    k("s_add_u32 s25, s25, s23")
    k("v_lshrrev_b32 v1, 6, v0")
    k("v_and_b32 v0, 63, v0")
    k("v_readfirstlane_b32 s26, v1")
    VD = 8
    k("s_mov_b32 s27, 0x%x", (1 << 32) // 18 + 1)
    for i in range(9):
        k("v_add_u32 v2, %d, v0", 64 * i)
        k("v_mul_hi_u32 v3, v2, s27")
        k("v_mul_u32_u24 v4, 18, v3")
        k("v_sub_u32 v4, v2, v4")
        k("v_mul_u32_u24 v3, 1152, v3")
        k("v_lshl_add_u32 v%d, v4, 4, v3", VD + i)
    VTB = 17
    k("v_lshrrev_b32 v2, 5, v0")
    k("v_bfe_u32 v3, v0, 4, 1")
    k("v_bfe_u32 v4, v0, 2, 2")
    k("v_and_b32 v5, 3, v0")
    k("v_lshlrev_b32 v2, 4, v2")
    k("v_lshl_add_u32 v2, v3, 2, v2")
    k("v_add_u32 v2, v2, v4")
    k("v_mul_u32_u24 v2, 288, v2")
    k("v_lshl_add_u32 v%d, v5, 3, v2", VTB)
    for sl in range(1, 4):
        k("v_add_u32 v%d, %d, v%d", VTB + sl, sl * SLOT, VTB)
    VLANE16 = 21
    k("v_lshlrev_b32 v%d, 4, v0", VLANE16)
    VST = 22
    k("v_and_b32 v2, 15, v0")
    k("v_lshrrev_b32 v3, 4, v0")
    k("v_mul_u32_u24 v2, 2304, v2")
    k("v_lshl_add_u32 v%d, v3, 4, v2", VST)
    k("s_waitcnt lgkmcnt(0)")
    k.srd(8, 4, 5, SZ_ACT, WS_ACT)
    k.srd(12, 6, 7, F * D * 2)
    k.srd(16, 4, 5, SZ_PART, WS_PART)
    k("s_lshl_b32 s28, s25, 3")
    k("s_lshl_b32 s29, s26, 1")
    k("s_add_u32 s28, s28, s29")
    k("s_mul_i32 s28, s28, 144")
    k("s_mul_i32 s29, s22, 36")
    k("s_add_u32 s28, s28, s29")
    k("s_lshl_b32 s28, s28, 10")
    k("s_add_u32 s29, s28, %d", 144 * 1024)
    k("s_mul_i32 s30, s22, 1152")
    k("s_lshl_b32 s31, s26, 5")
    k("s_add_u32 s30, s30, s31")
    k("s_mul_i32 s30, s30, 1152")
    k("s_mul_i32 s31, s24, 288")
    k("s_add_u32 s30, s30, s31")
    k("s_mul_i32 s31, s26, 9216")

    VA = 32
    VW = 128
    NWB = 8
    ACC = 160

    def dma_ops(st):
        if "nodma" in OPT or st >= 9:
            return []
        slot = st % 4
        sreg = 36 + (st % 2)
        ops = []
        for i in range(9):
            def f(i=i):
                if i == 0:
                    k("s_add_u32 s%d, s30, %d", sreg, st * 128 * 1152)
                k("s_add_u32 m0, s31, %d", slot * SLOT + i * 1024)
                k.vmem(("D", st), "buffer_load_dwordx4 v%d, s[12:15], s%d offen lds", VD + i, sreg)
            ops.append(f)
        return ops

    def act_ops(st):
        if "noact" in OPT or st >= 9:
            return []
        base = VA + (st % 3) * 32
        ops = []
        for s in range(4):
            for t in range(2):
                def f(s=s, t=t):
                    if s == 0 and t == 0:
                        k("s_add_u32 s33, s28, %d", st * 4096)
                        k("s_add_u32 s34, s29, %d", st * 4096)
                    k.vmem(("A", st), "buffer_load_dwordx4 %s, v%d, s[8:11], s%d offen offset:%d",
                           vr(base + (s * 2 + t) * 4, 4), VLANE16, 33 + t, s * 1024)
                ops.append(f)
        return ops

    stamp(k)
    stamp(k, True)
    for f in dma_ops(0) + act_ops(0) + dma_ops(1) + act_ops(1) + dma_ops(2):
        f()
    for j in range(72):
        k("v_mov_b32 v%d, 0", ACC + j)

    frags = [(st, s, mu) for st in range(9) for s in range(4) for mu in range(9)]
    AHEAD = 6

    def issue_tr(fi):
        st, s, mu = frags[fi]
        b = VW + (fi % NWB) * 4
        off = s * 9216 + mu * 32
        k.lds(("W", fi), "ds_read_b64_tr_b16 %s, v%d offset:%d", vr(b, 2), VTB + st % 4, off)
        k.lds(("W", fi), "ds_read_b64_tr_b16 %s, v%d offset:%d", vr(b + 2, 2), VTB + st % 4, off + 2304)

    nissued = 0
    pend = []
    for fi, (st, s, mu) in enumerate(frags):
        if s == 0 and mu == 0:
            k.comment("stage %d" % st)
            k.wait_vm([("D", st), ("A", st)])
            k("s_barrier")
            stamp(k)
            d, a = dma_ops(st + 3), act_ops(st + 2)
            pend = []
            while d or a:
                if d:
                    pend.append(d.pop(0))
                if a:
                    pend.append(a.pop(0))
        if "nomfma" in OPT:
            for f in pend:
                f()
            pend = []
            continue
        lim = min(fi + AHEAD, (st + 1) * 36 - 1)
        while nissued <= lim:
            issue_tr(nissued)
            nissued += 1
        k.wait_lg([("W", fi)])
        b = VW + (fi % NWB) * 4
        abase = VA + (st % 3) * 32
        for t in range(2):
            a = ACC + (mu * 2 + t) * 4
            k("v_mfma_f32_16x16x32_bf16 %s, %s, %s, %s", vr(a, 4), vr(b, 4), vr(abase + (s * 2 + t) * 4, 4), vr(a, 4))
        if pend and (fi % 2 == 1):
            pend.pop(0)()
    stamp(k)
    k("s_lshl_b32 s32, s22, 11")
    k("s_lshl_b32 s33, s25, 7")
    k("s_add_u32 s32, s32, s33")
    k("s_lshl_b32 s33, s26, 5")
    k("s_add_u32 s32, s32, s33")
    k("s_mul_i32 s32, s32, 2304")
    k("s_mul_i32 s33, s24, 576")
    k("s_add_u32 s32, s32, s33")
    k("s_add_u32 s33, s32, %d", 16 * 2304)
    for mu in range(9):
        for t in range(2):
            a = ACC + (mu * 2 + t) * 4
            k("buffer_store_dwordx4 %s, v%d, s[16:19], s%d offen offset:%d", vr(a, 4), VST, 32 + t, mu * 64)
    if STAMP:
        k("s_waitcnt vmcnt(0)")
        stamp(k)
        stamp(k, True)
        stamp_dump(k, 4, 5, 26)
    k.label(end)
    k("s_endpgm")
    return k.finish(232, 0, 102), "k4_kernel grid=(256,1,1) block=(256,1,1) lds=%d" % (4 * SLOT)


HEADER = """; Kernarg layout for this problem (80 bytes, ptrs only, base s[0:1]):
"""


def build(kernels):
    texts, descs, launches = [], [], []
    for g in kernels:
        (t, d, nn), l = g()
        texts.append(t)
        descs.append(d)
        launches.append(l)
    out = HEADER
    for l in launches:
        out += "; @launch kernel=%s\n" % l
    out += '.amdgcn_target "amdgcn-amd-amdhsa--gfx950"\n.text\n'
    out += "\n".join(texts) + "\n"
    out += '.section .rodata,"a"\n'
    for d in descs:
        out += ".p2align 6\n" + d + "\n"
    return out


ALL = {}


def main():
    import gen_k1, gen_k2, gen_k3, gen_k4
    global STAMP
    args = sys.argv[2:]
    if "stamp" in args:
        args.remove("stamp")
        STAMP = True
        import gen as _g
        _g.STAMP = True
    for a in list(args):
        if a.startswith("-"):
            args.remove(a)
            OPT.add(a[1:])
            import gen as _g
            _g.OPT.add(a[1:])
            if a[1:] in ("sc1", "nt", "sc0sc1"):
                _g.STMOD = " " + a[1:].replace("sc0sc1", "sc0 sc1")
    names = args if args else ["k1", "k2", "k3", "k4", "k5"]
    table = {"k4old": gen_k4old, "k5": gen_k5}
    for mod, nm in ((gen_k1, "k1"), (gen_k2, "k2"), (gen_k3, "k3"), (gen_k4, "k4")):
        if hasattr(mod, "gen"):
            table[nm] = mod.gen
    s = build([table[n] for n in names])
    open(sys.argv[1], "w").write(s)
    print("wrote", sys.argv[1], len(s), "bytes")


if __name__ == "__main__":
    main()
```

```python
from asmfw import K, vr, ar, sr
import gen as G

SLOT = 36864
CSOFF = 4 * SLOT


def gen():
    k = K("k3_kernel")
    end = G.prologue_exit(k, 256, 1, (238, 239), 6)
    k("s_load_dwordx2 s[4:5], s[0:1], %d", G.KA_WS)
    k("s_load_dwordx2 s[36:37], s[0:1], %d", G.KA_WD)
    k("s_and_b32 s20, s2, 7")
    k("s_lshr_b32 s21, s2, 3")
    k("s_and_b32 s21, s21, 3")
    k("s_lshl_b32 s21, s21, 3")
    k("s_add_u32 s24, s20, s21")
    k("s_lshr_b32 s25, s2, 5")
    k("v_lshrrev_b32 v1, 6, v0")
    k("v_and_b32 v0, 63, v0")
    k("v_readfirstlane_b32 s26, v1")
    VL16, VST, VNM, VC1, VRS2, VCSA, VSB = 1, 2, 4, 6, 8, 10, 11
    VSTAT = 15
    k("v_lshlrev_b32 v%d, 4, v0", VL16)
    for sl in range(4):
        k("v_add_u32 v%d, %d, v%d", VSB + sl, sl * SLOT, VL16)
    k("v_bfe_u32 v16, v0, 4, 1")
    k("v_lshrrev_b32 v17, 5, v0")
    k("v_and_b32 v18, 15, v0")
    k("v_mul_u32_u24 v16, 147456, v16")
    k("v_lshl_add_u32 v16, v17, 8, v16")
    k("v_lshl_add_u32 v%d, v18, 4, v16", VST)
    k("v_lshlrev_b32 v16, 6, v17")
    k("v_add_u32 v%d, %d, v16", VCSA, CSOFF)
    k("v_and_b32 v16, 31, v0")
    k("v_lshlrev_b32 v%d, 3, v16", VSTAT)
    k("s_mov_b32 s27, 0x%x", (1 << 32) // 9 + 1)
    for i in range(6):
        k("v_add_u32 v16, %d, v0", 64 * i)
        k("v_mul_hi_u32 v17, v16, s27")
        k("v_mul_u32_u24 v18, 9, v17")
        k("v_sub_u32 v18, v16, v18")
        k("v_mul_u32_u24 v17, 1152, v17")
        k("v_lshl_add_u32 v%d, v18, 4, v17", 240 + i)
    k("v_lshrrev_b32 v16, 2, v0")
    k("v_mul_u32_u24 v16, 144, v16")
    k("v_and_b32 v17, 3, v0")
    k("v_lshl_add_u32 v16, v17, 3, v16")
    k("v_add_u32 v246, %d, v16", SLOT)
    k("v_bfe_u32 v16, v0, 4, 1")
    k("v_lshrrev_b32 v17, 5, v0")
    k("v_and_b32 v18, 15, v0")
    k("s_and_b32 s27, s25, 1")
    k("s_lshl_b32 s27, s27, 3")
    k("v_add_u32 v20, s27, v18")
    k("v_and_b32 v19, 15, v20")
    k("v_lshrrev_b32 v20, 4, v20")
    k("v_lshl_add_u32 v19, v16, 4, v19")
    k("v_lshlrev_b32 v19, 4, v19")
    k("v_lshl_add_u32 v19, v17, 3, v19")
    k("v_lshl_add_u32 v247, v20, 10, v19")
    k("v_mov_b32 v16, 0x7f000000")
    k("v_cmp_gt_u32 vcc, 8, v18")
    k("v_cndmask_b32 v248, v16, v247, vcc")
    k("s_waitcnt lgkmcnt(0)")
    k.srd(8, 4, 5, G.SZ_H, G.WS_HF)
    k.srd(12, 4, 5, G.SZ_WF, G.WS_WF)
    k.srd(16, 4, 5, G.SZ_ACT, G.WS_ACT)
    k.srd(40, 4, 5, G.SZ_STAT, G.WS_STAT)
    k.srd(44, 4, 5, G.SZ_CS, G.WS_CS)
    k.srd(80, 36, 37, G.F * G.D * 2)
    k.srd(84, 4, 5, G.SZ_WDF, G.WS_WDF)
    G.stamp(k)
    G.stamp(k, True)
    k("s_lshl_b32 s28, s25, 3")
    k("s_lshl_b32 s29, s26, 1")
    k("s_add_u32 s28, s28, s29")
    k("s_mul_i32 s30, s28, 36864")
    k("s_mul_i32 s31, s24, %d", 9 * SLOT)
    k("s_lshl_b32 s29, s26, 10")
    k("s_add_u32 s31, s31, s29")
    k("s_mov_b32 s32, s29")
    k("s_lshl_b32 s28, s25, 4")
    k("s_lshl_b32 s33, s26, 2")
    k("s_add_u32 s28, s28, s33")
    k("s_mul_i32 s33, s28, 147456")
    k("s_mul_i32 s28, s24, 4608")
    k("s_add_u32 s33, s33, s28")
    k("s_lshl_b32 s34, s25, 11")
    k("s_lshl_b32 s28, s26, 9")
    k("s_add_u32 s34, s34, s28")
    k("s_mul_i32 s35, s24, 1152")
    k("s_add_u32 s35, s35, s32")

    VAO = 16
    ACC = 48
    VW = 176
    NWB = 8
    VCS = 208
    VT = 224

    def afrag(t, s):
        if s < 32:
            return ar((s * 2 + t) * 4, 4)
        return vr(VAO + ((s - 32) * 2 + t) * 4, 4)

    GP = 3
    steps = [(c, s) for s in range(36) for c in range(GP)] + [(c, s) for c in range(GP, 9) for s in range(36)]
    NS = len(steps)
    tstep = {cs: i for i, cs in enumerate(steps)}
    AH = 5
    bars = sorted(set([0] + [12 * g + 6 for g in range(9)] + [108 + 36 * i + o for i in range(6) for o in (6, 24)]))
    bars = [b for b in bars if b < NS - AH]

    def last_read_step(c, g):
        return max(tstep[(c, s)] for s in range(4 * g, 4 * g + 4))

    ops = []
    sreg_rr = [0]

    def mk_dma(c, g):
        def f():
            sreg = 48 + sreg_rr[0] % 4
            sreg_rr[0] += 1
            k("s_add_u32 s%d, s31, %d", sreg, c * SLOT + g * 4096)
            k("s_add_u32 m0, s32, %d", (c % 4) * SLOT + g * 4096)
            if "nodma2" in G.OPT and c >= 4:
                k.vm.issue(("D", c, g))
                k.vm.ops.pop()
                issued.add(("D", c, g))
                k.vm.ops.append(("D", c, g))
                return
            k.vmem(("D", c, g), "buffer_load_dwordx4 v%d, s[12:15], s%d offen lds", VL16, sreg)
        if c >= 4:
            lr = last_read_step(c - 4, g)
            eb = min(b for b in bars if b > lr)
        else:
            eb = -1
        return (f, eb)

    def mk_a(t, s):
        def f():
            sreg = 48 + sreg_rr[0] % 4
            sreg_rr[0] += 1
            k("s_add_u32 s%d, s30, %d", sreg, t * 36864 + s * 1024)
            k.vmem(("A", s), "buffer_load_dwordx4 %s, v%d, s[8:11], s%d offen", afrag(t, s), VL16, sreg)
        return (f, -1)

    def mk_stat(t, p):
        def f():
            sreg = 48 + sreg_rr[0] % 4
            sreg_rr[0] += 1
            k("s_add_u32 s%d, s34, %d", sreg, p * 16384 + t * 256)
            k.vmem("S", "buffer_load_dwordx2 %s, v%d, s[40:43], s%d offen", vr(ACC + 96 + (t * 8 + p) * 2, 2), VSTAT, sreg)
        return (f, -1)

    def mk_cs():
        def f():
            lab = k.newlabel("nocs")
            k("s_cmp_ge_u32 s26, 2")
            k("s_cbranch_scc1 %s", lab)
            k("s_add_u32 m0, s32, %d", CSOFF)
            k("buffer_load_dwordx4 v%d, s[44:47], s35 offen lds", VL16)
            k.label(lab)
            k.vm.issue("CS")
        return (f, -1)

    for g in range(9):
        for s in range(4 * g, 4 * g + 4):
            ops.append(mk_a(0, s))
            ops.append(mk_a(1, s))
            if s % 4 < GP:
                ops.append(mk_dma(s % 4, g))
        if g == 3:
            for t in range(2):
                for p in range(8):
                    ops.append(mk_stat(t, p))
    for c in range(GP, 9):
        for g in range(9):
            ops.append(mk_dma(c, g))

    VWD = 240

    def mk_wd(i):
        def f():
            if i == 0:
                k("s_mul_i32 s54, s24, 144")
                k("s_mul_i32 s55, s26, 36")
                k("s_add_u32 s54, s54, s55")
                k("s_mul_i32 s54, s54, 1152")
                k("s_mul_i32 s55, s25, 144")
                k("s_add_u32 s54, s54, s55")
                k("s_mul_i32 s55, s26, %d", 36 * 144)
            k("s_add_u32 m0, s55, %d", SLOT + i * 1024)
            if i == 5:
                k("s_mov_b64 exec, 15")
            k.vmem("WD", "buffer_load_dwordx4 v%d, s[80:83], s54 offen lds", VWD + i)
            if i == 5:
                k("s_mov_b64 exec, -1")
        eb = min(b for b in bars if b > tstep[(5, 35)])
        return (f, eb)
    for i in range(6):
        ops.append(mk_wd(i))

    lab = k.newlabel("nocs")
    k("s_cmp_ge_u32 s26, 2")
    k("s_cbranch_scc1 %s", lab)
    k("s_add_u32 m0, s32, %d", CSOFF)
    k("buffer_load_dwordx4 v%d, s[44:47], s35 offen lds", VL16)
    k.label(lab)

    side = []

    def S(cost, fmt, *a):
        if "novalu" in G.OPT:
            return
        side.append((cost, lambda: k(fmt, *a)))

    def stats_block():
        base = ACC + 96
        side.append((4, lambda: k.wait_vm(["S"])))
        for t in range(2):
            b = base + t * 16
            for p in range(1, 8):
                S(4, "v_add_f32 v%d, v%d, v%d", b, b, b + 2 * p)
                S(4, "v_add_f32 v%d, v%d, v%d", b + 1, b + 1, b + 2 * p + 1)
            S(4, "v_mul_f32 v%d, 0x%08x, v%d", b, G.f32bits(1.0 / 576), b)
            S(4, "v_mul_f32 v%d, 0x%08x, v%d", b + 1, G.f32bits(1.0 / 576), b + 1)
            S(4, "v_fma_f32 v%d, -v%d, v%d, v%d", b + 1, b, b, b + 1)
            S(4, "v_max_f32 v%d, 0, v%d", b + 1, b + 1)
            S(4, "v_cvt_pk_bf16_f32 v%d, v%d, v%d", b + 2, b, b + 1)
            S(4, "v_lshlrev_b32 v%d, 16, v%d", b, b + 2)
            S(4, "v_and_b32 v%d, 0xffff0000, v%d", b + 1, b + 2)
            S(4, "v_add_f32 v%d, 0x%08x, v%d", b + 1, G.f32bits(1e-5), b + 1)
            S(4, "v_cvt_pk_bf16_f32 v%d, v%d, v%d", b + 2, b + 1, b + 1)
            S(4, "v_lshlrev_b32 v%d, 16, v%d", b + 1, b + 2)
            S(8, "v_sqrt_f32 v%d, v%d", b + 1, b + 1)
            S(4, "v_sub_f32 v%d, 0, v%d", VNM + t, b)
            S(4, "v_cvt_pk_bf16_f32 v%d, v%d, v%d", b + 2, b + 1, b + 1)
            S(4, "v_lshlrev_b32 v%d, 16, v%d", b + 1, b + 2)
            S(4, "v_mul_f32 v%d, v%d, v%d", VRS2 + t, b + 1, b + 1)
            S(8, "v_rcp_f32 v%d, v%d", b + 1, b + 1)
            S(4, "s_nop 0")
            S(4, "v_mul_f32 v%d, 0x%08x, v%d", VC1 + t, G.f32bits(-1.4426950408889634), b + 1)

    def epilogue(c):
        a0 = ACC + (c % 4) * 32
        for q in range(4):
            side.append((4, lambda q=q: k.lds(("C", c), "ds_read_b128 %s, v%d offset:%d", vr(VCS + 4 * q, 4), VCSA,
                                              c * 128 + q * 16)))
        side.append((4, lambda: k.wait_lg([("C", c)])))
        for t in range(2):
            a = a0 + 16 * t
            for h in range(2):
                rs = range(4 * h, 4 * h + 4)
                for r in rs:
                    S(4, "v_fmac_f32 v%d, v%d, v%d", a + r, VCS + r, VNM + t)
                for r in rs:
                    S(4, "v_mul_f32 v%d, v%d, v%d", VT + r, a + r, VC1 + t)
                for r in rs:
                    S(4, "v_fmac_f32 v%d, v%d, v%d", a + 8 + r, VCS + 8 + r, VNM + t)
                for r in rs:
                    S(8, "v_exp_f32 v%d, v%d", VT + r, VT + r)
                for r in rs:
                    S(4, "v_mul_f32 v%d, v%d, v%d", a + r, a + r, a + 8 + r)
                for r in rs:
                    S(4, "v_fma_f32 v%d, v%d, v%d, v%d", VT + r, VT + r, VRS2 + t, VRS2 + t)
                for r in rs:
                    S(8, "v_rcp_f32 v%d, v%d", VT + r, VT + r)
                for r in rs:
                    S(4, "v_mul_f32 v%d, v%d, v%d", a + r, a + r, VT + r)
            o = VT + 8 + 4 * t
            for q in range(4):
                S(4, "v_cvt_pk_bf16_f32 v%d, v%d, v%d", o + q, a + 2 * q, a + 2 * q + 1)

            def st(t=t, o=o):
                k("s_add_u32 s%d, s33, %d", 52 + t, 2 * t * 147456 + c * 512)
                k.vmem(("O", c), "buffer_store_dwordx4 %s, v%d, s[16:19], s%d offen" + G.STMOD, vr(o, 4), VST, 52 + t)
            side.append((8, st))

    def wd_stream():
        for rnd in range(3):
            def pre(rnd=rnd):
                if rnd < 2:
                    k("s_add_u32 s57, s26, %d", 4 * rnd)
                else:
                    k("s_cmp_eq_u32 s26, 0")
                    k("s_cselect_b32 s57, 8, s26")
                k("s_mul_i32 s59, s57, 2304")
                k("v_add_u32 v249, s59, v246")
                k("s_mul_i32 s56, s24, 9")
                k("s_add_u32 s56, s56, s57")
                k("s_lshr_b32 s57, s56, 1")
                k("s_and_b32 s56, s56, 1")
                k("s_lshr_b32 s59, s25, 1")
                k("s_mul_i32 s59, s59, 144")
                k("s_add_u32 s57, s57, s59")
                k("s_mul_i32 s57, s57, 9216")
                k("s_lshl_b32 s59, s56, 9")
                k("s_add_u32 s57, s57, s59")
                k("s_and_b32 s59, s25, 1")
                k("s_lshl_b32 s59, s59, 12")
                k("s_add_u32 s88, s57, s59")
                k("s_add_u32 s89, s88, 4096")
            side.append((16, pre))
            for grp in ((0, 1, 2), (3, 4)):
                for ct in grp:
                    side.append((4, lambda ct=ct, rnd=rnd: k.lds(("WT", rnd, ct), "ds_read_b64_tr_b16 %s, v249 offset:%d",
                                                              vr(250 + 2 * (ct % 3), 2), ct * 32)))
                for ct in grp:
                    def stw(ct=ct, rnd=rnd):
                        k.wait_lg([("WT", rnd, ct)])
                        if ct < 4:
                            k.vmem("WS", "buffer_store_dwordx2 %s, v247, s[84:87], s88 offen offset:%d sc1",
                                   vr(250 + 2 * (ct % 3), 2), ct * 1024)
                        else:
                            k.vmem("WS", "buffer_store_dwordx2 %s, v248, s[84:87], s89 offen sc1", vr(250 + 2 * (ct % 3), 2))
                    side.append((8, stw))

    issued = set()
    oi = 0

    def do_op():
        nonlocal oi
        ops[oi][0]()
        issued.add(k.vm.ops[-1])
        oi += 1

    def nstores_pending():
        return sum(1 for (cst, f) in side if getattr(f, "__name__", "") == "st")

    BUD = (16, 12)
    import os
    PRO = int(os.environ.get("K3PRO", 36))
    FASTT = int(os.environ.get("K3FAST", 0))
    while oi < PRO:
        do_op()
    WDBAR = min(b for b in bars if b > tstep[(7, 0)])
    nread = 0
    visible = set()
    cur_bar = -1
    ep_done = 0
    stats_added = False
    for T, (c, s) in enumerate(steps):
        if T in bars:
            nb = min([b for b in bars if b > T] + [NS])
            need = set()
            for T2 in range(nread, min(nb + AH, NS)):
                c2, s2 = steps[T2]
                if (c2, s2 // 4) not in visible:
                    need.add((c2, s2 // 4))
            guard = 0
            for u in sorted(need):
                while ("D",) + u not in issued:
                    assert ops[oi][1] <= cur_bar, ("WAR", u, ops[oi][1], T)
                    do_op()
                    guard += 1
            if guard:
                print("k3: forced %d early loads at step %d" % (guard, T))
            wd_now = (T == WDBAR)
            if wd_now:
                assert oi == len(ops)
            k.wait_vm([("D",) + u for u in need] + (["WD"] if wd_now else []))
            k("s_barrier")
            if wd_now:
                wd_stream()
            visible |= need
            cur_bar = T
            if T in (0, 102, 114, 222):
                G.stamp(k)
        while nread <= min(T + AH, NS - 1) and (steps[nread][0], steps[nread][1] // 4) in visible:
            c2, s2 = steps[nread]
            k.lds(("W", nread), "ds_read_b128 %s, v%d offset:%d", vr(VW + (nread % NWB) * 4, 4), VSB + c2 % 4, s2 * 1024)
            nread += 1
        assert nread > T
        if T < 108 and c == 0:
            assert ("A", s) in issued
            k.wait_vm([("A", s)])
        k.wait_lg([("W", T)])
        if T == 60 and not stats_added:
            stats_block()
            stats_added = True
        if T >= 110:
            while ep_done < 9 and tstep[(ep_done, 35)] + 2 <= T and (len(side) < 40):
                epilogue(ep_done)
                ep_done += 1
        if s == 0 and c >= 3:
            if c == 3:
                while side:
                    side.pop(0)[1]()
            else:
                assert ep_done > c - 4, (c, ep_done)
                queued_after = ep_done - 1 - (c - 4)
                nf = 0
                while side and (nstores_pending() + 1) // 2 > queued_after:
                    side.pop(0)[1]()
                    nf += 1
                if nf:
                    print("k3: flushed %d side ops before chunk %d" % (nf, c))
        w = vr(VW + (T % NWB) * 4, 4)
        for t in range(2):
            a = ACC + (c % 4) * 32 + 16 * t
            cc = "0" if s == 0 else vr(a, 16)
            k("v_mfma_f32_32x32x16_bf16 %s, %s, %s, %s", vr(a, 16), w, afrag(t, s), cc)
            budget = BUD[t]
            if (t == 0 or T < FASTT) and oi < len(ops) and ops[oi][1] <= cur_bar:
                do_op()
                budget -= 8
            while side and budget >= side[0][0]:
                cst, f = side.pop(0)
                f()
                budget -= cst
    G.stamp(k)
    while ep_done < 9:
        epilogue(ep_done)
        ep_done += 1
    while side:
        side.pop(0)[1]()
    assert oi == len(ops)
    if G.STAMP:
        k("s_waitcnt vmcnt(0)")
        G.stamp(k)
        G.stamp(k, True)
        G.stamp_dump(k, 4, 5, 26)
    k.label(end)
    k("s_endpgm")
    return k.finish(256, 256, 102), "k3_kernel grid=(256,1,1) block=(256,1,1) lds=%d" % (CSOFF + 2048)
```

```python
from asmfw import K, vr, ar, sr
import gen as G

ST = 18432
NSL = 4
import os
PMOD = os.environ.get("PMOD", "")


def gen():
    k = K("k4_kernel")
    end = G.prologue_exit(k, 256, 1, (230, 231), 16)
    k("s_load_dwordx2 s[4:5], s[0:1], %d", G.KA_WS)
    k("s_and_b32 s22, s2, 3")
    k("s_bfe_u32 s23, s2, 0x10002")
    k("s_lshl_b32 s23, s23, 3")
    k("s_lshr_b32 s25, s2, 5")
    k("s_add_u32 s25, s25, s23")
    k("s_bfe_u32 s24, s2, 0x20003")
    k("v_lshrrev_b32 v1, 6, v0")
    k("v_and_b32 v0, 63, v0")
    k("v_readfirstlane_b32 s26, v1")
    VL16 = 2
    k("v_lshlrev_b32 v%d, 4, v0", VL16)
    k("v_add_u32 v3, %d, v%d", 2 * ST, VL16)
    k("s_waitcnt lgkmcnt(0)")
    k.srd(8, 4, 5, G.SZ_ACT, G.WS_ACT)
    k.srd(12, 4, 5, G.SZ_WDF, G.WS_WDF)
    k.srd(16, 4, 5, 4 * G.SZ_H, G.WS_XCH)
    k.srd(44, 4, 5, G.SZ_H, G.WS_HF)
    G.stamp(k)
    k("s_lshl_b32 s28, s25, 3")
    k("s_lshl_b32 s29, s26, 1")
    k("s_add_u32 s28, s28, s29")
    k("s_mul_i32 s28, s28, 144")
    k("s_mul_i32 s29, s22, 36")
    k("s_add_u32 s28, s28, s29")
    k("s_lshl_b32 s30, s28, 10")
    k("s_mul_i32 s31, s24, 144")
    k("s_add_u32 s31, s31, s29")
    k("s_mul_i32 s31, s31, 9216")
    k("s_lshl_b32 s32, s26, 10")
    k("s_add_u32 s31, s31, s32")

    NA = 8
    VA = 16
    VW = 80
    NWB = 10
    ACC = 120
    rr = [0]

    def sreg():
        rr[0] += 1
        return 33 + rr[0] % 6

    k("s_cmp_lt_u32 s26, 2")
    k("s_cselect_b32 s27, 0, 0x7f000000")
    k("v_add_u32 v4, s27, v%d", VL16)
    k("s_cselect_b32 s27, %d, %d", 4 * 4096, 0)

    def dma_ops(st):
        if st >= 18:
            return []
        ops = []
        for i in range(5):
            def f(i=i):
                r = sreg()
                k("s_add_u32 s%d, s31, %d", r, st * ST + i * 4096)
                k("s_add_u32 m0, s32, %d", (st % NSL) * ST + i * 4096)
                if i == 4:
                    lab = k.newlabel("skip5")
                    k("s_cmp_ge_u32 s26, 2")
                    k("s_cbranch_scc1 %s", lab)
                    k("buffer_load_dwordx4 v%d, s[12:15], s%d offen lds", VL16, r)
                    k.label(lab)
                else:
                    k.vmem(("D", st), "buffer_load_dwordx4 v%d, s[12:15], s%d offen lds", VL16, r)
            ops.append(f)
        return [ops[4]] + ops[:4]

    def act_ops(ks):
        if ks >= 36:
            return []
        ops = []
        for t in range(2):
            def f(t=t):
                r = sreg()
                k("s_add_u32 s%d, s30, %d", r, (t * 144 + ks) * 1024)
                k.vmem(("A", ks), "buffer_load_dwordx4 %s, v%d, s[8:11], s%d offen",
                       vr(VA + ((ks % NA) * 2 + t) * 4, 4), VL16, r)
            ops.append(f)
        return ops

    for f in dma_ops(0) + act_ops(0) + act_ops(1) + dma_ops(1) + act_ops(2) + act_ops(3) + dma_ops(2) + act_ops(4) + act_ops(5):
        f()
    AH = 7
    visible = -1
    nr = 0
    pend = []

    def barrier(sn):
        nonlocal visible, pend
        for f in pend:
            f()
        pend = []
        k.wait_vm([("D", sn)])
        k("s_barrier")
        visible = sn

    barrier(0)
    G.stamp(k)
    pend = dma_ops(3)
    NF = 36 * 9
    for n in range(NF):
        ks, mu = divmod(n, 9)
        st, pos = divmod(n, 18)
        if pos == 6 and st < 17:
            barrier(st + 1)
            if st >= 1:
                pend += dma_ops(st + 3)
            if st == 8:
                G.stamp(k)
        if n == 31 * 9:
            VH = 192
            lab = k.newlabel("nohl")
            k("s_cmp_lg_u32 s22, 0")
            k("s_cbranch_scc1 %s", lab)
            k("v_lshrrev_b32 v6, 5, v0")
            k("v_and_b32 v7, 15, v0")
            k("v_bfe_u32 v8, v0, 4, 1")
            k("v_lshl_add_u32 v6, v6, 5, v7")
            k("v_lshlrev_b32 v6, 4, v6")
            k("v_lshl_add_u32 v6, v8, 3, v6")
            k("s_lshl_b32 s28, s25, 2")
            k("s_add_u32 s28, s28, s26")
            k("s_mul_i32 s28, s28, 36")
            k("s_mul_i32 s29, s24, 9")
            k("s_add_u32 s28, s28, s29")
            k("s_lshl_b32 s28, s28, 10")
            for m2 in range(9):
                if m2 % 3 == 0:
                    k("s_add_u32 s29, s28, %d", m2 * 1024)
                for t in range(2):
                    k("buffer_load_dwordx2 %s, v6, s[44:47], s29 offen offset:%d", vr(VH + (m2 * 2 + t) * 2, 2),
                      (m2 % 3) * 1024 + t * 256)
            k.label(lab)
        if mu == 0:
            pend += act_ops(ks + 6)
            k.wait_vm([("A", ks)])
        while nr <= min(n + AH, NF - 1) and nr // 18 <= visible:
            s2, p2 = divmod(nr, 18)
            sl = s2 % NSL
            k.lds(("W", nr), "ds_read_b128 %s, v%d offset:%d", vr(VW + (nr % NWB) * 4, 4), VL16 if sl < 2 else 3,
                  (sl % 2) * ST + p2 * 1024)
            nr += 1
        k.wait_lg([("W", n)])
        for t in range(2):
            a = vr(ACC + (mu * 2 + t) * 4, 4)
            k("v_mfma_f32_16x16x32_bf16 %s, %s, %s, %s", a, vr(VW + (n % NWB) * 4, 4),
              vr(VA + ((ks % NA) * 2 + t) * 4, 4), "0" if ks == 0 else a)
        if pend and n % 2 == 1:
            pend.pop(0)()
    G.stamp(k)
    k("s_barrier")
    noh = k.newlabel("noh")
    k("s_cmp_lg_u32 s22, 0")
    k("s_cbranch_scc1 %s", noh)
    k("s_waitcnt vmcnt(0)")
    for n in range(18):
        b = ACC + n * 4
        h = VH + n * 2
        k("v_lshlrev_b32 v10, 16, v%d", h)
        k("v_and_b32 v11, 0xffff0000, v%d", h)
        k("v_lshlrev_b32 v12, 16, v%d", h + 1)
        k("v_and_b32 v13, 0xffff0000, v%d", h + 1)
        for j in range(4):
            k("v_add_f32 v%d, v%d, v%d", b + j, b + j, 10 + j)
    k.label(noh)
    RS_ = 304
    k("s_mul_i32 s28, s26, %d", 32 * RS_)
    k("v_and_b32 v7, 15, v0")
    k("v_lshrrev_b32 v8, 4, v0")
    k("v_mul_u32_u24 v7, %d, v7", RS_)
    k("v_lshl_add_u32 v7, v8, 3, v7")
    k("v_add_u32 v7, s28, v7")
    for n in range(18):
        mu, t = divmod(n, 2)
        b = ACC + n * 4
        k("v_cvt_pk_bf16_f32 v%d, v%d, v%d", 16 + 2 * n, b, b + 1)
        k("v_cvt_pk_bf16_f32 v%d, v%d, v%d", 17 + 2 * n, b + 2, b + 3)
        k("ds_write_b64 v7, %s offset:%d", vr(16 + 2 * n, 2), t * 16 * RS_ + mu * 32)
    k("s_mov_b32 s29, 0x%x", (1 << 32) // 18 + 1)
    for i in range(9):
        k("v_add_u32 v8, %d, v0", 64 * i)
        k("v_mul_hi_u32 v9, v8, s29")
        k("v_mul_u32_u24 v10, 18, v9")
        k("v_sub_u32 v10, v8, v10")
        k("v_lshlrev_b32 v10, 4, v10")
        k("v_mad_u32_u24 v%d, v9, %d, v10", 100 + i, 64) if False else None
        k("v_mul_u32_u24 v11, %d, v9", RS_)
        k("v_add3_u32 v%d, v11, v10, s28", 60 + i)
        k("v_mul_u32_u24 v11, 1152, v9")
        k("v_add_u32 v%d, v11, v10", 70 + i)
    k("s_lshl_b32 s28, s22, 11")
    k("s_lshl_b32 s29, s25, 7")
    k("s_add_u32 s28, s28, s29")
    k("s_lshl_b32 s29, s26, 5")
    k("s_add_u32 s28, s28, s29")
    k("s_mul_i32 s28, s28, 1152")
    k("s_mul_i32 s29, s24, 288")
    k("s_add_u32 s28, s28, s29")
    k("s_waitcnt lgkmcnt(0)")
    for i in range(9):
        k("ds_read_b128 %s, v%d", vr(80 + 4 * i, 4), 60 + i)
    for i in range(9):
        k("s_waitcnt lgkmcnt(%d)", 8 - i)
        k("buffer_store_dwordx4 %s, v%d, s[16:19], s28 offen" + PMOD, vr(80 + 4 * i, 4), 70 + i)
    if G.STAMP:
        k("s_waitcnt vmcnt(0)")
        G.stamp(k)
        G.stamp_dump(k, 4, 5, 26)
    k.label(end)
    k("s_endpgm")
    return k.finish(232, 0, 102), "k4_kernel grid=(256,1,1) block=(256,1,1) lds=%d" % (NSL * ST)
```

```python
import sys
from asmfw import K, vr, ar, sr

S, D, F = 2048, 576, 4608
WS_KV = 0x3100000
WS_CS = 0x010000
WS_STAT = 0x020000
WS_PQA = 0x040000
WS_PQB = 0x240000
WS_H = 0x280000
WS_HF = 0x4C0000
WS_WF = 0x700000
WS_ACT = 0x1200000
WS_PART = 0x2400000
WS_WDF = 0x2400000
WS_XCH = 0x3800000
WS_FLAG = 0x3000000
WS_HT = 0x3200000
SZ_HT = 256 * 4 * 2560
WS_WOC = 0x2A00000
SZ_WOC = 576 * 576 * 2
SZ_WDF = 4 * 144 * 9216
SZ_XCH = 64 * 4 * 3 * 18432
SZ_FLAG = 4096
SZ_KV = 16 * 7168
SZ_CS = 288 * 32 * 4
SZ_STAT = 8 * 2048 * 2 * 4
SZ_PQA = 128 * 16 * 1024
SZ_PQB = 128 * 16 * 128
SZ_H = S * D * 2
SZ_WF = 288 * 36 * 1024
SZ_ACT = 128 * 144 * 1024
SZ_PART = 4 * S * D * 4

KA_X, KA_WQKV, KA_WO, KA_BX, KA_WG, KA_WU, KA_WD, KA_OUT, KA_DBG, KA_WS = [8 * i for i in range(10)]


import struct


def f32bits(x):
    return struct.unpack("<I", struct.pack("<f", x))[0]


STAMP = False
OPT = set()
STMOD = ""
WS_DBG = 0x3600000


def stamp(k, real=False):
    if not STAMP:
        return
    n = getattr(k, "nstamp", 0)
    sb = getattr(k, "sbase", 60)
    k("%s s[%d:%d]", "s_memrealtime" if real else "s_memtime", sb + 2 * n, sb + 1 + 2 * n)
    k("s_waitcnt lgkmcnt(0)")
    k.lg.ops = []
    k.nstamp = n + 1


def stamp_dump(k, ws_lo, ws_hi, swave):
    if not STAMP:
        return
    n = k.nstamp
    k.srd(56, ws_lo, ws_hi, 0x80000, WS_DBG + 0x80000 * (int(k.name[1]) - 1))
    k("s_lshl_b32 s55, s2, 4")
    k("s_add_u32 s55, s55, s%d", swave)
    k("s_lshl_b32 s55, s55, 7")
    k("v_mov_b32 v1, 0")
    for i in range(n):
        k("v_mov_b32 v2, s%d", getattr(k, "sbase", 60) + 2 * i)
        k("buffer_store_dword v2, v1, s[56:59], s55 offen offset:%d", 4 * i)


def prologue_exit(k, nwg, code_kb=0, vtmp=(250, 251), stmp=16):
    end = k.name + "_end"
    k("s_cmp_ge_u32 s2, %d", nwg)
    k("s_cbranch_scc1 %s", end)
    if code_kb and "nocodepf" not in OPT:
        k("s_getpc_b64 s[%d:%d]", stmp, stmp + 1)
        k.label(k.name + "_pc")
        k("v_lshlrev_b32 v%d, 7, v0", vtmp[0])
        k("v_min_u32 v%d, %s-%s_pc, v%d", vtmp[0], globals().get("LAST_END", end), k.name, vtmp[0])
        k("global_load_dword v%d, v%d, s[%d:%d]", vtmp[1], vtmp[0], stmp, stmp + 1)
    return end


def gen_k5():
    k = K("k5_kernel")
    end = prologue_exit(k, 576)
    k("s_load_dwordx2 s[4:5], s[0:1], %d", KA_WS)
    k("s_load_dwordx2 s[6:7], s[0:1], %d", KA_OUT)
    k("s_lshl_b32 s3, s2, 8")
    k("v_add_u32 v1, s3, v0")
    k("v_lshlrev_b32 v3, 4, v1")
    k("s_waitcnt lgkmcnt(0)")
    k.srd(8, 4, 5, 4 * SZ_H, WS_XCH)
    k.srd(16, 6, 7, SZ_H)
    k("s_mov_b32 s20, %d", SZ_H)
    k("s_mov_b32 s21, %d", 2 * SZ_H)
    k("s_mov_b32 s22, %d", 3 * SZ_H)
    k("buffer_load_dwordx4 v[4:7], v3, s[8:11], 0 offen")
    k("buffer_load_dwordx4 v[8:11], v3, s[8:11], s20 offen")
    k("buffer_load_dwordx4 v[12:15], v3, s[8:11], s21 offen")
    k("buffer_load_dwordx4 v[16:19], v3, s[8:11], s22 offen")
    for p in range(4):
        k("s_waitcnt vmcnt(%d)", 3 - p)
        for j in range(4):
            d = 20 if p == 0 else 28
            k("v_lshlrev_b32 v%d, 16, v%d", d + 2 * j, 4 + 4 * p + j)
            k("v_and_b32 v%d, 0xffff0000, v%d", d + 2 * j + 1, 4 + 4 * p + j)
        if p:
            for j in range(8):
                k("v_add_f32 v%d, v%d, v%d", 20 + j, 20 + j, 28 + j)
    for j in range(4):
        k("v_cvt_pk_bf16_f32 v%d, v%d, v%d", 4 + j, 20 + 2 * j, 21 + 2 * j)
    k("buffer_store_dwordx4 v[4:7], v3, s[16:19], 0 offen")
    k.label(end)
    k("s_endpgm")
    return k.finish(40, 0, 32), "k5_kernel grid=(576,1,1) block=(256,1,1) lds=0"


def gen_k4old():
    k = K("k4_kernel")
    end = prologue_exit(k, 256)
    SLOT = 36864
    k("s_load_dwordx2 s[4:5], s[0:1], %d", KA_WS)
    k("s_load_dwordx2 s[6:7], s[0:1], %d", KA_WD)
    k("s_and_b32 s20, s2, 7")
    k("s_lshr_b32 s21, s2, 3")
    k("s_and_b32 s22, s20, 3")
    k("s_lshr_b32 s23, s20, 2")
    k("s_and_b32 s24, s21, 3")
    k("s_lshr_b32 s25, s21, 2")
    k("s_lshl_b32 s23, s23, 3")
    k("s_add_u32 s25, s25, s23")
    k("v_lshrrev_b32 v1, 6, v0")
    k("v_and_b32 v0, 63, v0")
    k("v_readfirstlane_b32 s26, v1")
    VD = 8
    k("s_mov_b32 s27, 0x%x", (1 << 32) // 18 + 1)
    for i in range(9):
        k("v_add_u32 v2, %d, v0", 64 * i)
        k("v_mul_hi_u32 v3, v2, s27")
        k("v_mul_u32_u24 v4, 18, v3")
        k("v_sub_u32 v4, v2, v4")
        k("v_mul_u32_u24 v3, 1152, v3")
        k("v_lshl_add_u32 v%d, v4, 4, v3", VD + i)
    VTB = 17
    k("v_lshrrev_b32 v2, 5, v0")
    k("v_bfe_u32 v3, v0, 4, 1")
    k("v_bfe_u32 v4, v0, 2, 2")
    k("v_and_b32 v5, 3, v0")
    k("v_lshlrev_b32 v2, 4, v2")
    k("v_lshl_add_u32 v2, v3, 2, v2")
    k("v_add_u32 v2, v2, v4")
    k("v_mul_u32_u24 v2, 288, v2")
    k("v_lshl_add_u32 v%d, v5, 3, v2", VTB)
    for sl in range(1, 4):
        k("v_add_u32 v%d, %d, v%d", VTB + sl, sl * SLOT, VTB)
    VLANE16 = 21
    k("v_lshlrev_b32 v%d, 4, v0", VLANE16)
    VST = 22
    k("v_and_b32 v2, 15, v0")
    k("v_lshrrev_b32 v3, 4, v0")
    k("v_mul_u32_u24 v2, 2304, v2")
    k("v_lshl_add_u32 v%d, v3, 4, v2", VST)
    k("s_waitcnt lgkmcnt(0)")
    k.srd(8, 4, 5, SZ_ACT, WS_ACT)
    k.srd(12, 6, 7, F * D * 2)
    k.srd(16, 4, 5, SZ_PART, WS_PART)
    k("s_lshl_b32 s28, s25, 3")
    k("s_lshl_b32 s29, s26, 1")
    k("s_add_u32 s28, s28, s29")
    k("s_mul_i32 s28, s28, 144")
    k("s_mul_i32 s29, s22, 36")
    k("s_add_u32 s28, s28, s29")
    k("s_lshl_b32 s28, s28, 10")
    k("s_add_u32 s29, s28, %d", 144 * 1024)
    k("s_mul_i32 s30, s22, 1152")
    k("s_lshl_b32 s31, s26, 5")
    k("s_add_u32 s30, s30, s31")
    k("s_mul_i32 s30, s30, 1152")
    k("s_mul_i32 s31, s24, 288")
    k("s_add_u32 s30, s30, s31")
    k("s_mul_i32 s31, s26, 9216")

    VA = 32
    VW = 128
    NWB = 8
    ACC = 160

    def dma_ops(st):
        if "nodma" in OPT or st >= 9:
            return []
        slot = st % 4
        sreg = 36 + (st % 2)
        ops = []
        for i in range(9):
            def f(i=i):
                if i == 0:
                    k("s_add_u32 s%d, s30, %d", sreg, st * 128 * 1152)
                k("s_add_u32 m0, s31, %d", slot * SLOT + i * 1024)
                k.vmem(("D", st), "buffer_load_dwordx4 v%d, s[12:15], s%d offen lds", VD + i, sreg)
            ops.append(f)
        return ops

    def act_ops(st):
        if "noact" in OPT or st >= 9:
            return []
        base = VA + (st % 3) * 32
        ops = []
        for s in range(4):
            for t in range(2):
                def f(s=s, t=t):
                    if s == 0 and t == 0:
                        k("s_add_u32 s33, s28, %d", st * 4096)
                        k("s_add_u32 s34, s29, %d", st * 4096)
                    k.vmem(("A", st), "buffer_load_dwordx4 %s, v%d, s[8:11], s%d offen offset:%d",
                           vr(base + (s * 2 + t) * 4, 4), VLANE16, 33 + t, s * 1024)
                ops.append(f)
        return ops

    stamp(k)
    stamp(k, True)
    for f in dma_ops(0) + act_ops(0) + dma_ops(1) + act_ops(1) + dma_ops(2):
        f()
    for j in range(72):
        k("v_mov_b32 v%d, 0", ACC + j)

    frags = [(st, s, mu) for st in range(9) for s in range(4) for mu in range(9)]
    AHEAD = 6

    def issue_tr(fi):
        st, s, mu = frags[fi]
        b = VW + (fi % NWB) * 4
        off = s * 9216 + mu * 32
        k.lds(("W", fi), "ds_read_b64_tr_b16 %s, v%d offset:%d", vr(b, 2), VTB + st % 4, off)
        k.lds(("W", fi), "ds_read_b64_tr_b16 %s, v%d offset:%d", vr(b + 2, 2), VTB + st % 4, off + 2304)

    nissued = 0
    pend = []
    for fi, (st, s, mu) in enumerate(frags):
        if s == 0 and mu == 0:
            k.comment("stage %d" % st)
            k.wait_vm([("D", st), ("A", st)])
            k("s_barrier")
            stamp(k)
            d, a = dma_ops(st + 3), act_ops(st + 2)
            pend = []
            while d or a:
                if d:
                    pend.append(d.pop(0))
                if a:
                    pend.append(a.pop(0))
        if "nomfma" in OPT:
            for f in pend:
                f()
            pend = []
            continue
        lim = min(fi + AHEAD, (st + 1) * 36 - 1)
        while nissued <= lim:
            issue_tr(nissued)
            nissued += 1
        k.wait_lg([("W", fi)])
        b = VW + (fi % NWB) * 4
        abase = VA + (st % 3) * 32
        for t in range(2):
            a = ACC + (mu * 2 + t) * 4
            k("v_mfma_f32_16x16x32_bf16 %s, %s, %s, %s", vr(a, 4), vr(b, 4), vr(abase + (s * 2 + t) * 4, 4), vr(a, 4))
        if pend and (fi % 2 == 1):
            pend.pop(0)()
    stamp(k)
    k("s_lshl_b32 s32, s22, 11")
    k("s_lshl_b32 s33, s25, 7")
    k("s_add_u32 s32, s32, s33")
    k("s_lshl_b32 s33, s26, 5")
    k("s_add_u32 s32, s32, s33")
    k("s_mul_i32 s32, s32, 2304")
    k("s_mul_i32 s33, s24, 576")
    k("s_add_u32 s32, s32, s33")
    k("s_add_u32 s33, s32, %d", 16 * 2304)
    for mu in range(9):
        for t in range(2):
            a = ACC + (mu * 2 + t) * 4
            k("buffer_store_dwordx4 %s, v%d, s[16:19], s%d offen offset:%d", vr(a, 4), VST, 32 + t, mu * 64)
    if STAMP:
        k("s_waitcnt vmcnt(0)")
        stamp(k)
        stamp(k, True)
        stamp_dump(k, 4, 5, 26)
    k.label(end)
    k("s_endpgm")
    return k.finish(232, 0, 102), "k4_kernel grid=(256,1,1) block=(256,1,1) lds=%d" % (4 * SLOT)


HEADER = """; Kernarg layout for this problem (80 bytes, ptrs only, base s[0:1]):
"""


def build(kernels):
    texts, descs, launches = [], [], []
    for g in kernels:
        (t, d, nn), l = g()
        texts.append(t)
        descs.append(d)
        launches.append(l)
    out = HEADER
    for l in launches:
        out += "; @launch kernel=%s\n" % l
    out += '.amdgcn_target "amdgcn-amd-amdhsa--gfx950"\n.text\n'
    out += "\n".join(texts) + "\n"
    out += '.section .rodata,"a"\n'
    for d in descs:
        out += ".p2align 6\n" + d + "\n"
    return out


ALL = {}


def main():
    import gen_k1, gen_k2, gen_k3, gen_k4
    global STAMP
    args = sys.argv[2:]
    if "stamp" in args:
        args.remove("stamp")
        STAMP = True
        import gen as _g
        _g.STAMP = True
    for a in list(args):
        if a.startswith("-"):
            args.remove(a)
            OPT.add(a[1:])
            import gen as _g
            _g.OPT.add(a[1:])
            if a[1:] in ("sc1", "nt", "sc0sc1"):
                _g.STMOD = " " + a[1:].replace("sc0sc1", "sc0 sc1")
    names = args if args else ["k1", "k2", "k3", "k4"]
    table = {"k4old": gen_k4old, "k5": gen_k5}
    for mod, nm in ((gen_k1, "k1"), (gen_k2, "k2"), (gen_k3, "k3"), (gen_k4, "k4")):
        if hasattr(mod, "gen"):
            table[nm] = mod.gen
    import gen as _g
    if "ownpf" not in OPT:
        _g.LAST_END = names[-1] + "_kernel_end"
    s = build([table[n] for n in names])
    open(sys.argv[1], "w").write(s)
    print("wrote", sys.argv[1], len(s), "bytes")


if __name__ == "__main__":
    main()
```

```python
from asmfw import K, vr, ar, sr
import gen as G

OOB = 0x7f000000
RSTR = 240
XS = 16384
SL = XS + 64 * RSTR
PREPD = 4 * SL
XCH = 0
XST = 73728
KVX = 77824
KVS = 48 * 208
CSA = KVX + 8 * KVS
STB = CSA + 640
LDS_TOTAL = STB + 1024
LOG2E = 1.4426950408889634


def gen():
    k = K("k1_kernel")
    k.sbase = 88
    end = G.prologue_exit(k, 256, 1, (146, 147), 16)
    k("s_load_dwordx2 s[4:5], s[0:1], %d", G.KA_WS)
    k("s_load_dwordx4 s[8:11], s[0:1], %d", G.KA_X)
    k("s_load_dwordx2 s[14:15], s[0:1], %d", G.KA_DBG)
    k("s_load_dwordx2 s[12:13], s[0:1], %d", G.KA_WO)
    k("s_load_dwordx4 s[84:87], s[0:1], %d", G.KA_WG)
    k("s_and_b32 s25, s2, 3")
    k("s_lshl_b32 s25, s25, 2")
    k("s_bfe_u32 s24, s2, 0x20003")
    k("s_add_u32 s25, s25, s24")
    k("s_bfe_u32 s24, s2, 0x10002")
    k("s_lshl_b32 s24, s24, 3")
    k("s_lshr_b32 s22, s2, 5")
    k("s_add_u32 s24, s24, s22")
    k("s_lshr_b32 s22, s2, 2")
    k("s_and_b32 s23, s2, 3")
    VTID = 1
    k("v_mov_b32 v%d, v0", VTID)
    k("v_lshrrev_b32 v2, 6, v0")
    k("v_and_b32 v0, 63, v0")
    k("v_readfirstlane_b32 s26, v2")
    k("s_and_b32 s20, s26, 3")
    k("s_lshr_b32 s21, s26, 2")
    VG, VI, VI4, VIM, VL16, VOOB = 2, 3, 4, 5, 6, 7
    k("v_lshrrev_b32 v%d, 4, v0", VG)
    k("v_and_b32 v%d, 15, v0", VI)
    k("v_bfe_u32 v%d, v0, 2, 2", VI4)
    k("v_and_b32 v%d, 3, v0", VIM)
    k("v_lshlrev_b32 v%d, 4, v0", VL16)
    k("v_mov_b32 v%d, 0x%x", VOOB, OOB)
    k("v_cmp_eq_u32 s[30:31], 0, v%d", VG)
    for r in (12, 13, 14, 15):
        k("v_mov_b32 v%d, 0", r)
    k("v_lshlrev_b32 v9, 2, v%d", VTID)
    k("v_add_u32 v9, %d, v9", CSA)
    k("v_cmp_gt_u32 vcc, 144, v%d", VTID)
    k("s_and_saveexec_b64 s[28:29], vcc")
    k("ds_write_b32 v9, v12")
    k("s_mov_b64 exec, s[28:29]")
    VXD, VWD, VPD = 16, 18, 20
    k("s_mov_b32 s28, 0x%x", (1 << 32) // 15 + 1)
    k("s_mov_b32 s29, 0x%x", (1 << 32) // 5 + 1)
    k("s_mov_b32 s32, 0x%x", (1 << 32) // 18 + 1)
    for i in range(2):
        k("v_add_u32 v9, %d, v0", 64 * i)
        if i < 2:
            k("v_lshrrev_b32 v10, 3, v9")
            k("v_xor_b32 v11, v9, v10")
            k("v_and_b32 v11, 7, v11")
            k("v_mul_u32_u24 v10, 1152, v10")
            k("v_lshl_add_u32 v%d, v11, 4, v10", VXD + i)
            k("v_mul_hi_u32 v10, v9, s28")
            k("v_mul_u32_u24 v11, 15, v10")
            k("v_sub_u32 v11, v9, v11")
            k("v_mul_hi_u32 v8, v11, s29")
            k("v_mul_u32_u24 v23, 5, v8")
            k("v_sub_u32 v23, v11, v23")
            k("v_mul_u32_u24 v10, 3456, v10")
            k("v_mul_u32_u24 v8, 1152, v8")
            k("v_lshlrev_b32 v23, 4, v23")
            k("v_add3_u32 v%d, v10, v8, v23", VWD + i)
    VTB = 24
    k("v_lshl_add_u32 v11, v%d, 3, v%d", VG, VI4)
    k("v_mul_u32_u24 v11, %d, v11", RSTR)
    k("v_lshl_add_u32 v11, v%d, 3, v11", VIM)
    k("s_and_b32 s27, s24, 1")
    k("s_lshl_b32 s27, s27, 3")
    k("s_add_u32 s27, s27, %d", XS)
    k("s_mul_i32 s28, s21, %d", 32 * RSTR)
    k("s_add_u32 s27, s27, s28")
    k("v_add_u32 v%d, s27, v11", VTB)
    k("v_add_u32 v%d, %d, v%d", VTB + 1, 2 * SL, VTB)
    VXA = 26
    k("s_lshl_b32 s34, s26, 11")
    k("s_lshl_b32 s27, s21, 2")
    k("s_lshl_b32 s28, s20, 12")
    k("s_lshl_b32 s29, s21, 11")
    k("s_add_u32 s28, s28, s29")
    k("v_add_u32 v9, s27, v%d", VG)
    k("v_xor_b32 v9, v9, v%d", VI)
    k("v_and_b32 v9, 7, v9")
    k("v_lshlrev_b32 v9, 4, v9")
    k("v_lshl_add_u32 v9, v%d, 7, v9", VI)
    k("v_add_u32 v%d, s28, v9", VXA)
    k("v_xor_b32 v%d, 0x800, v%d", VXA + 1, VXA)
    k("v_add_u32 v%d, %d, v%d", VXA + 2, 2 * SL, VXA)
    k("v_add_u32 v%d, %d, v%d", VXA + 3, 2 * SL, VXA + 1)
    k("s_waitcnt lgkmcnt(0)")
    k.srd(64, 8, 9, G.SZ_H)
    k.srd(68, 10, 11, G.D * 3 * G.D * 2)
    k.srd(76, 14, 15, 256)
    k.srd(80, 4, 5, G.SZ_KV, G.WS_KV)
    k("s_bfe_u32 s18, s2, 0x10002")
    k("s_cmp_eq_u32 s18, 0")
    k("s_cselect_b32 s18, s84, s86")
    k("s_cselect_b32 s19, s85, s87")
    k.srd(84, 4, 5, G.SZ_CS, G.WS_CS)
    G.stamp(k)
    k("s_lshl_b32 s32, s25, 7")
    k("s_lshl_b32 s33, s26, 4")
    k("s_add_u32 s32, s32, s33")
    k("s_mul_i32 s32, s32, 1152")
    k("s_mul_i32 s33, s26, %d", 8 * 3456)
    k("s_mul_i32 s35, s24, 72")
    k("s_and_b32 s35, s35, 0xfffffff0")
    k("s_add_u32 s33, s33, s35")
    k("s_mul_i32 s35, s26, %d", 8 * RSTR)
    k("s_add_u32 s35, s35, %d", XS)

    def slice_ops(j):
        if j >= 9 or "nodma" in G.OPT:
            return []
        ops = []
        slot = (j % 4) * SL
        for i in range(2):
            def fx(i=i):
                if i == 0:
                    k("s_add_u32 s36, s32, %d", j * 128)
                k("s_add_u32 m0, s34, %d", slot + i * 1024)
                k.vmem(("S", j), "buffer_load_dwordx4 v%d, s[64:67], s36 offen lds", VXD + i)

            def fw(i=i):
                if i == 0:
                    k("s_add_u32 s37, s33, %d", j * 64 * 3456)
                k("s_add_u32 m0, s35, %d", slot + i * 1024)
                if i == 1:
                    k("s_mov_b32 exec_hi, 0xffffff")
                k.vmem(("S", j), "buffer_load_dwordx4 v%d, s[68:71], s37 offen lds", VWD + i)
                if i == 1:
                    k("s_mov_b64 exec, -1")
            ops += [fw, fx]
        return ops

    def prep_ops():
        ops = []
        for i in range(3):
            def f(i=i):
                if i == 0:
                    k("s_mul_i32 s38, s22, 72")
                    k("s_mul_i32 s39, s26, 9")
                    k("s_add_u32 s38, s38, s39")
                    k("s_mul_i32 s38, s38, 1152")
                    k("s_mul_i32 s39, s23, 288")
                    k("s_add_u32 s38, s38, s39")
                    k("s_mul_i32 s39, s26, %d", 9 * 288)
                k("s_add_u32 m0, s39, %d", PREPD + i * 1024)
                if i == 2:
                    k("s_mov_b32 exec_hi, 3")
                k.vmem("P", "buffer_load_dwordx4 v%d, s[72:75], s38 offen lds", VPD + i)
                if i == 2:
                    k("s_mov_b64 exec, -1")
            ops.append(f)
        return ops

    for f in slice_ops(0):
        f()
    for f in slice_ops(1) + slice_ops(2):
        f()
    VT = 11
    k("v_mov_b32 v%d, 1", VT)
    k("s_lshl_b32 s29, s24, 2")
    lab = k.newlabel("notk")
    k("s_cmp_lg_u32 s26, 0")
    k("s_cbranch_scc1 %s", lab)
    k("v_lshlrev_b32 v9, 2, v0")
    k("v_cmp_gt_u32 vcc, 36, v0")
    k("v_cndmask_b32 v9, v%d, v9, vcc", VOOB)
    k("s_mul_i32 s38, s2, 144")
    k("buffer_store_dword v12, v9, s[84:87], s38 offen")
    k("s_cmp_lg_u32 s25, 0")
    k("s_cbranch_scc1 %s", lab)
    k("s_mov_b64 exec, 1")
    k("buffer_atomic_add v%d, v12, s[76:79], s29 offen sc0 sc1", VT)
    k("s_mov_b64 exec, -1")
    k.label(lab)

    def zero_stores():
        k("s_mul_i32 s41, s24, 7168")
        k("s_add_u32 s42, s41, 4096")
        for r in range(7):
            k("buffer_store_dwordx4 v[12:15], v%d, s[80:83], s%d offen offset:%d sc0 sc1", VL16, 41 + r // 4, (r % 4) * 1024)

    def flag_store():
        k("v_mov_b32 v31, 1")
        k("s_mov_b64 exec, 1")
        k("buffer_store_dword v31, v12, s[76:79], s29 offen offset:64 sc0 sc1")
        k("s_mov_b64 exec, -1")

    def zero_kv():
        zero_stores()
        k("s_waitcnt vmcnt(0)")
        flag_store()

    k("s_mov_b32 s40, 1")

    for j in range(12):
        k("v_accvgpr_write_b32 a%d, 0", j)
    VONE = 32
    for j in range(4):
        k("v_mov_b32 v%d, 0x3f803f80", VONE + j)
    VS = 36
    XF = 40
    ACC = 56
    PT = 128
    WB, NWB, AH = 28, 18, 6

    side = []

    def S(fmt, *a):
        side.append(lambda: k(fmt, *a))

    def prep_stream():
        S("s_lshl_b32 s41, s26, 2")
        S("v_add_u32 v8, s41, v%d", VG)
        S("v_mul_u32_u24 v9, 288, v%d", VI4)
        S("v_lshl_add_u32 v9, v%d, 3, v9", VIM)
        S("v_add_u32 v9, %d, v9", PREPD)
        S("s_mov_b32 s41, 0x%x", (1 << 32) // 9 + 1)
        S("s_mul_i32 s42, s22, 72")
        S("s_lshl_b32 s43, s23, 1")
        for it in range(6):
            b = PT + (it % 2) * 8
            S("v_add_u32 v10, %d, v8", it * 32)
            S("v_min_u32 v30, 161, v10")
            S("v_mul_hi_u32 v%d, v30, s41", b + 2)
            S("v_mul_u32_u24 v%d, 9, v%d", b + 3, b + 2)
            S("v_sub_u32 v%d, v30, v%d", b + 3, b + 3)
            S("v_mul_u32_u24 v%d, 1152, v%d", b + 4, b + 2)
            S("v_lshl_add_u32 v%d, v%d, 5, v%d", b + 4, b + 3, b + 4)
            S("v_add_u32 v%d, v%d, v9", b + 4, b + 4)
            side.append(lambda b=b, it=it: k.lds(("PT", it), "ds_read_b64_tr_b16 %s, v%d", vr(b, 2), b + 4))
            S("v_lshl_add_u32 v%d, v%d, 2, s42", b + 2, b + 2)
            S("v_lshl_add_u32 v%d, v%d, 4, v%d", b + 3, b + 3, VI)
            S("v_cmp_le_u32 vcc, 72, v%d", b + 3)
            S("v_cndmask_b32 v%d, 0, 1, vcc", b + 5)
            S("v_mul_u32_u24 v%d, 72, v%d", b + 6, b + 5)
            S("v_sub_u32 v%d, v%d, v%d", b + 3, b + 3, b + 6)
            S("v_add_u32 v%d, s43, v%d", b + 5, b + 5)
            S("v_mul_u32_u24 v%d, 144, v%d", b + 5, b + 5)
            S("v_lshrrev_b32 v%d, 5, v%d", b + 6, b + 2)
            S("v_add_u32 v%d, v%d, v%d", b + 5, b + 5, b + 6)
            S("v_mul_u32_u24 v%d, 4608, v%d", b + 5, b + 5)
            S("v_bfe_u32 v%d, v%d, 4, 1", b + 6, b + 2)
            S("v_bfe_u32 v%d, v%d, 2, 1", b + 7, b + 2)
            S("v_lshl_add_u32 v%d, v%d, 1, v%d", b + 6, b + 6, b + 7)
            S("v_bfe_u32 v%d, v%d, 3, 1", b + 7, b + 2)
            S("v_lshl_add_u32 v%d, v%d, 3, v%d", b + 5, b + 7, b + 5)
            S("v_and_b32 v%d, 15, v%d", b + 7, b + 3)
            S("v_lshrrev_b32 v%d, 4, v%d", b + 2, b + 3)
            S("v_lshl_add_u32 v30, v%d, 4, v%d", b + 6, b + 7)
            S("v_lshl_add_u32 v%d, v%d, 3, v%d", b + 7, b + 6, b + 7)
            S("v_cmp_gt_u32 vcc, 4, v%d", b + 2)
            S("v_cndmask_b32 v%d, v%d, v30, vcc", b + 7, b + 7)
            S("v_lshlrev_b32 v%d, 4, v%d", b + 7, b + 7)
            S("v_lshl_add_u32 v%d, v%d, 10, v%d", b + 7, b + 2, b + 7)
            S("v_add_u32 v%d, v%d, v%d", b + 5, b + 5, b + 7)
            if it == 5:
                S("v_cmp_gt_u32 vcc, 162, v10")
                S("v_cndmask_b32 v%d, v%d, v%d, vcc", b + 5, VOOB, b + 5)
            side.append(lambda it=it: k.wait_lg([("PT", it)]))
            side.append(lambda b=b: k.vmem("PS", "buffer_store_dwordx2 %s, v%d, s[44:47], 0 offen sc1", vr(b, 2), b + 5))

    def wo_load():
        k.srd(48, 12, 13, G.D * G.D * 2)
        k("s_mul_i32 s38, s2, 162")
        k("v_add_u32 v20, s38, v%d", VTID)
        k("s_mov_b32 s38, 0x%x", (1 << 32) // 72 + 1)
        k("s_mov_b32 s39, 0x%x", (1 << 32) // 9 + 1)
        k("v_mul_hi_u32 v21, v20, s38")
        k("v_mul_u32_u24 v22, 72, v21")
        k("v_sub_u32 v22, v20, v22")
        k("v_mul_hi_u32 v23, v22, s39")
        k("v_mul_u32_u24 v30, 9, v23")
        k("v_sub_u32 v22, v22, v30")
        k("v_mul_u32_u24 v23, 576, v23")
        k("v_add_u32 v23, v23, v21")
        k("v_mul_u32_u24 v23, 144, v23")
        k("v_lshl_add_u32 v23, v22, 4, v23")
        k("v_lshlrev_b32 v20, 4, v20")
        k("v_cmp_gt_u32 vcc, 162, v%d", VTID)
        k("v_cndmask_b32 v20, v%d, v20, vcc", VOOB)
        k("v_cndmask_b32 v146, v%d, v23, vcc", VOOB)
        k.vmem("WOC", "buffer_load_dwordx4 v[128:131], v20, s[48:51], 0 offen")

    def l2_warm():
        k("s_mov_b32 s38, 0x%x", (1 << 32) // 9 + 1)
        k("s_mov_b32 s39, 0x%x", (1 << 32) // 5 + 1)
        k("v_mul_hi_u32 v20, v%d, s38", VTID)
        k("v_mul_u32_u24 v21, 9, v20")
        k("v_sub_u32 v21, v%d, v21", VTID)
        k("v_mul_u32_u24 v20, 1152, v20")
        k("v_lshl_add_u32 v20, v21, 7, v20")
        k("v_cmp_gt_u32 vcc, 144, v%d", VTID)
        k("v_cndmask_b32 v20, v%d, v20, vcc", VOOB)
        k("s_and_b32 s41, s2, 3")
        k("s_lshl_b32 s41, s41, 9")
        k("s_lshr_b32 s42, s2, 3")
        k("s_lshl_b32 s43, s42, 4")
        k("s_add_u32 s41, s41, s43")
        k("s_mul_i32 s41, s41, 1152")
        k.vmem("PF", "buffer_load_dword v147, v20, s[64:67], s41 offen")
        k("v_subrev_u32 v20, 144, v%d", VTID)
        k("v_mul_hi_u32 v21, v20, s39")
        k("v_mul_u32_u24 v23, 5, v21")
        k("v_sub_u32 v23, v20, v23")
        k("v_mul_u32_u24 v21, 1152, v21")
        k("v_lshl_add_u32 v21, v23, 7, v21")
        k("v_cmp_gt_u32 vcc, 270, v20")
        k("v_cndmask_b32 v21, v%d, v21, vcc", VOOB)
        k("s_mul_i32 s41, s42, %d", 18 * 3456)
        k("s_bfe_u32 s43, s2, 0x10002")
        k("s_lshl_b32 s43, s43, 9")
        k("s_add_u32 s41, s41, s43")
        k.vmem("PF", "buffer_load_dword v147, v21, s[68:71], s41 offen")

    def k2_warm():
        k("s_mov_b32 s44, s18")
        k("s_mov_b32 s45, s19")
        k("s_mov_b32 s46, 0x%x", G.D * G.F * 2)
        k("s_mov_b32 s47, 0x20000")
        k("s_and_b32 s38, s2, 3")
        k("s_mul_i32 s38, s38, %d", 144 * 9216)
        k("s_lshr_b32 s39, s2, 3")
        k("s_mul_i32 s41, s39, 288")
        k("s_add_u32 s38, s38, s41")
        k("v_lshrrev_b32 v20, 2, v%d", VTID)
        k("v_and_b32 v21, 3, v%d", VTID)
        k("v_lshlrev_b32 v21, 7, v21")
        k("v_min_u32 v21, 284, v21")
        k("v_mul_u32_u24 v20, 9216, v20")
        k("v_add_u32 v20, v20, v21")
        k.vmem("PF2", "buffer_load_dword v147, v20, s[44:47], s38 offen")
        k("v_cmp_gt_u32 vcc, 64, v%d", VTID)
        k("v_cndmask_b32 v20, v%d, v20, vcc", VOOB)
        k("s_add_u32 s38, s38, %d", 128 * 9216)
        k.vmem("PF2", "buffer_load_dword v147, v20, s[44:47], s38 offen")

    import os
    WARMJ = int(os.environ.get('WARMJ', 6))
    AH = 7
    visible = -1
    nr = 0
    pend = []
    stq = []

    def xread(j):
        xb = XF + (j % 2) * 8
        for t in range(2):
            k.lds(("X", j), "ds_read_b128 %s, v%d offset:%d", vr(xb + t * 4, 4), VXA + 2 * ((j % 4) // 2) + t, (j % 2) * SL)

    def barrier(jn):
        nonlocal visible, pend
        tags = [("S", jn)]
        for f in pend:
            f()
        pend = []
        k.wait_vm(tags)
        if jn == 3:
            lab = k.newlabel("nozero")
            k("s_or_b32 s41, s26, s25")
            k("s_cmp_lg_u32 s41, 0")
            k("s_cbranch_scc1 %s", lab)
            k("v_readfirstlane_b32 s40, v%d", VT)
            k("s_cmp_lg_u32 s40, 0")
            k("s_cbranch_scc1 %s", lab)
            zero_stores()
            k.label(lab)
        if jn == 6:
            lab = k.newlabel("noflag")
            k("s_cmp_lg_u32 s40, 0")
            k("s_cbranch_scc1 %s", lab)
            flag_store()
            k.label(lab)
        k("s_barrier")
        visible = jn
        xread(jn)

    k("s_waitcnt lgkmcnt(0)")
    barrier(0)
    G.stamp(k)
    pend = [l2_warm] + slice_ops(3) + [wo_load]
    for n in range(81):
        j, c = divmod(n, 9)
        if c == 2 and j < 8:
            barrier(j + 1)
            if j >= 1:
                pend = slice_ops(j + 3)
            if j == WARMJ:
                pend = pend + [k2_warm]
            if j in (3,):
                G.stamp(k)
        xb = XF + (j % 2) * 8
        while nr <= min(n + AH, 80) and nr // 9 <= visible:
            j2, c2 = divmod(nr, 9)
            b = WB + (nr % NWB) * 4
            off = (j2 % 2) * SL + (c2 // 3) * 80 + (c2 % 3) * 32
            k.lds(("W", nr), "ds_read_b64_tr_b16 %s, v%d offset:%d", ar(b, 2), VTB + (j2 % 4) // 2, off)
            k.lds(("W", nr), "ds_read_b64_tr_b16 %s, v%d offset:%d", ar(b + 2, 2), VTB + (j2 % 4) // 2, off + 4 * RSTR)
            nr += 1
        k.wait_lg([("W", n), ("X", j)])
        w = ar(WB + (n % NWB) * 4, 4)
        for t in range(2):
            a = vr(ACC + (c * 2 + t) * 4, 4)
            cc = "0" if j == 0 else a
            x = vr(xb + t * 4, 4)
            if c < 3:
                k("v_mfma_f32_16x16x32_bf16 %s, %s, %s, %s", a, w, x, cc)
            else:
                k("v_mfma_f32_16x16x32_bf16 %s, %s, %s, %s", a, x, w, cc)
        if c in (0, 1):
            x = vr(xb + c * 4, 4)
            sa, ga = ar(12 + c * 8, 4), ar(16 + c * 8, 4)
            k("v_mfma_f32_16x16x32_bf16 %s, %s, %s, %s", sa, vr(VONE, 4), x, "0" if j == 0 else sa)
            k("v_mfma_f32_16x16x32_bf16 %s, %s, %s, %s", ga, x, x, "0" if j == 0 else ga)
        if pend:
            pend.pop(0)()
        for _ in range(6):
            if side:
                side.pop(0)()
        if c % 3 == 2:
            lab = k.newlabel("nocs")
            k("s_cmp_lg_u32 s20, %d", c // 3)
            k("s_cbranch_scc1 %s", lab)
            for c2 in range(3):
                w2 = ar(WB + ((n - 2 + c2) % NWB) * 4, 4)
                k("v_mfma_f32_16x16x32_bf16 %s, %s, %s, %s", ar(c2 * 4, 4), vr(VONE, 4), w2, ar(c2 * 4, 4))
            k.label(lab)
    while side:
        side.pop(0)()
    G.stamp(k)
    lab = k.newlabel("nopoll0")
    k("s_cmp_lg_u32 s26, 0")
    k("s_cbranch_scc1 %s", lab)
    k("buffer_load_dword v10, v12, s[76:79], s29 offen offset:64 sc0 sc1")
    k.label(lab)
    k.srd(48, 4, 5, G.SZ_WOC, G.WS_WOC)
    k("buffer_store_dwordx4 v[128:131], v146, s[48:51], 0 offen sc1")
    lab = k.newlabel("nocsadd")
    k("s_cmp_eq_u32 s20, 3")
    k("s_cbranch_scc1 %s", lab)
    k("s_mul_i32 s38, s20, 192")
    k("s_add_u32 s38, s38, %d", CSA)
    k("v_lshl_add_u32 v8, v%d, 2, s38", VI)
    k("s_mov_b64 exec, s[30:31]")
    for c in range(3):
        k("ds_add_f32 v8, a%d offset:%d", c * 4, c * 64)
    k("s_mov_b64 exec, -1")
    k.label(lab)
    k("v_cmp_eq_u32 s[44:45], 1, v%d", VIM)
    k("v_cmp_eq_u32 s[46:47], 2, v%d", VIM)
    k("v_cmp_eq_u32 s[48:49], 3, v%d", VIM)
    for t in range(2):
        k("v_accvgpr_read_b32 v%d, a%d", VS + 2 * t, 12 + t * 8)
        for jj in range(4):
            k("v_accvgpr_read_b32 v%d, a%d", 16 + jj, 16 + t * 8 + jj)
        k("v_cndmask_b32 v16, v16, v17, s[44:45]")
        k("v_cndmask_b32 v16, v16, v18, s[46:47]")
        k("v_cndmask_b32 v%d, v16, v19, s[48:49]", VS + 2 * t + 1)
    k("s_waitcnt lgkmcnt(0)")
    k.lg.ops = []
    k("s_barrier")
    k("s_mul_i32 s38, s26, 9216")
    k("v_add_u32 v8, s38, v%d", VL16)
    k("s_lshl_b32 s38, s26, 9")
    k("s_add_u32 s38, s38, %d", XST)
    k("v_lshl_add_u32 v9, v0, 3, s38")
    k("ds_write_b64 v9, %s", vr(VS + 2, 2))
    for c in range(9):
        k("ds_write_b128 v8, %s offset:%d", vr(ACC + (c * 2 + 1) * 4, 4), XCH + c * 1024)
    CQ = 128
    CK = 140
    RS = 48
    k("v_lshlrev_b32 v16, 4, v%d", VG)
    k("v_add_u32 v16, %d, v16", CSA)
    k("v_lshlrev_b32 v17, 2, v%d", VI)
    k("v_add_u32 v17, %d, v17", CSA)
    for c in range(3):
        k("ds_read_b128 %s, v16 offset:%d", vr(CQ + c * 4, 4), c * 64)
    for c in range(3, 9):
        k("ds_read_b32 v%d, v17 offset:%d", CK + c - 3, c * 64)
    k("s_xor_b32 s38, s26, 4")
    k("s_mul_i32 s39, s38, 9216")
    k("v_add_u32 v8, s39, v%d", VL16)
    k("s_lshl_b32 s38, s38, 9")
    k("s_add_u32 s38, s38, %d", XST)
    k("v_lshl_add_u32 v9, v0, 3, s38")
    k("s_waitcnt lgkmcnt(0)")
    k("s_barrier")
    G.stamp(k)
    k("ds_read_b64 %s, v9", vr(VS + 2, 2))
    for c in range(9):
        k("ds_read_b128 %s, v8 offset:%d", vr(ACC + c * 8 + 4, 4), XCH + c * 1024)
    k("s_waitcnt lgkmcnt(9)")
    k("v_add_f32 v%d, v%d, v%d", VS, VS, VS + 2)
    k("v_add_f32 v%d, v%d, v%d", VS + 2, VS + 1, VS + 3)
    k("v_lshl_add_u32 v8, v%d, 4, v%d", VI4, VI)
    k("v_lshlrev_b32 v8, 2, v8")
    k("ds_bpermute_b32 v%d, v8, v%d", VS + 2, VS + 2)
    k("s_waitcnt lgkmcnt(0)")
    b = VS
    k("v_mul_f32 v%d, 0x%08x, v%d", b, G.f32bits(1.0 / 576), b)
    k("v_mul_f32 v%d, 0x%08x, v%d", b + 2, G.f32bits(1.0 / 576), b + 2)
    k("v_fma_f32 v%d, -v%d, v%d, v%d", b + 2, b, b, b + 2)
    k("v_max_f32 v%d, 0, v%d", b + 2, b + 2)
    k("v_cvt_pk_bf16_f32 v%d, v%d, v%d", b + 3, b, b + 2)
    k("v_lshlrev_b32 v%d, 16, v%d", b, b + 3)
    k("v_and_b32 v%d, 0xffff0000, v%d", b + 2, b + 3)
    k("v_add_f32 v%d, 0x%08x, v%d", b + 2, G.f32bits(1e-5), b + 2)
    k("v_cvt_pk_bf16_f32 v%d, v%d, v%d", b + 3, b + 2, b + 2)
    k("v_lshlrev_b32 v%d, 16, v%d", b + 2, b + 3)
    k("v_sqrt_f32 v%d, v%d", b + 2, b + 2)
    k("v_sub_f32 v%d, 0, v%d", b, b)
    k("v_cvt_pk_bf16_f32 v%d, v%d, v%d", b + 3, b + 2, b + 2)
    k("v_lshlrev_b32 v%d, 16, v%d", b + 2, b + 3)
    k("v_rcp_f32 v%d, v%d", b + 1, b + 2)
    k("s_lshl_b32 s38, s26, 7")
    k("s_add_u32 s38, s38, %d", STB)
    k("v_lshl_add_u32 v8, v%d, 3, s38", VI)
    k("s_mov_b64 exec, s[30:31]")
    k("ds_write_b64 v8, %s", vr(VS, 2))
    k("s_mov_b64 exec, -1")
    for c in range(9):
        for jj in range(4):
            k("v_add_f32 v%d, v%d, v%d", ACC + c * 8 + jj, ACC + c * 8 + jj, ACC + c * 8 + 4 + jj)
    k("v_lshl_add_u32 v8, v%d, 5, s38", VG)
    k("s_waitcnt lgkmcnt(0)")
    k("ds_read_b128 %s, v8", vr(RS, 4))
    k("ds_read_b128 %s, v8 offset:16", vr(RS + 4, 4))

    T0 = 16

    def bf16round4(regs):
        k("v_cvt_pk_bf16_f32 v%d, v%d, v%d", T0, regs[0], regs[1])
        k("v_cvt_pk_bf16_f32 v%d, v%d, v%d", T0 + 1, regs[2], regs[3])
        k("v_lshlrev_b32 v%d, 16, v%d", regs[0], T0)
        k("v_and_b32 v%d, 0xffff0000, v%d", regs[1], T0)
        k("v_lshlrev_b32 v%d, 16, v%d", regs[2], T0 + 1)
        k("v_and_b32 v%d, 0xffff0000, v%d", regs[3], T0 + 1)

    def phi4(regs):
        for j, r in enumerate(regs):
            k("v_min_f32 v%d, 0, v%d", T0 + 4 + j, r)
        for j, r in enumerate(regs):
            k("v_mul_f32 v%d, 0x%08x, v%d", T0 + 4 + j, G.f32bits(LOG2E), T0 + 4 + j)
        for j, r in enumerate(regs):
            k("v_exp_f32 v%d, v%d", T0 + 4 + j, T0 + 4 + j)
        for j, r in enumerate(regs):
            k("v_max_f32 v%d, 0, v%d", r, r)
        for j, r in enumerate(regs):
            k("v_add_f32 v%d, v%d, v%d", r, r, T0 + 4 + j)
        for j, r in enumerate(regs):
            k("v_add_f32 v%d, 0x%08x, v%d", r, G.f32bits(1e-6), r)

    k.srd(64, 4, 5, G.SZ_PQA, G.WS_PQA)
    k.srd(68, 4, 5, G.SZ_PQB, G.WS_PQB)
    k("s_lshl_b32 s38, s25, 3")
    k("s_lshl_b32 s39, s20, 1")
    k("s_add_u32 s38, s38, s39")
    k("s_add_u32 s38, s38, s21")
    k("s_lshl_b32 s38, s38, 4")
    k("s_add_u32 s38, s38, s24")
    k("s_lshl_b32 s39, s38, 7")
    k("s_lshl_b32 s38, s38, 10")
    k("v_lshlrev_b32 v9, 3, v%d", VI)
    k("v_cndmask_b32 v9, v%d, v9, s[30:31]", VOOB)
    PK = 40
    KF = 128
    for c in range(3):
        regs = [ACC + c * 8 + j for j in range(4)]
        for j, r in enumerate(regs):
            k("v_fma_f32 v%d, v%d, v%d, v%d", r, CQ + c * 4 + j, VS, r)
        for r in regs:
            k("v_mul_f32 v%d, v%d, v%d", r, r, VS + 1)
        bf16round4(regs)
        phi4(regs)
        k("v_cvt_pk_bf16_f32 v%d, v%d, v%d", PK + c * 2, regs[0], regs[1])
        k("v_cvt_pk_bf16_f32 v%d, v%d, v%d", PK + c * 2 + 1, regs[2], regs[3])
    k("buffer_store_dwordx4 %s, v%d, s[64:67], s38 offen sc1", vr(PK, 4), VL16)
    k("buffer_store_dwordx2 %s, v9, s[68:71], s39 offen sc1", vr(PK + 4, 2))
    k("s_waitcnt lgkmcnt(0)")
    k("v_cmp_eq_u32 s[52:53], 4, v%d", VI)
    for c in range(3, 9):
        regs = [ACC + c * 8 + j for j in range(4)]
        for j, r in enumerate(regs):
            k("v_fma_f32 v%d, v%d, v%d, v%d", r, CK + c - 3, RS + 2 * j, r)
        for j, r in enumerate(regs):
            k("v_mul_f32 v%d, v%d, v%d", r, r, RS + 2 * j + 1)
        if c < 6:
            bf16round4(regs)
            phi4(regs)
        if c == 8:
            for r in regs:
                k("v_cndmask_b32 v%d, v%d, 1.0, s[52:53]", r, r)
        d = KF + (c - 3) * 2
        k("v_cvt_pk_bf16_f32 v%d, v%d, v%d", d, regs[0], regs[1])
        k("v_cvt_pk_bf16_f32 v%d, v%d, v%d", d + 1, regs[2], regs[3])
    KVD = ACC
    for a in range(3):
        for b in range(3):
            k("v_mfma_f32_16x16x16_bf16 %s, %s, %s, 0", vr(KVD + (a * 3 + b) * 4, 4), vr(KF + a * 2, 2),
              vr(KF + 6 + b * 2, 2))
    k("s_mul_i32 s43, s26, %d", KVS)
    k("s_add_u32 s43, s43, %d", KVX)
    k("v_mul_u32_u24 v8, 208, v%d", VI)
    k("v_lshl_add_u32 v8, v%d, 4, v8", VG)
    k("v_add_u32 v8, s43, v8")
    for a in range(3):
        for b in range(3):
            k("ds_write_b128 v8, %s offset:%d", vr(KVD + (a * 3 + b) * 4, 4), b * 16 * 208 + a * 64)
    VJ, VII, VIO, VGA = 16, 17, 18, 19
    k("v_and_b32 v%d, 3, v0", VJ)
    k("v_lshrrev_b32 v%d, 2, v0", VII)
    k("v_and_b32 v%d, 3, v%d", VIO, VII)
    k("v_lshrrev_b32 v%d, 2, v%d", VGA, VII)
    k("s_and_b32 s27, s26, 3")
    k("s_lshl_b32 s38, s27, 2")
    k("s_and_b32 s39, s24, 3")
    k("s_and_b32 s41, s24, 1")
    k("s_lshl_b32 s41, s41, 1")
    k("s_add_u32 s42, s41, 1")
    k("v_cmp_gt_u32 s[44:45], 2, v%d", VJ)
    k("v_cmp_gt_u32 s[46:47], 2, v%d", VIO)
    k("v_cmp_eq_u32 s[48:49], s41, v%d", VGA)
    k("v_cmp_eq_u32 s[50:51], s42, v%d", VGA)
    k("v_cmp_eq_u32 s[52:53], 2, v%d", VIO)
    k("v_cmp_eq_u32 s[54:55], 3, v%d", VIO)
    k("s_and_b64 s[48:49], s[48:49], s[46:47]")
    k("s_and_b64 s[50:51], s[50:51], s[46:47]")
    k("s_or_b64 s[48:49], s[48:49], s[52:53]")
    k("s_or_b64 s[50:51], s[50:51], s[54:55]")
    k("s_cmp_eq_u32 s27, 0")
    k("s_cselect_b64 s[56:57], -1, 0")
    k("s_cmp_eq_u32 s27, s39")
    k("s_cselect_b64 s[58:59], -1, 0")
    k("v_add_u32 v20, s38, v%d", VJ)
    k("v_add_u32 v21, 16, v20")
    k("v_add_u32 v22, 32, v%d", VJ)
    k("v_cmp_le_u32 s[60:61], 18, v21")
    k("v_add_u32 v23, 18, v%d", VII)
    k("v_add_u32 v24, 16, v%d", VIO)
    k("v_cndmask_b32 v24, 36, v24, s[46:47]")
    k("v_add_u32 v25, 34, v%d", VIO)
    k("v_cndmask_b32 v25, 36, v25, s[46:47]")
    k("v_cndmask_b32 v26, v25, v24, s[48:49]")
    k("s_and_b64 s[62:63], s[56:57], s[44:45]")
    k("s_mov_b64 s[64:65], -1")
    k("s_mov_b64 s[66:67], s[62:63]")
    k("s_mov_b64 s[68:69], s[60:61]")
    k("s_mov_b64 s[70:71], s[58:59]")
    k("s_mov_b64 s[72:73], s[48:49]")
    k("s_and_b64 s[74:75], s[48:49], s[62:63]")
    k("s_and_b64 s[44:45], s[50:51], s[60:61]")
    k("s_or_b64 s[74:75], s[74:75], s[44:45]")
    k("s_and_b64 s[46:47], s[50:51], s[58:59]")
    k("v_and_b32 v27, 255, v%d", VTID)
    k("v_lshlrev_b32 v27, 2, v27")
    k("s_mul_i32 s38, s24, 7168")
    k("s_add_u32 s39, s38, 4096")
    poll = k.newlabel("poll")
    pd = k.newlabel("polldone")
    k("s_cmp_lg_u32 s26, 0")
    k("s_cbranch_scc1 %s", pd)
    k("s_waitcnt vmcnt(%d)", 3)
    k("v_readfirstlane_b32 s41, v10")
    k("s_cmp_eq_u32 s41, 1")
    k("s_cbranch_scc1 %s", pd)
    k("s_cmp_eq_u32 s25, 0")
    k("s_cbranch_scc1 %s", poll)
    k("v_mov_b32 v%d, 1", VT)
    k("s_mov_b64 exec, 1")
    k("buffer_atomic_add v%d, v12, s[76:79], s29 offen sc0 sc1", VT)
    k("s_mov_b64 exec, -1")
    k("s_waitcnt vmcnt(0)")
    k("v_readfirstlane_b32 s41, v%d", VT)
    k("s_cmp_lg_u32 s41, 0")
    k("s_cbranch_scc1 %s", poll)
    zero_kv()
    k.label(poll)
    k("buffer_load_dword v10, v12, s[76:79], s29 offen offset:64 sc0 sc1")
    k("s_waitcnt vmcnt(0)")
    k("v_readfirstlane_b32 s41, v10")
    k("s_cmp_eq_u32 s41, 1")
    k("s_cbranch_scc1 %s", pd)
    k("s_sleep 2")
    k("s_branch %s", poll)
    k.label(pd)
    k("s_waitcnt lgkmcnt(0)")
    k("s_barrier")
    G.stamp(k)
    blocks = [(VII, 20), (VII, 21), (23, 21), (23, 22), (24, 20), (26, 21), (25, 22)]
    masks = ["s[64:65]", "s[66:67]", "s[68:69]", "s[70:71]", "s[72:73]", "s[74:75]", "s[46:47]"]
    other = k.newlabel("half1")
    fin = k.newlabel("fin")
    k("s_cmp_ge_u32 s26, 4")
    k("s_cbranch_scc1 %s", other)
    for half in range(2):
        rs = [0, 3, 4, 6] if half == 0 else [2, 1, 5]
        for n, r in enumerate(rs):
            ve, vd = blocks[r]
            b = 56 + n * 12
            k("v_mul_u32_u24 v%d, 52, v%d", b, ve)
            k("v_add_lshl_u32 v%d, v%d, v%d, 2", b, b, vd)
            k("v_add_u32 v%d, %d, v%d", b, KVX, b)
            k("v_add_u32 v%d, %d, v%d", b + 2, 4 * KVS, b)
            k("v_cndmask_b32 v%d, v%d, v27, %s", b + 1, VOOB, masks[r])
            for w in range(8):
                k("ds_read_b32 v%d, v%d offset:%d", b + 4 + w, b + (2 if w >= 4 else 0), (w % 4) * KVS)
            k("s_waitcnt lgkmcnt(8)" if n else "s_nop 0")
            if n:
                bb = 56 + (n - 1) * 12
                rr = rs[n - 1]
                for (x, y) in ((4, 5), (6, 7), (8, 9), (10, 11), (4, 6), (8, 10), (4, 8)):
                    k("v_add_f32 v%d, v%d, v%d", bb + x, bb + x, bb + y)
                k("buffer_atomic_add_f32 v%d, v%d, s[80:83], s%d offen offset:%d", bb + 4, bb + 1, 38 + rr // 4, (rr % 4) * 1024)
        k("s_waitcnt lgkmcnt(0)")
        bb = 56 + (len(rs) - 1) * 12
        rr = rs[-1]
        for (x, y) in ((4, 5), (6, 7), (8, 9), (10, 11), (4, 6), (8, 10), (4, 8)):
            k("v_add_f32 v%d, v%d, v%d", bb + x, bb + x, bb + y)
        k("buffer_atomic_add_f32 v%d, v%d, s[80:83], s%d offen offset:%d", bb + 4, bb + 1, 38 + rr // 4, (rr % 4) * 1024)
        if half == 0:
            k("s_branch %s", fin)
            k.label(other)
    k.label(fin)
    if G.STAMP:
        k("s_waitcnt vmcnt(0)")
        G.stamp(k)
    if G.STAMP:
        G.stamp_dump(k, 4, 5, 26)
    k.label(end)
    k("s_endpgm")
    return k.finish(148, 100, 102), "k1_kernel grid=(256,1,1) block=(512,1,1) lds=%d" % LDS_TOTAL
```
